```python
import torch

def _softmax(x, axis=-1):
    return torch.softmax(x, dim=axis)
def _gelu(x):
    return torch.nn.functional.gelu(x, approximate="tanh")
def _silu(x):
    return torch.nn.functional.silu(x)
def _sigmoid(x):
    return torch.sigmoid(x)
def _layernorm(x, axis=-1, eps=1e-5):
    m = x.mean(dim=axis, keepdim=True)
    v = x.var(dim=axis, keepdim=True, unbiased=False)
    return (x - m) / torch.sqrt(v + eps)
def _scatter_add(tgt, idx, src, axis=0):
    return tgt.clone().index_add_(axis, idx, src)
def _segment_sum(src, seg, n):
    out = torch.zeros((n,) + src.shape[1:], dtype=src.dtype)
    return out.index_add_(0, seg, src)
def _pad(x, pw):
    flat = tuple(v for pair in reversed(pw) for v in pair)
    return torch.nn.functional.pad(x, flat)

kernel_name = 'standalone__mha_softmax__near_ridge'

def setup_inputs():

    _w = (lambda a: (lambda t: t.to(torch.bfloat16) if t.is_floating_point() else t)(torch.as_tensor(a)))
    B, H, Sq, Sk, D = 16, 32, 384, 512, 128
    return {
        "q": _w((lambda *s: torch.randn(*s, dtype=torch.bfloat16) * 0.8)(B, H, Sq, D)),
        "k": _w((lambda *s: torch.randn(*s, dtype=torch.bfloat16) * 0.8)(B, H, Sk, D)),
        "v": _w((lambda *s: torch.randn(*s, dtype=torch.bfloat16) * 0.05)(B, H, Sk, D)),
    }

def reference(q, k, v):
    scale = q.shape[-1] ** -0.5
    scores = torch.einsum("bhqd,bhkd->bhqk", q, k) * scale
    p = _softmax(scores, axis=-1)
    return torch.einsum("bhqk,bhkd->bhqd", p, v)
```

```python
import sys, argparse, struct
ap = argparse.ArgumentParser()
ap.add_argument("--lp", default="nt")
ap.add_argument("--sp", default="")
ap.add_argument("--hmap", type=int, default=1)
ap.add_argument("--stamps", type=int, default=0)
ap.add_argument("--force_redo", type=int, default=0)
a = ap.parse_args()
LP = a.lp.replace("+", " ").replace("-", "")
SP = a.sp.replace("+", " ").replace("-", "")

NAME = "standalone__mha_softmax__near_ridge_kernel"
PIECE = 1056
SLOT = 16 * PIECE
NS = 8
RING = NS * SLOT
STG = RING
STGW = 16 * 272
FLAGS = STG + 4 * STGW
LDS = FLAGS + 64
QBYTES = 16 * 32 * 384 * 128 * 2
KBYTES = 16 * 32 * 512 * 128 * 2
CSCALE = struct.unpack("<I", struct.pack("<f", 1.4426950408889634 * 128 ** -0.5))[0]

out = []
def A(s): out.append("    " + s)
def L(s): out.append(s + ":")
def C(s): out.append("    ; " + s)

sWV = 3
SRD_Q, SRD_KV, SRD_O, SRD_P = 16, 20, 24, 28
sC = 32
sPoff, sPstr = 33, 34
sR, sW, sD, sT = 35, 36, 37, 38
sWpart = 39
sIt = 40
sCur, sNext = 41, 42
sNextSzQ, sNextSzKV = 43, 44
sQoffN, sKVoffN = 45, 46
sQoff, sKVoff = 47, 48
sOoff = 49
sBad = 50
sFlag, sBit, sPend, sMode = 52, 53, 54, 55
sHA, sHB = 56, 57
sLeft = 58
sT2 = 59
sLo, sHi = 60, 61
SRD_W = 64
sSt = 68
vDMA, vK, vV, vQ, vOw, vOr, vKl, vVl = 1, 2, 3, 4, 5, 6, 7, 8
vT = 10
vM = 16
vStamp = 22
vS = 24
vE = 48
vO = 64
aQ, aK, aV, aL, aONE, aZ = 0, 96, 160, 224, 248, 252

def vr(b, n): return f"v[{b}:{b+n-1}]"
def ar(b, n): return f"a[{b}:{b+n-1}]"
def sreg(b, n): return f"s[{b}:{b+n-1}]"
def Sbuf(u): return vS + 8 * (u % 3)
def Oreg(qt, dt): return vO + 32 * qt + 4 * dt

MF = "v_mfma_f32_16x16x32_bf16"
def qk_mfmas(qt, kpar, u):
    r = []
    for kt in range(2):
        d = vr(Sbuf(u) + 4 * kt, 4)
        for ks in range(4):
            r.append(f"{MF} {d}, {ar(aK + 32*kpar + 16*kt + 4*ks, 4)}, {ar(aQ + 16*qt + 4*ks, 4)}, {'0' if ks == 0 else d}")
    return r
def pv_mfmas(qt, vpar, u):
    r = []
    p = vr(Sbuf(u), 4)
    for dt in range(8):
        d = vr(Oreg(qt, dt), 4)
        r.append(f"{MF} {d}, {ar(aV + 32*vpar + 4*dt, 4)}, {p}, {d}")
    d = ar(aL + 4 * qt, 4)
    r.append(f"{MF} {d}, {ar(aONE, 4)}, {p}, {d}")
    return r
def sm_f(u, qt, j): return f"v_fma_f32 v{Sbuf(u)+j}, v{Sbuf(u)+j}, s{sC}, v{vM+qt}"
def sm_e(u, j): return f"v_exp_f32 v{Sbuf(u)+j}, v{Sbuf(u)+j}"
def sm_c(u, k): return f"v_cvt_pk_bf16_f32 v{Sbuf(u)+k}, v{Sbuf(u)+2*k}, v{Sbuf(u)+2*k+1}"
def k_read(kpar, n):
    kt, ks = n // 4, n % 4
    return f"ds_read_b128 {ar(aK + 32*kpar + 16*kt + 4*ks, 4)}, v{vK} offset:{kt*512 + ks*64}"
def v_read(vpar, n):
    dt, kt = n // 2, n % 2
    return f"ds_read_b64_tr_b16 {ar(aV + 32*vpar + 4*dt + 2*kt, 2)}, v{vV} offset:{kt*512 + dt*32}"
def dma(srd, soff, piece):
    return f"buffer_load_dwordx4 v{vDMA}, {sreg(srd,4)}, s{soff} offen offset:{piece*1024} {LP} lds"

nstamp = [0]
def stamp():
    if not a.stamps: return
    n = nstamp[0]; nstamp[0] += 1
    A(f"s_memtime s[{sSt}:{sSt+1}]"); A(f"s_memrealtime s[{sSt+2}:{sSt+3}]"); A("s_waitcnt lgkmcnt(0)")
    A(f"s_mov_b32 s{sSt+4}, m0"); A(f"s_mov_b32 m0, s{sSt+5}")
    A(f"v_writelane_b32 v{vStamp}, s{sSt}, m0"); A(f"v_writelane_b32 v{vStamp+1}, s{sSt+2}, m0")
    A(f"s_add_u32 s{sSt+5}, s{sSt+5}, 1"); A(f"s_mov_b32 m0, s{sSt+4}")

def emit_step(mf, gaps):
    for i, m in enumerate(mf):
        A(m)
        for x in gaps.get(i, []): A(x)

def softmax_gaps(u, qt, reads, early_reads=False):
    g = {i: [] for i in range(17)}
    rg = [2, 6, 10, 14]
    if early_reads:
        g[0] = [reads[0], sm_f(u, qt, 0)]
        g[2] = [reads[1], sm_f(u, qt, 1)]
        g[4] = [reads[2], sm_f(u, qt, 2)]
        g[6] = [reads[3], sm_f(u, qt, 3)]
        g[8] = [sm_f(u, qt, 4), sm_f(u, qt, 5)]
        g[10] = [sm_c(u, 0), sm_f(u, qt, 6)]
        g[12] = [sm_c(u, 1), sm_f(u, qt, 7)]
        g[14] = [sm_c(u, 2)]
        g[16] = [sm_c(u, 3)]
    else:
        g[0] = [sm_f(u, qt, 0), sm_f(u, qt, 1)]
        for i, gg in enumerate(rg):
            if i < len(reads): g[gg].append(reads[i])
        g[2].append(sm_f(u, qt, 2)); g[4] += [sm_c(u, 0), sm_f(u, qt, 3)]
        g[6].append(sm_f(u, qt, 4)); g[8] += [sm_c(u, 1), sm_f(u, qt, 5)]
        g[10].append(sm_f(u, qt, 6)); g[12] += [sm_c(u, 2), sm_f(u, qt, 7)]
        g[16].append(sm_c(u, 3))
    for j in range(8): g[2 * j + 1].append(sm_e(u, j))
    return g

def tile_step(par, k, head_start=False):
    mf = qk_mfmas(k, par, k)
    if k < 2: reads = [k_read(1 - par, 4 * k + i) for i in range(4)]
    else: reads = [v_read(1 - par, 4 * (k - 2) + i) for i in range(4)]
    if head_start:
        if k == 0:
            g = {0: [reads[0]], 1: [f"s_add_u32 m0, s{sW}, 0"], 2: [reads[1]], 3: [dma(SRD_P, sPoff, 0)], 4: [reads[2]], 6: [reads[3]]}
            emit_step(mf, g)
            A("s_nop 3")
        else:
            u, qt = 0, 0
            g = {0: [sm_f(u, qt, 0), sm_f(u, qt, 1), sm_f(u, qt, 2), sm_f(u, qt, 3)], 1: [reads[0], sm_e(u, 0), sm_e(u, 1)],
                 2: [f"s_add_u32 m0, s{sW}, 32", sm_e(u, 2), sm_e(u, 3)], 3: [reads[1], sm_f(u, qt, 4), sm_f(u, qt, 5), sm_f(u, qt, 6), sm_f(u, qt, 7)],
                 4: [dma(SRD_P, sPoff, 1), sm_e(u, 4), sm_e(u, 5)], 5: [reads[2], sm_e(u, 6), sm_e(u, 7)],
                 6: [reads[3], sm_c(u, 0), sm_c(u, 1)], 7: [sm_c(u, 2), sm_c(u, 3), "s_nop 4"]}
            emit_step(mf, g)
        return
    mf += pv_mfmas((k - 2) % 6, par if k >= 2 else 1 - par, k - 2)
    g = softmax_gaps(k - 1, (k - 1) % 6, reads, early_reads=(k == 5))
    if k < 4:
        g[15].insert(0, f"s_add_u32 m0, s{sW}, {32*k}")
        g[16].insert(0, dma(SRD_P, sPoff, k))
    if k == 4:
        g[1].insert(0, f"s_add_u32 s{sPoff}, s{sPoff}, s{sPstr}")
        g[3].insert(0, f"s_add_u32 s{sW}, s{sR}, s{sWpart}")
        g[5].insert(0, f"s_add_u32 s{sT}, s{sR}, {SLOT}")
        g[7].insert(0, f"s_cmp_eq_u32 s{sT}, {RING}")
        g[9].insert(0, f"s_cselect_b32 s{sT}, 0, s{sT}")
        g[11].insert(0, f"s_sub_u32 s{sD}, s{sT}, s{sR}")
        g[13].insert(0, f"s_mov_b32 s{sR}, s{sT}")
        g[16].append(f"v_add_u32 v{vK}, s{sD}, v{vK}")
    if k == 5:
        g[14].append(f"v_add_u32 v{vV}, s{sD}, v{vV}")
        if par == 1:
            g[1].insert(0, f"s_add_u32 s{sIt}, s{sIt}, 1")
            g[3].insert(0, f"s_cmp_eq_u32 s{sIt}, 4")
            g[5].insert(0, f"s_cselect_b64 {sreg(SRD_P,2)}, {sreg(SRD_Q,2)}, {sreg(SRD_P,2)}")
            g[7].insert(0, f"s_cselect_b32 s{SRD_P+2}, s{sNextSzQ}, s{SRD_P+2}")
            g[8].insert(0, f"s_cselect_b32 s{sPoff}, s{sQoffN}, s{sPoff}")
            g[9].insert(0, f"s_cselect_b32 s{sPstr}, 4096, s{sPstr}")
            g[10].insert(0, f"s_cmp_eq_u32 s{sIt}, 7")
            g[11].insert(0, f"s_cselect_b64 {sreg(SRD_P,2)}, {sreg(SRD_KV,2)}, {sreg(SRD_P,2)}")
            g[12].insert(0, f"s_cselect_b32 s{SRD_P+2}, s{sNextSzKV}, s{SRD_P+2}")
            g[13].insert(0, f"s_cselect_b32 s{sPoff}, s{sKVoffN}, s{sPoff}")
            g[14].insert(0, f"s_cselect_b32 s{sPstr}, 8192, s{sPstr}")
            g[15].insert(0, f"s_cmp_lt_u32 s{sIt}, 8")
    emit_step(mf, g)

def tile_sync(n):
    A(f"s_waitcnt vmcnt({n}) lgkmcnt(0)")
    A("s_barrier")

def zero_acc():
    z = ar(aZ, 4)
    for i in range(12):
        A(f"v_mfma_f32_32x32x16_bf16 {vr(vO + 16*i, 16)}, {z}, {z}, 0")
    A(f"v_mfma_f32_32x32x16_bf16 {ar(aL, 16)}, {z}, {z}, 0")
    A(f"{MF} {ar(aL+16, 4)}, {z}, {z}, 0")
    A(f"{MF} {ar(aL+20, 4)}, {z}, {z}, 0")

def head_prologue(slot0, nstores):
    C("---- head prologue: Q -> registers, refill the freed slots with KV2..KV7")
    A(f"s_add_u32 s{sT2}, s{sKVoff}, {2*8192}")
    for k in range(6):
        so = ((slot0 + k) % NS) * SLOT
        A(f"v_add_u32 v{vT}, {so}, v{vQ}")
        A(f"s_waitcnt vmcnt({28 + nstores})")
        for ks in range(4):
            A(f"ds_read_b128 {ar(aQ + 16*k + 4*ks, 4)}, v{vT} offset:{64*ks}")
        A(f"s_add_u32 s{sT}, s{sWpart}, {so}")
        A("s_waitcnt lgkmcnt(0)")
        for p in range(4):
            A(f"s_add_u32 m0, s{sT}, {32*p}")
            A("s_nop 0")
            A(dma(SRD_KV, sT2, p))
        A(f"s_add_u32 s{sT2}, s{sT2}, 8192")
    s0 = ((slot0 + 6) % NS) * SLOT
    s1 = ((slot0 + 7) % NS) * SLOT
    A(f"v_add_u32 v{vK}, {s0}, v{vKl}")
    A(f"v_add_u32 v{vV}, {s0}, v{vVl}")
    A(f"s_waitcnt vmcnt({28 + nstores})")
    A("s_barrier")
    for n in range(8): A(k_read(0, n))
    for n in range(16): A(v_read(0, n))
    A(f"v_add_u32 v{vK}, {s1}, v{vKl}")
    A(f"v_add_u32 v{vV}, {s1}, v{vVl}")
    A(f"s_mov_b32 s{sR}, {s1}")
    A(f"s_add_u32 s{sW}, s{sWpart}, {s0}")
    A(f"s_mov_b64 {sreg(SRD_P,2)}, {sreg(SRD_KV,2)}")
    A(f"s_mov_b32 s{SRD_P+2}, s{SRD_KV+2}")
    A(f"s_add_u32 s{sPoff}, s{sKVoff}, {8*8192}")
    A(f"s_mov_b32 s{sPstr}, 8192")
    A(f"s_mov_b32 s{sIt}, 0")
    tile_sync(24 + nstores)

def head_offsets(hreg, q, kv):
    A(f"s_mul_i32 s{q}, s{hreg}, 98304")
    A(f"s_mul_i32 s{sT}, s{sWV}, 24576")
    A(f"s_add_u32 s{q}, s{q}, s{sT}")
    A(f"s_lshl_b32 s{kv}, s{hreg}, 17")
    A(f"s_and_b32 s{sT}, s{sWV}, 1")
    A(f"s_lshl_b32 s{sT}, s{sT}, 12")
    A(f"s_add_u32 s{kv}, s{kv}, s{sT}")

def epilogue():
    C("---- drain the pipeline")
    u = 5
    mf = pv_mfmas(4, 1, 4)
    g = {0: [sm_f(u, 5, 0), sm_f(u, 5, 1), sm_f(u, 5, 2), sm_f(u, 5, 3)], 1: [sm_e(u, 0), sm_e(u, 1)], 2: [sm_e(u, 2), sm_e(u, 3)],
         3: [sm_f(u, 5, 4), sm_f(u, 5, 5), sm_f(u, 5, 6), sm_f(u, 5, 7)], 4: [sm_e(u, 4), sm_e(u, 5)], 5: [sm_e(u, 6), sm_e(u, 7)],
         6: [sm_c(u, 0), sm_c(u, 1)], 7: [sm_c(u, 2), sm_c(u, 3)], 8: ["s_nop 0"]}
    emit_step(mf, g)
    for m in pv_mfmas(5, 1, 5): A(m)
    C("---- normalise, transpose through LDS, store")
    A(f"s_mov_b32 s{sOoff}, s{sQoff}")
    def stores():
        for j in range(4):
            A(f"buffer_store_dwordx4 {vr(vE + 4*j, 4)}, v{vDMA}, {sreg(SRD_O,4)}, s{sOoff} offen offset:{1024*j} {SP}")
        A(f"s_add_u32 s{sOoff}, s{sOoff}, 4096")
    for qt in range(6):
        A(f"v_accvgpr_read_b32 v{vT+2}, a{aL + 4*qt}")
        A("s_nop 0")
        A(f"v_rcp_f32 v{vT}, v{vT+2}")
        A(f"v_cmp_nle_f32 vcc, s{sLo}, v{vT+2}")
        A(f"v_cmp_nge_f32 {sreg(sT2+3,2)}, s{sHi}, v{vT+2}")
        for dt in range(8):
            o = Oreg(qt, dt)
            A(f"v_pk_mul_f32 {vr(o,2)}, {vr(o,2)}, {vr(vT,2)} op_sel_hi:[1,0]")
            A(f"v_pk_mul_f32 {vr(o+2,2)}, {vr(o+2,2)}, {vr(vT,2)} op_sel_hi:[1,0]")
            if dt == 0:
                A(f"s_or_b64 {sreg(sBad,2)}, {sreg(sBad,2)}, vcc")
                A(f"s_or_b64 {sreg(sBad,2)}, {sreg(sBad,2)}, {sreg(sT2+3,2)}")
            A(f"v_cvt_pk_bf16_f32 v{o}, v{o}, v{o+1}")
            A(f"v_cvt_pk_bf16_f32 v{o+1}, v{o+2}, v{o+3}")
            if dt == 3 and qt > 0:
                A("s_waitcnt lgkmcnt(3)")
                stores()
            A(f"ds_write_b64 v{vOw}, {vr(o,2)} offset:{32*dt}")
        for j in range(4):
            A(f"ds_read_b128 {vr(vE + 4*j, 4)}, v{vOr} offset:{1088*j}")
    A("s_waitcnt lgkmcnt(0)")
    stores()
    A(f"s_cmp_lg_u64 {sreg(sBad,2)}, 0")
    A(f"s_cselect_b32 s{sT}, s{sBit}, 0")
    A(f"s_or_b32 s{sFlag}, s{sFlag}, s{sT}")
    A(f"s_mov_b64 {sreg(sBad,2)}, 0")

hdr = open("standalone__mha_softmax__near_ridge.s.ref").read().split("; Override launch")[0]
out.append(hdr.rstrip())
out.append(f"; @launch grid=(256,1,1) block=(256,1,1) lds={LDS}")
out.append('.amdgcn_target "amdgcn-amd-amdhsa--gfx950"')
out.append(".text"); out.append(f".globl {NAME}"); out.append(".p2align 8"); out.append(f".type {NAME},@function")
L(NAME)
A("s_cmp_ge_u32 s2, 256"); A("s_cbranch_scc1 L_exit")
A("s_load_dwordx8 s[4:11], s[0:1], 0")
if a.stamps:
    A(f"s_load_dwordx2 s[{SRD_W}:{SRD_W+1}], s[0:1], 40")
    A(f"s_mov_b32 s{sSt+5}, 0")
A(f"v_lshrrev_b32 v{vT}, 6, v0")
A(f"v_and_b32 v0, 63, v0")
A(f"v_readfirstlane_b32 s{sWV}, v{vT}")
A(f"v_lshlrev_b32 v{vDMA}, 4, v0")
if a.hmap == 0:
    A(f"s_lshl_b32 s{sHA}, s2, 1"); A(f"s_add_u32 s{sHB}, s{sHA}, 1")
else:
    A(f"s_mov_b32 s{sHA}, s2"); A(f"s_add_u32 s{sHB}, s2, 256")
A(f"s_mul_i32 s{sWpart}, s{sWV}, {4*PIECE}")
A(f"s_mov_b32 s{sCur}, s{sHA}")
head_offsets(sHB, sQoffN, sKVoffN)
A(f"s_mov_b32 s{sNextSzQ}, {QBYTES}"); A(f"s_mov_b32 s{sNextSzKV}, {KBYTES}")
A(f"s_mov_b32 s{sLeft}, 2"); A(f"s_mov_b32 s{sMode}, 0"); A(f"s_mov_b32 s{sFlag}, {a.force_redo}"); A(f"s_mov_b32 s{sBit}, 1")
A(f"s_mov_b32 s{sPend}, 0")
A(f"s_mov_b64 {sreg(sBad,2)}, 0")
A(f"s_mov_b32 s{sC}, 0x{CSCALE:08x}")
A(f"s_mov_b32 s{sLo}, 0x30800000")
A(f"s_mov_b32 s{sHi}, 0x4e800000")
A(f"s_mov_b32 s{SRD_Q+2}, {QBYTES}"); A(f"s_mov_b32 s{SRD_KV+2}, {KBYTES}"); A(f"s_mov_b32 s{SRD_O+2}, {QBYTES}")
for r in (SRD_Q, SRD_KV, SRD_O, SRD_P): A(f"s_mov_b32 s{r+3}, 0x20000")
A(f"s_cmp_lt_u32 s{sWV}, 2")
A("s_waitcnt lgkmcnt(0)")
A(f"s_cselect_b64 {sreg(SRD_KV,2)}, s[6:7], s[8:9]")
A(f"s_mov_b64 {sreg(SRD_Q,2)}, s[4:5]")
A(f"s_mov_b64 {sreg(SRD_O,2)}, s[10:11]")
if a.stamps:
    A(f"s_mov_b32 s{SRD_W+2}, 268435456"); A(f"s_mov_b32 s{SRD_W+3}, 0x20000")
stamp()
for j in range(6): A(f"v_mov_b32 v{vM+j}, 0")
L("L_start")
C("---- start of a stream: request Q0..Q5, KV0, KV1 of the current head")
head_offsets(sCur, sQoff, sKVoff)
A(f"s_mov_b32 s{sT2}, s{sQoff}")
for k in range(8):
    if k == 6: A(f"s_mov_b32 s{sT2}, s{sKVoff}")
    for p in range(4):
        A(f"s_add_u32 m0, s{sWpart}, {k*SLOT + 32*p}")
        A("s_nop 0")
        A(dma(SRD_Q if k < 6 else SRD_KV, sT2, p))
    A(f"s_add_u32 s{sT2}, s{sT2}, {4096 if k < 6 else 8192}")
C("---- per-lane LDS addresses")
A(f"v_and_b32 v{vT}, 15, v0")
A(f"v_lshrrev_b32 v{vT+1}, 4, v0")
A(f"v_and_b32 v{vT+2}, 7, v{vT}"); A(f"v_mul_u32_u24 v{vKl}, {PIECE}, v{vT+2}")
A(f"v_lshrrev_b32 v{vT+2}, 3, v{vT}"); A(f"v_lshl_add_u32 v{vKl}, v{vT+2}, 8, v{vKl}")
A(f"v_lshl_add_u32 v{vKl}, v{vT+1}, 4, v{vKl}")
A(f"v_bfe_u32 v{vT+2}, v0, 2, 3"); A(f"v_mul_u32_u24 v{vVl}, {PIECE}, v{vT+2}")
A(f"v_lshrrev_b32 v{vT+2}, 5, v0"); A(f"v_lshl_add_u32 v{vVl}, v{vT+2}, 8, v{vVl}")
A(f"v_and_b32 v{vT+2}, 3, v0"); A(f"v_lshl_add_u32 v{vVl}, v{vT+2}, 3, v{vVl}")
A(f"v_add_u32 v{vVl}, {8*PIECE}, v{vVl}")
A(f"v_and_b32 v{vT+2}, 3, v{vT}"); A(f"v_mul_u32_u24 v{vQ}, {PIECE}, v{vT+2}")
A(f"v_lshrrev_b32 v{vT+3}, 2, v{vT}"); A(f"v_lshl_add_u32 v{vQ}, v{vT+3}, 8, v{vQ}")
A(f"v_lshl_add_u32 v{vQ}, v{vT+1}, 4, v{vQ}")
A(f"v_add_u32 v{vQ}, s{sWpart}, v{vQ}")
A(f"v_lshl_add_u32 v{vT+2}, v{vT+2}, 2, v{vT+3}"); A(f"v_mul_u32_u24 v{vOw}, 272, v{vT+2}")
A(f"v_lshl_add_u32 v{vOw}, v{vT+1}, 3, v{vOw}")
A(f"s_mul_i32 s{sT}, s{sWV}, {STGW}"); A(f"s_add_u32 s{sT}, s{sT}, {STG}")
A(f"v_add_u32 v{vOw}, s{sT}, v{vOw}")
A(f"v_mul_u32_u24 v{vOr}, 272, v{vT+1}"); A(f"v_lshl_add_u32 v{vOr}, v{vT}, 4, v{vOr}")
A(f"v_add_u32 v{vOr}, s{sT}, v{vOr}")
A(f"v_mov_b32 v{vT}, 0x3f803f80")
for j in range(4): A(f"v_accvgpr_write_b32 a{aZ+j}, 0")
for j in range(4): A(f"v_accvgpr_write_b32 a{aONE+j}, v{vT}")
A("s_nop 1")
zero_acc()
head_prologue(0, 0)
L("L_head")
stamp()
tile_step(0, 0, head_start=True)
tile_step(0, 1, head_start=True)
A("s_branch L_enter")
out.append(".p2align 6")
L("L_loop")
for par in range(2):
    tile_sync(24)
    if a.stamps > 1: stamp()
    for k in range(6):
        if par == 0 and k == 2: L("L_enter")
        tile_step(par, k)
A("s_cbranch_scc1 L_loop")
stamp()
epilogue()
stamp()
A(f"s_sub_u32 s{sLeft}, s{sLeft}, 1")
A(f"s_cmp_eq_u32 s{sLeft}, 0")
A("s_cbranch_scc1 L_end")
C("---- switch to the second head (its Q, KV0, KV1 are already requested)")
zero_acc()
A(f"s_mov_b32 s{sQoff}, s{sQoffN}"); A(f"s_mov_b32 s{sKVoff}, s{sKVoffN}")
A(f"s_mov_b32 s{sNextSzQ}, 0"); A(f"s_mov_b32 s{sNextSzKV}, 0")
A(f"s_mov_b32 s{sBit}, 2")
head_prologue(22 % NS, 24)
A("s_branch L_head")
L("L_end")
A(f"s_cmp_lg_u32 s{sMode}, 0")
A("s_cbranch_scc1 L_pend")
C("---- combine the per-wave 'row sum left the safe range' flags of the workgroup")
A(f"s_lshl_b32 s{sT}, s{sWV}, 2"); A(f"s_add_u32 s{sT}, s{sT}, {FLAGS}")
A(f"v_mov_b32 v{vT}, s{sT}"); A(f"v_mov_b32 v{vT+1}, s{sFlag}")
A(f"ds_write_b32 v{vT}, v{vT+1}")
A(f"v_mov_b32 v{vT}, {FLAGS}")
A("s_waitcnt lgkmcnt(0)"); A("s_barrier")
A(f"ds_read_b128 {vr(vT+2,4)}, v{vT}")
A("s_waitcnt lgkmcnt(0)")
A(f"v_or_b32 v{vT+2}, v{vT+2}, v{vT+3}"); A(f"v_or3_b32 v{vT+2}, v{vT+2}, v{vT+4}, v{vT+5}")
A("s_nop 0")
A(f"v_readfirstlane_b32 s{sPend}, v{vT+2}")
A(f"s_mov_b32 s{sMode}, 1")
A("s_nop 2")
L("L_pend")
A(f"s_cmp_eq_u32 s{sPend}, 0")
A("s_cbranch_scc1 L_done")
C("---- rare path: redo a head with the true row maximum")
A(f"s_bitcmp1_b32 s{sPend}, 0")
A(f"s_cselect_b32 s{sCur}, s{sHA}, s{sHB}")
A(f"s_cselect_b32 s{sT}, 2, 0")
A(f"s_and_b32 s{sPend}, s{sPend}, s{sT}")
A(f"s_mov_b32 s{sLeft}, 1"); A(f"s_mov_b32 s{sNextSzQ}, 0"); A(f"s_mov_b32 s{sNextSzKV}, 0")
A("s_waitcnt vmcnt(0) lgkmcnt(0)"); A("s_barrier")
head_offsets(sCur, sQoff, sKVoff)
A(f"s_mov_b32 s{sT2}, s{sQoff}")
for k in range(6):
    for p in range(4):
        A(f"s_add_u32 m0, s{sWpart}, {k*SLOT + 32*p}")
        A("s_nop 0")
        A(dma(SRD_Q, sT2, p))
    A(f"s_add_u32 s{sT2}, s{sT2}, 4096")
for j in range(6): A(f"v_mov_b32 v{vM+j}, 0xff800000")
A("s_waitcnt vmcnt(0)")
for k in range(6):
    A(f"v_add_u32 v{vT}, {k*SLOT}, v{vQ}")
    for ks in range(4):
        A(f"ds_read_b128 {ar(aQ + 16*k + 4*ks, 4)}, v{vT} offset:{64*ks}")
    A("s_waitcnt lgkmcnt(0)")
A(f"v_add_u32 v{vK}, {6*SLOT}, v{vKl}")
A(f"s_mov_b32 s{sT2}, s{sKVoff}"); A(f"s_mov_b32 s{sIt}, 0")
L("L_maxloop")
for p in range(4):
    A(f"s_add_u32 m0, s{sWpart}, {6*SLOT + 32*p}")
    A("s_nop 0")
    A(dma(SRD_KV, sT2, p))
A(f"s_add_u32 s{sT2}, s{sT2}, 8192")
A("s_waitcnt vmcnt(0)"); A("s_barrier")
for n in range(8): A(k_read(0, n))
A("s_waitcnt lgkmcnt(0)"); A("s_barrier")
for qt in range(6):
    for m in qk_mfmas(qt, 0, 0): A(m)
    A("s_nop 7")
    for j in range(4):
        A(f"v_max3_f32 v{vM+qt}, v{vM+qt}, v{vS+2*j}, v{vS+2*j+1}")
    A("s_nop 1")
A(f"s_add_u32 s{sIt}, s{sIt}, 1"); A(f"s_cmp_lt_u32 s{sIt}, 16"); A("s_cbranch_scc1 L_maxloop")
for qt in range(6):
    m = vM + qt
    A(f"v_mov_b32 v{vT}, v{m}"); A("s_nop 1")
    A(f"v_permlane32_swap_b32 v{vT}, v{m}"); A("s_nop 1")
    A(f"v_max_f32 v{m}, v{m}, v{vT}")
    A(f"v_mov_b32 v{vT}, v{m}"); A("s_nop 1")
    A(f"v_permlane16_swap_b32 v{vT}, v{m}"); A("s_nop 1")
    A(f"v_max_f32 v{m}, v{m}, v{vT}")
    A(f"v_mul_f32 v{m}, s{sC}, v{m}")
    A(f"v_sub_f32 v{m}, 0, v{m}")
A("s_branch L_start")
L("L_done")
if a.stamps:
    A("s_waitcnt vmcnt(0)")
    stamp()
    A(f"v_lshlrev_b32 v{vT}, 3, v0"); A(f"s_lshl_b32 s{sT}, s2, 2"); A(f"s_add_u32 s{sT}, s{sT}, s{sWV}"); A(f"s_lshl_b32 s{sT}, s{sT}, 9")
    A(f"buffer_store_dwordx2 {vr(vStamp,2)}, v{vT}, {sreg(SRD_W,4)}, s{sT} offen")
L("L_exit")
A("s_endpgm")
out.append('.section .rodata,"a"'); out.append(".p2align 6"); out.append(f".amdhsa_kernel {NAME}")
out.append("""  .amdhsa_next_free_vgpr 512
  .amdhsa_next_free_sgpr 102
  .amdhsa_accum_offset 256
  .amdhsa_group_segment_fixed_size 0
  .amdhsa_kernarg_size 48
  .amdhsa_user_sgpr_count 2
  .amdhsa_user_sgpr_kernarg_segment_ptr 1
  .amdhsa_system_sgpr_workgroup_id_x 1
  .amdhsa_float_denorm_mode_32 3""")
out.append(".end_amdhsa_kernel")
print("\n".join(out))
```

```python
import sys, argparse, struct
ap = argparse.ArgumentParser()
ap.add_argument("--lp", default="nt")
ap.add_argument("--sp", default="sc1")
ap.add_argument("--hmap", type=int, default=1)
ap.add_argument("--stamps", type=int, default=0)
ap.add_argument("--force_redo", type=int, default=0)
ap.add_argument("--late", type=int, default=0)
ap.add_argument("--abl", default="")
a = ap.parse_args()
ABL = set(a.abl.split(","))
LP = a.lp.replace("+", " ").replace("-", "")
SP = a.sp.replace("+", " ").replace("-", "")

NAME = "standalone__mha_softmax__near_ridge_kernel"
PIECE = 1056
SLOT = 16 * PIECE
NS = 4
RING = NS * SLOT
QP = 1088
REGW = 21 * QP
REG = RING
FLAGS = REG + 4 * REGW
LDS = FLAGS + 64
assert LDS <= 163840
QBYTES = 16 * 32 * 384 * 128 * 2
KBYTES = 16 * 32 * 512 * 128 * 2
CSCALE = struct.unpack("<I", struct.pack("<f", 1.4426950408889634 * 128 ** -0.5))[0]

out = []
def A(s): out.append("    " + s)
def L(s): out.append(s + ":")
def C(s): out.append("    ; " + s)

sWV = 3
sQp, sOp = 4, 10
SRD_Q, SRD_KV, SRD_O, SRD_X = 16, 20, 24, 28
sC = 32
sPoff = 33
sR, sW, sD, sT = 35, 36, 37, 38
sWpart = 39
sIt = 40
sCur = 41
sNextSzKV = 44
sKVoffN = 46
sKVoff = 48
sXoff, sXm = 42, 43
sReg = 45
sXlim = 47
sBad = 50
sFlag, sBit, sPend, sMode = 52, 53, 54, 55
sHA, sHB = 56, 57
sLeft = 58
sT2 = 59
sLo, sHi = 60, 61
sCm = 62
SRD_W = 64
sSt = 68
vDMA, vK, vV, vQ, vOw, vOr, vKl, vVl, vQd = 1, 2, 3, 4, 5, 6, 7, 8, 9
vT = 10
vM = 16
vStamp = 22
vS = 24
vQ5 = 48
vO = 64
aQ, aK, aV, aL, aONE, aZ = 0, 96, 160, 224, 248, 252
aE = aQ + 80

def vr(b, n): return f"v[{b}:{b+n-1}]"
def ar(b, n): return f"a[{b}:{b+n-1}]"
def sreg(b, n): return f"s[{b}:{b+n-1}]"
def Sbuf(u): return vS + 8 * (u % 3)
def Oreg(qt, dt): return vO + 32 * qt + 4 * dt
def Qreg(hd, qt, ks):
    return vr(vQ5 + 4 * ks, 4) if (hd == 1 and qt == 5) else ar(aQ + 16 * qt + 4 * ks, 4)

MF = "v_mfma_f32_16x16x32_bf16"
def qk_mfmas(hd, qt, kpar, u):
    r = []
    for kt in range(2):
        d = vr(Sbuf(u) + 4 * kt, 4)
        for ks in range(4):
            r.append(f"{MF} {d}, {ar(aK + 32*kpar + 16*kt + 4*ks, 4)}, {Qreg(hd, qt, ks)}, {'0' if ks == 0 else d}")
    return r
def pv_mfmas(qt, vpar, u):
    r = []
    p = vr(Sbuf(u), 4)
    for dt in range(8):
        d = vr(Oreg(qt, dt), 4)
        r.append(f"{MF} {d}, {ar(aV + 32*vpar + 4*dt, 4)}, {p}, {d}")
    d = ar(aL + 4 * qt, 4)
    r.append(f"{MF} {d}, {ar(aONE, 4)}, {p}, {d}")
    return r
def sm_f(u, qt, j): return f"v_fma_f32 v{Sbuf(u)+j}, v{Sbuf(u)+j}, s{sC}, v{vM+qt}"
def sm_e(u, j): return f"v_exp_f32 v{Sbuf(u)+j}, v{Sbuf(u)+j}"
def sm_c(u, k): return f"v_cvt_pk_bf16_f32 v{Sbuf(u)+k}, v{Sbuf(u)+2*k}, v{Sbuf(u)+2*k+1}"
def k_read(kpar, n):
    kt, ks = n // 4, n % 4
    return f"ds_read_b128 {ar(aK + 32*kpar + 16*kt + 4*ks, 4)}, v{vK} offset:{kt*512 + ks*64}"
def v_read(vpar, n):
    dt, kt = n // 2, n % 2
    return f"ds_read_b64_tr_b16 {ar(aV + 32*vpar + 4*dt + 2*kt, 2)}, v{vV} offset:{kt*512 + dt*32}"
def q_read(qt, ks):
    return f"ds_read_b128 {ar(aQ + 16*qt + 4*ks, 4)}, v{vQ} offset:{qt*4*QP + 64*ks}"
def dma(srd, soff, piece):
    so = f"s{soff}" if soff is not None else "0"
    return f"buffer_load_dwordx4 v{vDMA}, {sreg(srd,4)}, {so} offen offset:{piece*1024} {LP} lds"
def o_store(reg, soff, off):
    return f"buffer_store_dwordx4 {reg}, v{vDMA}, {sreg(SRD_O,4)}, {soff} offen offset:{off} {SP}"

def stamp():
    if not a.stamps: return
    A(f"s_memtime s[{sSt}:{sSt+1}]"); A(f"s_memrealtime s[{sSt+2}:{sSt+3}]"); A("s_waitcnt lgkmcnt(0)")
    A(f"s_mov_b32 s{sSt+4}, m0"); A(f"s_mov_b32 m0, s{sSt+5}")
    A(f"v_writelane_b32 v{vStamp}, s{sSt}, m0"); A(f"v_writelane_b32 v{vStamp+1}, s{sSt+2}, m0")
    A(f"s_add_u32 s{sSt+5}, s{sSt+5}, 1"); A(f"s_mov_b32 m0, s{sSt+4}")

def emit_step(mf, gaps):
    for i, m in enumerate(mf):
        A(m)
        for x in gaps.get(i, []):
            if "nodma" in ABL and x.startswith("buffer_load"): continue
            A(x)

def softmax_gaps(u, qt, reads, early_reads=False):
    g = {i: [] for i in range(17)}
    if early_reads:
        g[0] = [reads[0], sm_f(u, qt, 0)]
        g[2] = [reads[1], sm_f(u, qt, 1)]
        g[4] = [reads[2], sm_f(u, qt, 2)]
        g[6] = [reads[3], sm_f(u, qt, 3)]
        g[8] = [sm_f(u, qt, 4), sm_f(u, qt, 5)]
        g[10] = [sm_c(u, 0), sm_f(u, qt, 6)]
        g[12] = [sm_c(u, 1), sm_f(u, qt, 7)]
        g[14] = [sm_c(u, 2)]
        g[16] = [sm_c(u, 3)]
    else:
        g[0] = [sm_f(u, qt, 0), sm_f(u, qt, 1)]
        for i, gg in enumerate([2, 6, 10, 14]): g[gg].append(reads[i])
        g[2].append(sm_f(u, qt, 2)); g[4] += [sm_c(u, 0), sm_f(u, qt, 3)]
        g[6].append(sm_f(u, qt, 4)); g[8] += [sm_c(u, 1), sm_f(u, qt, 5)]
        g[10].append(sm_f(u, qt, 6)); g[12] += [sm_c(u, 2), sm_f(u, qt, 7)]
        g[16].append(sm_c(u, 3))
    for j in range(8): g[2 * j + 1].append(sm_e(u, j))
    return g

def head_start(hd):
    reads = [k_read(1, i) for i in range(8)]
    g = {0: [reads[0]], 1: [f"s_add_u32 m0, s{sW}, 0"], 2: [reads[1]], 3: [dma(SRD_KV, sPoff, 0)], 4: [reads[2]], 6: [reads[3]]}
    emit_step(qk_mfmas(hd, 0, 0, 0), g)
    A("s_nop 3")
    u, qt = 0, 0
    g = {0: [sm_f(u, qt, 0), sm_f(u, qt, 1), sm_f(u, qt, 2), sm_f(u, qt, 3)], 1: [reads[4], sm_e(u, 0), sm_e(u, 1)],
         2: [f"s_add_u32 m0, s{sW}, 32", sm_e(u, 2), sm_e(u, 3)], 3: [reads[5], sm_f(u, qt, 4), sm_f(u, qt, 5), sm_f(u, qt, 6), sm_f(u, qt, 7)],
         4: [dma(SRD_KV, sPoff, 1), sm_e(u, 4), sm_e(u, 5)], 5: [reads[6], sm_e(u, 6), sm_e(u, 7)],
         6: [reads[7], sm_c(u, 0), sm_c(u, 1)], 7: [sm_c(u, 2), sm_c(u, 3), "s_nop 4"]}
    emit_step(qk_mfmas(hd, 1, 0, 1), g)

def tile_step(hd, par, k):
    mf = qk_mfmas(hd, k, par, k)
    if k < 2: reads = [k_read(1 - par, 4 * k + i) for i in range(4)]
    else: reads = [v_read(1 - par, 4 * (k - 2) + i) for i in range(4)]
    mf += pv_mfmas((k - 2) % 6, par if k >= 2 else 1 - par, k - 2)
    g = softmax_gaps(k - 1, (k - 1) % 6, reads, early_reads=(k == 5))
    if k < 4:
        g[15].insert(0, f"s_add_u32 m0, s{sW}, {32*k}")
        g[16].insert(0, dma(SRD_KV, sPoff, k))
    if k == 4:
        g[1].insert(0, f"s_add_u32 s{sPoff}, s{sPoff}, 8192")
        g[3].insert(0, f"s_add_u32 s{sW}, s{sR}, s{sWpart}")
        g[5].insert(0, f"s_add_u32 s{sT}, s{sR}, {SLOT}")
        g[7].insert(0, f"s_cmp_eq_u32 s{sT}, {RING}")
        g[9].insert(0, f"s_cselect_b32 s{sT}, 0, s{sT}")
        g[11].insert(0, f"s_sub_u32 s{sD}, s{sT}, s{sR}")
        g[12].insert(0, f"s_mov_b32 s{sR}, s{sT}")
        g[14].append(f"v_add_u32 v{vK}, s{sD}, v{vK}")
    if k == 5:
        g[14].append(f"v_add_u32 v{vV}, s{sD}, v{vV}")
        if par == 1:
            g[1].insert(0, f"s_add_u32 s{sIt}, s{sIt}, 1")
            g[3].insert(0, f"s_cmp_eq_u32 s{sIt}, 6")
            g[5].insert(0, f"s_cselect_b32 s{SRD_KV+2}, s{sNextSzKV}, s{SRD_KV+2}")
            g[7].insert(0, f"s_cselect_b32 s{sPoff}, s{sKVoffN}, s{sPoff}")
    extra = (k == 4) or (k == 5 and par == 1)
    if hd == 0 and extra:
        g[13].insert(0, f"s_min_u32 m0, s{sXm}, s{sXlim}")
        g[15].insert(0, f"s_add_u32 s{sXm}, s{sXm}, {QP}")
        g[16].insert(0, dma(SRD_X, sXoff, 0))
        g[16].append(f"s_add_u32 s{sXoff}, s{sXoff}, 1024")
    if hd == 1:
        if par == 0 and k == 4: g[16].insert(0, o_store(ar(aE + 8, 4), f"s{sXoff}", 0))
        if par == 1 and k == 4: g[16].insert(0, o_store(ar(aE, 4), f"s{sXoff}", 1024))
        if par == 1 and k == 5:
            g[16].insert(0, o_store(ar(aE + 4, 4), f"s{sXoff}", 2048))
            g[16].append(f"s_add_u32 s{sXoff}, s{sXoff}, 3072")
        if par == 0 and k == 2: g[14].append(f"ds_read_b128 {ar(aE, 4)}, v{vOr} offset:{QP}")
        if par == 0 and k == 3: g[14].append(f"ds_read_b128 {ar(aE + 4, 4)}, v{vOr} offset:{2*QP}")
        if par == 1 and k == 2: g[14].append(f"ds_read_b128 {ar(aE + 8, 4)}, v{vOr} offset:{3*QP}")
        if par == 1 and k == 3: g[14].append(f"v_add_u32 v{vOr}, {3*QP}, v{vOr}")
    if k == 5 and par == 1:
        g[16].append(f"s_cmp_lt_u32 s{sIt}, 8")
    emit_step(mf, g)

def tile_sync(n):
    A(f"s_waitcnt vmcnt({n}) lgkmcnt(0)")
    A("s_barrier")

def main_loop(hd):
    A(f"s_branch L_enter{hd}")
    out.append(".p2align 6")
    L(f"L_loop{hd}")
    for par in range(2):
        tile_sync(13 if par == 0 else 12)
        if a.stamps > 1: stamp()
        for k in range(6):
            if par == 0 and k == 2: L(f"L_enter{hd}")
            tile_step(hd, par, k)
    A(f"s_cbranch_scc1 L_loop{hd}")

def zero_o(qt):
    z = ar(aZ, 4)
    return [f"v_mfma_f32_32x32x16_bf16 {vr(vO + 32*qt + 16*i, 16)}, {z}, {z}, 0" for i in range(2)] + [f"{MF} {ar(aL + 4*qt, 4)}, {z}, {z}, 0"]

def window(srd, ptr, hreg, size):
    A(f"s_mul_i32 s{sT}, s{hreg}, 98304")
    A(f"s_mul_i32 s{sT2}, s{sWV}, 24576")
    A(f"s_add_u32 s{sT}, s{sT}, s{sT2}")
    A(f"s_add_u32 s{srd}, s{ptr}, s{sT}")
    A(f"s_addc_u32 s{srd+1}, s{ptr+1}, 0")
    A(f"s_mov_b32 s{srd+2}, {size}")

def kv_offset(hreg, kv):
    A(f"s_lshl_b32 s{kv}, s{hreg}, 17")
    A(f"s_and_b32 s{sT}, s{sWV}, 1")
    A(f"s_lshl_b32 s{sT}, s{sT}, 12")
    A(f"s_add_u32 s{kv}, s{kv}, s{sT}")

def kv_slot(slot, tile):
    A(f"s_add_u32 s{sT2}, s{sKVoff}, {tile*8192}")
    for p in range(4):
        A(f"s_add_u32 m0, s{sWpart}, {slot*SLOT + 32*p}")
        A("s_nop 0")
        A(dma(SRD_KV, sT2, p))

def q_tiles():
    for k in range(5):
        A(f"s_mov_b32 s{sT2}, {4096*k}")
        for p in range(4):
            A(f"s_add_u32 m0, s{sReg}, {4*k*QP + (QP-1024)*p}")
            A("s_nop 0")
            A(dma(SRD_Q, sT2, p))
    for ks in range(4):
        A(f"buffer_load_dwordx4 {ar(aQ + 80 + 4*ks, 4)}, v{vQd}, {sreg(SRD_Q,4)}, 0 offen offset:{64*ks} {LP}")

def drain(extra):
    u = 5
    mf = pv_mfmas(4, 1, 4) + pv_mfmas(5, 1, 5)
    g = {0: [sm_f(u, 5, 0), sm_f(u, 5, 1), sm_f(u, 5, 2), sm_f(u, 5, 3)], 1: [sm_e(u, 0), sm_e(u, 1)], 2: [sm_e(u, 2), sm_e(u, 3)],
         3: [sm_f(u, 5, 4), sm_f(u, 5, 5), sm_f(u, 5, 6), sm_f(u, 5, 7)], 4: [sm_e(u, 4), sm_e(u, 5)], 5: [sm_e(u, 6), sm_e(u, 7)],
         6: [sm_c(u, 0), sm_c(u, 1)], 7: [sm_c(u, 2), sm_c(u, 3)], 8: ["s_nop 0"]}
    extra = list(extra)
    for i in range(8, 18):
        g.setdefault(i, [])
        for _ in range(2):
            if extra: g[i].insert(0, extra.pop(0))
    assert not extra
    emit_step(mf, g)

def norm_tile(qt, woff, mid=()):
    A(f"v_accvgpr_read_b32 v{vT+2}, a{aL + 4*qt}")
    A("s_nop 0")
    A(f"v_rcp_f32 v{vT}, v{vT+2}")
    A(f"v_cmp_nle_f32 vcc, s{sLo}, v{vT+2}")
    A(f"v_cmp_nge_f32 {sreg(sCm,2)}, s{sHi}, v{vT+2}")
    for dt in range(8):
        o = Oreg(qt, dt)
        A(f"v_pk_mul_f32 {vr(o,2)}, {vr(o,2)}, {vr(vT,2)} op_sel_hi:[1,0]")
        A(f"v_pk_mul_f32 {vr(o+2,2)}, {vr(o+2,2)}, {vr(vT,2)} op_sel_hi:[1,0]")
    A(f"s_or_b64 {sreg(sBad,2)}, {sreg(sBad,2)}, vcc")
    A(f"s_or_b64 {sreg(sBad,2)}, {sreg(sBad,2)}, {sreg(sCm,2)}")
    mid = list(mid)
    for dt in range(8):
        o = Oreg(qt, dt)
        if mid and dt % 2 == 0: A(mid.pop(0))
        A(f"v_cvt_pk_bf16_f32 v{o}, v{o}, v{o+1}")
        A(f"v_cvt_pk_bf16_f32 v{o+1}, v{o+2}, v{o+3}")
        A(f"ds_write_b64 v{vOw}, {vr(o,2)} offset:{woff + 32*dt}")
    for x in mid: A(x)

def flag_update():
    A(f"s_cmp_lg_u64 {sreg(sBad,2)}, 0")
    A(f"s_cselect_b32 s{sT}, s{sBit}, 0")
    if a.abl: A(f"s_mov_b32 s{sT}, 0")
    A(f"s_or_b32 s{sFlag}, s{sFlag}, s{sT}")
    A(f"s_mov_b64 {sreg(sBad,2)}, 0")

def readback(base):
    for j in range(4):
        A(f"ds_read_b128 {ar(base + 4*j, 4)}, v{vOr} offset:{QP*j}")

hdr = open("standalone__mha_softmax__near_ridge.s.ref").read().split("; Override launch")[0]
out.append(hdr.rstrip())
out.append(f"; @launch grid=(256,1,1) block=(256,1,1) lds={LDS}")
out.append('.amdgcn_target "amdgcn-amd-amdhsa--gfx950"')
out.append(".text"); out.append(f".globl {NAME}"); out.append(".p2align 8"); out.append(f".type {NAME},@function")
L(NAME)
A("s_cmp_ge_u32 s2, 256"); A("s_cbranch_scc1 L_exit")
A("s_load_dwordx8 s[4:11], s[0:1], 0")
if a.stamps:
    A(f"s_load_dwordx2 s[{SRD_W}:{SRD_W+1}], s[0:1], 40")
    A(f"s_mov_b32 s{sSt+5}, 0")
A(f"v_lshrrev_b32 v{vT}, 6, v0")
A(f"v_and_b32 v0, 63, v0")
A(f"v_readfirstlane_b32 s{sWV}, v{vT}")
A(f"v_lshlrev_b32 v{vDMA}, 4, v0")
A(f"v_and_b32 v{vT}, 3, v0"); A(f"v_bfe_u32 v{vT+1}, v0, 2, 2"); A(f"v_lshl_add_u32 v{vT}, v{vT}, 2, v{vT+1}")
A(f"v_lshrrev_b32 v{vT+1}, 4, v0"); A(f"v_lshlrev_b32 v{vT+1}, 4, v{vT+1}"); A(f"v_lshl_add_u32 v{vQd}, v{vT}, 8, v{vT+1}")
A(f"v_add_u32 v{vQd}, 20480, v{vQd}")
if a.hmap == 0:
    A(f"s_lshl_b32 s{sHA}, s2, 1"); A(f"s_add_u32 s{sHB}, s{sHA}, 1")
else:
    A(f"s_mov_b32 s{sHA}, s2"); A(f"s_add_u32 s{sHB}, s2, 256")
A(f"s_mul_i32 s{sWpart}, s{sWV}, {4*PIECE}")
A(f"s_mul_i32 s{sReg}, s{sWV}, {REGW}"); A(f"s_add_u32 s{sReg}, s{sReg}, {REG}")
A(f"s_mov_b32 s{sCur}, s{sHA}")
A(f"s_mov_b32 s{sLeft}, 2")
for r in (SRD_Q, SRD_KV, SRD_O, SRD_X): A(f"s_mov_b32 s{r+3}, 0x20000")
A(f"s_cmp_lt_u32 s{sWV}, 2")
A("s_waitcnt lgkmcnt(0)")
A(f"s_cselect_b64 {sreg(SRD_KV,2)}, s[6:7], s[8:9]")
if a.stamps:
    A(f"s_mov_b32 s{SRD_W+2}, 268435456"); A(f"s_mov_b32 s{SRD_W+3}, 0x20000")
stamp()
A(f"s_mov_b32 s{sMode}, 0")
for j in range(6): A(f"v_mov_b32 v{vM+j}, 0")
L("L_start")
C("---- start of a stream: request KV0, Q, KV1.. of the current head")
A(f"s_mov_b32 s{SRD_KV+2}, {KBYTES}")
kv_offset(sCur, sKVoff)
kv_slot(0, 0)
window(SRD_Q, sQp, sCur, 24576)
q_tiles()
kv_slot(1, 1)
if not a.late:
    kv_slot(2, 2); kv_slot(3, 3)
window(SRD_O, sOp, sCur, 24576)
window(SRD_X, sQp, sHB, 24576)
kv_offset(sHB, sKVoffN)
A(f"s_cmp_eq_u32 s{sMode}, 0")
A(f"s_cselect_b32 s{SRD_X+2}, s{SRD_X+2}, 0")
A(f"s_cselect_b32 s{sNextSzKV}, s{SRD_KV+2}, 0")
A("s_cbranch_scc0 L_skipinit")
A(f"s_mov_b32 s{sFlag}, {a.force_redo}"); A(f"s_mov_b32 s{sBit}, 1"); A(f"s_mov_b32 s{sPend}, 0")
L("L_skipinit")
A(f"s_mov_b64 {sreg(sBad,2)}, 0")
A(f"s_mov_b32 s{sC}, 0x{CSCALE:08x}")
A(f"s_mov_b32 s{sLo}, 0x30800000")
A(f"s_mov_b32 s{sHi}, 0x4e800000")
C("---- per-lane LDS addresses")
A(f"v_and_b32 v{vT}, 15, v0")
A(f"v_lshrrev_b32 v{vT+1}, 4, v0")
A(f"v_and_b32 v{vT+2}, 7, v{vT}"); A(f"v_mul_u32_u24 v{vKl}, {PIECE}, v{vT+2}")
A(f"v_lshrrev_b32 v{vT+2}, 3, v{vT}"); A(f"v_lshl_add_u32 v{vKl}, v{vT+2}, 8, v{vKl}")
A(f"v_lshl_add_u32 v{vKl}, v{vT+1}, 4, v{vKl}")
A(f"v_bfe_u32 v{vT+2}, v0, 2, 3"); A(f"v_mul_u32_u24 v{vVl}, {PIECE}, v{vT+2}")
A(f"v_lshrrev_b32 v{vT+2}, 5, v0"); A(f"v_lshl_add_u32 v{vVl}, v{vT+2}, 8, v{vVl}")
A(f"v_and_b32 v{vT+2}, 3, v0"); A(f"v_lshl_add_u32 v{vVl}, v{vT+2}, 3, v{vVl}")
A(f"v_add_u32 v{vVl}, {8*PIECE}, v{vVl}")
A(f"v_and_b32 v{vT+2}, 3, v{vT}"); A(f"v_mul_u32_u24 v{vQ}, {QP}, v{vT+2}")
A(f"v_lshrrev_b32 v{vT+3}, 2, v{vT}"); A(f"v_lshl_add_u32 v{vQ}, v{vT+3}, 8, v{vQ}")
A(f"v_lshl_add_u32 v{vQ}, v{vT+1}, 4, v{vQ}")
A(f"v_add_u32 v{vQ}, s{sReg}, v{vQ}")
A(f"v_lshl_add_u32 v{vT+2}, v{vT+2}, 2, v{vT+3}"); A(f"v_mul_u32_u24 v{vOw}, 272, v{vT+2}")
A(f"v_lshl_add_u32 v{vOw}, v{vT+1}, 3, v{vOw}")
A(f"v_add_u32 v{vOw}, s{sReg}, v{vOw}")
A(f"v_mul_u32_u24 v{vOr}, 272, v{vT+1}"); A(f"v_lshl_add_u32 v{vOr}, v{vT}, 4, v{vOr}")
A(f"v_add_u32 v{vOr}, s{sReg}, v{vOr}")
A(f"v_mov_b32 v{vT}, 0x3f803f80")
for j in range(4): A(f"v_accvgpr_write_b32 a{aZ+j}, 0")
for j in range(4): A(f"v_accvgpr_write_b32 a{aONE+j}, v{vT}")
A(f"v_mov_b32 v{vK}, v{vKl}"); A(f"v_mov_b32 v{vV}, v{vVl}")
for qt in range(6):
    for m in zero_o(qt): A(m)
C("---- KV0 and Q -> registers")
post = 0 if a.late else 8
A(f"s_waitcnt vmcnt({28 + post})")
A("s_barrier")
for n in range(8): A(k_read(0, n))
for n in range(16): A(v_read(0, n))
for k in range(5):
    A(f"s_waitcnt vmcnt({24 - 4*k + post})")
    for ks in range(4): A(q_read(k, ks))
    if a.late == k + 1:
        kv_slot(2, 2); kv_slot(3, 3); post = 8
A(f"v_add_u32 v{vK}, {SLOT}, v{vKl}")
A(f"v_add_u32 v{vV}, {SLOT}, v{vVl}")
A(f"s_mov_b32 s{sR}, {SLOT}")
A(f"s_mov_b32 s{sW}, s{sWpart}")
A(f"s_add_u32 s{sPoff}, s{sKVoff}, {4*8192}")
A(f"s_mov_b32 s{sIt}, 0")
A(f"s_mov_b32 s{sXoff}, 0"); A(f"s_mov_b32 s{sXm}, s{sReg}"); A(f"s_add_u32 s{sXlim}, s{sReg}, {20*QP}")
tile_sync(8)
C("---- q-tile 5 of the next head goes straight to registers; then its window shrinks to tiles 0..4")
for ks in range(4):
    A(f"buffer_load_dwordx4 {vr(vQ5 + 4*ks, 4)}, v{vQd}, {sreg(SRD_X,4)}, 0 offen offset:{64*ks} {LP}")
A(f"s_min_u32 s{SRD_X+2}, s{SRD_X+2}, 20480")
stamp()
head_start(0)
main_loop(0)
stamp()
A(f"s_cmp_lg_u32 s{sMode}, 0")
A("s_cbranch_scc1 L_final")
C("---- head boundary: finish head A, park its output in LDS, start head B")
A("s_waitcnt vmcnt(11)")
drain([q_read(k, ks) for k in range(5) for ks in range(4)])
norm_tile(0, 0)
readback(aE)
for qt in range(1, 6):
    mid = zero_o(qt - 1)
    if qt == 1:
        mid = mid + ["s_waitcnt lgkmcnt(6)"] + [o_store(ar(aE + 4*j, 4), "0", 1024*j) for j in range(4)]
    norm_tile(qt, (qt - 1) * 4 * QP, mid)
A(f"ds_read_b128 {ar(aE + 8, 4)}, v{vOr}")
for m in zero_o(5): A(m)
flag_update()
A(f"s_mov_b32 s{sBit}, 2"); A(f"s_mov_b32 s{sNextSzKV}, 0"); A(f"s_mov_b32 s{sIt}, 0")
A(f"s_mov_b32 s{sXoff}, 4096")
stamp()
tile_sync(13)
stamp()
head_start(1)
main_loop(1)
stamp()
A(f"v_subrev_u32 v{vOr}, {24*QP}, v{vOr}")
window(SRD_O, sOp, sHB, 24576)
L("L_final")
C("---- last head of the stream: drain, normalise, transpose through LDS, store")
drain([])
for qt in range(6):
    mid = []
    if qt > 0:
        A(f"s_mov_b32 s{sT}, {4096*(qt-1)}")
        mid = ["s_waitcnt lgkmcnt(0)"] + [o_store(ar(aE + 4*j, 4), f"s{sT}", 1024*j) for j in range(4)]
    norm_tile(qt, 0, mid)
    readback(aE)
A(f"s_mov_b32 s{sT}, {4096*5}")
A("s_waitcnt lgkmcnt(0)")
for j in range(4): A(o_store(ar(aE + 4*j, 4), f"s{sT}", 1024*j))
flag_update()
stamp()
A(f"s_cmp_lg_u32 s{sMode}, 0")
A("s_cbranch_scc1 L_pend")
C("---- combine the per-wave 'row sum left the safe range' flags of the workgroup")
A(f"s_lshl_b32 s{sT}, s{sWV}, 2"); A(f"s_add_u32 s{sT}, s{sT}, {FLAGS}")
A(f"v_mov_b32 v{vT}, s{sT}"); A(f"v_mov_b32 v{vT+1}, s{sFlag}")
A(f"ds_write_b32 v{vT}, v{vT+1}")
A(f"v_mov_b32 v{vT}, {FLAGS}")
A("s_waitcnt lgkmcnt(0)"); A("s_barrier")
A(f"ds_read_b128 {vr(vT+2,4)}, v{vT}")
A("s_waitcnt lgkmcnt(0)")
A(f"v_or_b32 v{vT+2}, v{vT+2}, v{vT+3}"); A(f"v_or3_b32 v{vT+2}, v{vT+2}, v{vT+4}, v{vT+5}")
A("s_nop 0")
A(f"v_readfirstlane_b32 s{sPend}, v{vT+2}")
A(f"s_mov_b32 s{sMode}, 1")
A("s_nop 2")
L("L_pend")
A(f"s_cmp_eq_u32 s{sPend}, 0")
A("s_cbranch_scc1 L_done")
C("---- rare path: redo a head with the true row maximum")
A(f"s_bitcmp1_b32 s{sPend}, 0")
A(f"s_cselect_b32 s{sCur}, s{sHA}, s{sHB}")
A(f"s_cselect_b32 s{sT}, 2, 0")
A(f"s_and_b32 s{sPend}, s{sPend}, s{sT}")
A("s_waitcnt vmcnt(0) lgkmcnt(0)"); A("s_barrier")
A(f"s_mov_b32 s{SRD_KV+2}, {KBYTES}")
kv_offset(sCur, sKVoff)
window(SRD_Q, sQp, sCur, 24576)
q_tiles()
for j in range(6): A(f"v_mov_b32 v{vM+j}, 0xff800000")
A("s_waitcnt vmcnt(0)")
for k in range(5):
    for ks in range(4): A(q_read(k, ks))
    A("s_waitcnt lgkmcnt(0)")
A(f"v_mov_b32 v{vK}, v{vKl}")
A(f"s_mov_b32 s{sIt}, 0")
L("L_maxloop")
kv_slot(0, 0)
A(f"s_add_u32 s{sKVoff}, s{sKVoff}, 8192")
A("s_waitcnt vmcnt(0)"); A("s_barrier")
for n in range(8): A(k_read(0, n))
A("s_waitcnt lgkmcnt(0)"); A("s_barrier")
for qt in range(6):
    for m in qk_mfmas(0, qt, 0, 0): A(m)
    A("s_nop 7")
    for j in range(4):
        A(f"v_max3_f32 v{vM+qt}, v{vM+qt}, v{vS+2*j}, v{vS+2*j+1}")
    A("s_nop 1")
A(f"s_add_u32 s{sIt}, s{sIt}, 1"); A(f"s_cmp_lt_u32 s{sIt}, 16"); A("s_cbranch_scc1 L_maxloop")
for qt in range(6):
    m = vM + qt
    A(f"v_mov_b32 v{vT}, v{m}"); A("s_nop 1")
    A(f"v_permlane32_swap_b32 v{vT}, v{m}"); A("s_nop 1")
    A(f"v_max_f32 v{m}, v{m}, v{vT}")
    A(f"v_mov_b32 v{vT}, v{m}"); A("s_nop 1")
    A(f"v_permlane16_swap_b32 v{vT}, v{m}"); A("s_nop 1")
    A(f"v_max_f32 v{m}, v{m}, v{vT}")
    A(f"v_mul_f32 v{m}, s{sC}, v{m}")
    A(f"v_sub_f32 v{m}, 0, v{m}")
A("s_branch L_start")
L("L_done")
if a.stamps:
    A("s_waitcnt vmcnt(0)")
    stamp()
    A(f"v_lshlrev_b32 v{vT}, 3, v0"); A(f"s_lshl_b32 s{sT}, s2, 2"); A(f"s_add_u32 s{sT}, s{sT}, s{sWV}"); A(f"s_lshl_b32 s{sT}, s{sT}, 9")
    A(f"buffer_store_dwordx2 {vr(vStamp,2)}, v{vT}, {sreg(SRD_W,4)}, s{sT} offen")
L("L_exit")
A("s_endpgm")
out.append('.section .rodata,"a"'); out.append(".p2align 6"); out.append(f".amdhsa_kernel {NAME}")
out.append("""  .amdhsa_next_free_vgpr 512
  .amdhsa_next_free_sgpr 102
  .amdhsa_accum_offset 256
  .amdhsa_group_segment_fixed_size 0
  .amdhsa_kernarg_size 48
  .amdhsa_user_sgpr_count 2
  .amdhsa_user_sgpr_kernarg_segment_ptr 1
  .amdhsa_system_sgpr_workgroup_id_x 1
  .amdhsa_float_denorm_mode_32 3""")
out.append(".end_amdhsa_kernel")
print("\n".join(out))
```

```python
import sys, argparse, struct
ap = argparse.ArgumentParser()
ap.add_argument("--lp", default="nt")
ap.add_argument("--sp", default="")
ap.add_argument("--spa", default=None)
ap.add_argument("--hmap", type=int, default=1)
ap.add_argument("--stamps", type=int, default=0)
ap.add_argument("--force_redo", type=int, default=0)
ap.add_argument("--late", type=int, default=0)
ap.add_argument("--probe", type=int, default=-1)
ap.add_argument("--abl", default="")
a = ap.parse_args()
ABL = set(a.abl.split(","))
LP = a.lp.replace("+", " ").replace("-", "")
SP = a.sp.replace("+", " ").replace("-", "")
SPA = SP if a.spa is None else a.spa.replace("+", " ").replace("-", "")
curSP = [SPA]

NAME = "standalone__mha_softmax__near_ridge_kernel"
PIECE = 1056
SLOT = 16 * PIECE
NS = 4
RING = NS * SLOT
QP = 1088
REGW = 21 * QP
REG = RING
FLAGS = REG + 4 * REGW
LDS = FLAGS + 64
assert LDS <= 163840
QBYTES = 16 * 32 * 384 * 128 * 2
KBYTES = 16 * 32 * 512 * 128 * 2
CSCALE = struct.unpack("<I", struct.pack("<f", 1.4426950408889634 * 128 ** -0.5))[0]

out = []
def A(s): out.append("    " + s)
def L(s): out.append(s + ":")
def C(s): out.append("    ; " + s)

sWV = 3
sQp, sOp = 4, 10
SRD_Q, SRD_KV, SRD_O, SRD_X = 16, 20, 24, 28
sC = 32
sPoff = 33
sR, sW, sD, sT = 35, 36, 37, 38
sWpart = 39
sIt = 40
sCur = 41
sNextSzKV = 44
sKVoffN = 46
sKVoff = 48
sXoff, sXm = 42, 43
sReg = 45
sXlim = 47
sBad = 50
sFlag, sBit, sPend, sMode = 52, 53, 54, 55
sHA, sHB = 56, 57
sLeft = 58
sT2 = 59
sLo, sHi = 60, 61
sCm = 62
SRD_W = 64
sSt = 68
vDMA, vK, vV, vQ, vOw, vOr, vKl, vVl, vQd = 1, 2, 3, 4, 5, 6, 7, 8, 9
vT = 10
vM = 16
vStamp = 22
vS = 24
vQ5 = 48
vO = 64
aQ, aK, aV, aL, aONE, aZ = 0, 96, 160, 224, 248, 252
aE = aQ + 80

def vr(b, n): return f"v[{b}:{b+n-1}]"
def ar(b, n): return f"a[{b}:{b+n-1}]"
def sreg(b, n): return f"s[{b}:{b+n-1}]"
def Sbuf(u): return vS + 8 * (u % 3)
def Oreg(qt, dt): return vO + 32 * qt + 4 * dt
def Qreg(hd, qt, ks):
    return vr(vQ5 + 4 * ks, 4) if (hd == 1 and qt == 5) else ar(aQ + 16 * qt + 4 * ks, 4)

MF = "v_mfma_f32_16x16x32_bf16"
def qk_mfmas(hd, qt, kpar, u):
    r = []
    for kt in range(2):
        d = vr(Sbuf(u) + 4 * kt, 4)
        for ks in range(4):
            r.append(f"{MF} {d}, {ar(aK + 32*kpar + 16*kt + 4*ks, 4)}, {Qreg(hd, qt, ks)}, {'0' if ks == 0 else d}")
    return r
def pv_mfmas(qt, vpar, u):
    r = []
    p = vr(Sbuf(u), 4)
    for dt in range(8):
        d = vr(Oreg(qt, dt), 4)
        r.append(f"{MF} {d}, {ar(aV + 32*vpar + 4*dt, 4)}, {p}, {d}")
    d = ar(aL + 4 * qt, 4)
    r.append(f"{MF} {d}, {ar(aONE, 4)}, {p}, {d}")
    return r
def sm_f(u, qt, j): return f"v_fma_f32 v{Sbuf(u)+j}, v{Sbuf(u)+j}, s{sC}, v{vM+qt}"
def sm_e(u, j): return f"v_exp_f32 v{Sbuf(u)+j}, v{Sbuf(u)+j}"
def sm_c(u, k): return f"v_cvt_pk_bf16_f32 v{Sbuf(u)+k}, v{Sbuf(u)+2*k}, v{Sbuf(u)+2*k+1}"
def k_read(kpar, n):
    kt, ks = n // 4, n % 4
    return f"ds_read_b128 {ar(aK + 32*kpar + 16*kt + 4*ks, 4)}, v{vK} offset:{kt*512 + ks*64}"
def v_read(vpar, n):
    dt, kt = n // 2, n % 2
    return f"ds_read_b64_tr_b16 {ar(aV + 32*vpar + 4*dt + 2*kt, 2)}, v{vV} offset:{kt*512 + dt*32}"
def q_read(qt, ks):
    return f"ds_read_b128 {ar(aQ + 16*qt + 4*ks, 4)}, v{vQ} offset:{qt*4*QP + 64*ks}"
def dma(srd, soff, piece):
    so = f"s{soff}" if soff is not None else "0"
    return f"buffer_load_dwordx4 v{vDMA}, {sreg(srd,4)}, {so} offen offset:{piece*1024} {LP} lds"
def o_store(reg, soff, off):
    return f"buffer_store_dwordx4 {reg}, v{vDMA}, {sreg(SRD_O,4)}, {soff} offen offset:{off} {curSP[0]}"

nst = [0]
def stamp():
    nst[0] += 1
    if a.probe == nst[0] - 1:
        A(f"s_memrealtime s[{sSt+6}:{sSt+7}]"); A("s_waitcnt lgkmcnt(0)")
    if not a.stamps: return
    A(f"s_memtime s[{sSt}:{sSt+1}]"); A(f"s_memrealtime s[{sSt+2}:{sSt+3}]"); A("s_waitcnt lgkmcnt(0)")
    A(f"s_mov_b32 s{sSt+4}, m0"); A(f"s_mov_b32 m0, s{sSt+5}")
    A(f"v_writelane_b32 v{vStamp}, s{sSt}, m0"); A(f"v_writelane_b32 v{vStamp+1}, s{sSt+2}, m0")
    A(f"s_add_u32 s{sSt+5}, s{sSt+5}, 1"); A(f"s_mov_b32 m0, s{sSt+4}")

def emit_step(mf, gaps):
    for i, m in enumerate(mf):
        A(m)
        for x in gaps.get(i, []):
            if "nodma" in ABL and x.startswith("buffer_load"): continue
            A(x)

def softmax_gaps(u, qt, reads, early_reads=False):
    g = {i: [] for i in range(17)}
    if early_reads:
        g[0] = [reads[0], sm_f(u, qt, 0)]
        g[2] = [reads[1], sm_f(u, qt, 1)]
        g[4] = [reads[2], sm_f(u, qt, 2)]
        g[6] = [reads[3], sm_f(u, qt, 3)]
        g[8] = [sm_f(u, qt, 4), sm_f(u, qt, 5)]
        g[10] = [sm_c(u, 0), sm_f(u, qt, 6)]
        g[12] = [sm_c(u, 1), sm_f(u, qt, 7)]
        g[14] = [sm_c(u, 2)]
        g[16] = [sm_c(u, 3)]
    else:
        g[0] = [sm_f(u, qt, 0), sm_f(u, qt, 1)]
        for i, gg in enumerate([2, 6, 10, 14]): g[gg].append(reads[i])
        g[2].append(sm_f(u, qt, 2)); g[4] += [sm_c(u, 0), sm_f(u, qt, 3)]
        g[6].append(sm_f(u, qt, 4)); g[8] += [sm_c(u, 1), sm_f(u, qt, 5)]
        g[10].append(sm_f(u, qt, 6)); g[12] += [sm_c(u, 2), sm_f(u, qt, 7)]
        g[16].append(sm_c(u, 3))
    for j in range(8): g[2 * j + 1].append(sm_e(u, j))
    return g

def head_start(hd):
    reads = [k_read(1, i) for i in range(8)]
    g = {0: [reads[0]], 1: [f"s_add_u32 m0, s{sW}, 0"], 2: [reads[1]], 3: [dma(SRD_KV, sPoff, 0)], 4: [reads[2]], 6: [reads[3]]}
    emit_step(qk_mfmas(hd, 0, 0, 0), g)
    A("s_nop 3")
    u, qt = 0, 0
    g = {0: [sm_f(u, qt, 0), sm_f(u, qt, 1), sm_f(u, qt, 2), sm_f(u, qt, 3)], 1: [reads[4], sm_e(u, 0), sm_e(u, 1)],
         2: [f"s_add_u32 m0, s{sW}, 32", sm_e(u, 2), sm_e(u, 3)], 3: [reads[5], sm_f(u, qt, 4), sm_f(u, qt, 5), sm_f(u, qt, 6), sm_f(u, qt, 7)],
         4: [dma(SRD_KV, sPoff, 1), sm_e(u, 4), sm_e(u, 5)], 5: [reads[6], sm_e(u, 6), sm_e(u, 7)],
         6: [reads[7], sm_c(u, 0), sm_c(u, 1)], 7: [sm_c(u, 2), sm_c(u, 3), "s_nop 4"]}
    emit_step(qk_mfmas(hd, 1, 0, 1), g)

def tile_step(hd, par, k):
    mf = qk_mfmas(hd, k, par, k)
    if k < 2: reads = [k_read(1 - par, 4 * k + i) for i in range(4)]
    else: reads = [v_read(1 - par, 4 * (k - 2) + i) for i in range(4)]
    mf += pv_mfmas((k - 2) % 6, par if k >= 2 else 1 - par, k - 2)
    g = softmax_gaps(k - 1, (k - 1) % 6, reads, early_reads=(k == 5))
    if k < 4:
        g[15].insert(0, f"s_add_u32 m0, s{sW}, {32*k}")
        g[16].insert(0, dma(SRD_KV, sPoff, k))
    if k == 4:
        g[1].insert(0, f"s_add_u32 s{sPoff}, s{sPoff}, 8192")
        g[3].insert(0, f"s_add_u32 s{sW}, s{sR}, s{sWpart}")
        g[5].insert(0, f"s_add_u32 s{sT}, s{sR}, {SLOT}")
        g[7].insert(0, f"s_cmp_eq_u32 s{sT}, {RING}")
        g[9].insert(0, f"s_cselect_b32 s{sT}, 0, s{sT}")
        g[11].insert(0, f"s_sub_u32 s{sD}, s{sT}, s{sR}")
        g[12].insert(0, f"s_mov_b32 s{sR}, s{sT}")
        g[14].append(f"v_add_u32 v{vK}, s{sD}, v{vK}")
    if k == 5:
        g[14].append(f"v_add_u32 v{vV}, s{sD}, v{vV}")
        if par == 1:
            g[1].insert(0, f"s_add_u32 s{sIt}, s{sIt}, 1")
            g[3].insert(0, f"s_cmp_eq_u32 s{sIt}, 6")
            g[5].insert(0, f"s_cselect_b32 s{SRD_KV+2}, s{sNextSzKV}, s{SRD_KV+2}")
            g[7].insert(0, f"s_cselect_b32 s{sPoff}, s{sKVoffN}, s{sPoff}")
    extra = (k == 4) or (k == 5 and par == 1)
    if hd == 0 and extra:
        g[13].insert(0, f"s_min_u32 m0, s{sXm}, s{sXlim}")
        g[15].insert(0, f"s_add_u32 s{sXm}, s{sXm}, {QP}")
        g[16].insert(0, dma(SRD_X, sXoff, 0))
        g[16].append(f"s_add_u32 s{sXoff}, s{sXoff}, 1024")
    if hd == 1:
        if par == 0 and k == 4: g[16].insert(0, o_store(ar(aE + 8, 4), f"s{sXoff}", 0))
        if par == 1 and k == 4: g[16].insert(0, o_store(ar(aE, 4), f"s{sXoff}", 1024))
        if par == 1 and k == 5:
            g[16].insert(0, o_store(ar(aE + 4, 4), f"s{sXoff}", 2048))
            g[16].append(f"s_add_u32 s{sXoff}, s{sXoff}, 3072")
        if par == 0 and k == 2: g[14].append(f"ds_read_b128 {ar(aE, 4)}, v{vOr} offset:{QP}")
        if par == 0 and k == 3: g[14].append(f"ds_read_b128 {ar(aE + 4, 4)}, v{vOr} offset:{2*QP}")
        if par == 1 and k == 2: g[14].append(f"ds_read_b128 {ar(aE + 8, 4)}, v{vOr} offset:{3*QP}")
        if par == 1 and k == 3: g[14].append(f"v_add_u32 v{vOr}, {3*QP}, v{vOr}")
    if k == 5 and par == 1:
        g[16].append(f"s_cmp_lt_u32 s{sIt}, 8")
    emit_step(mf, g)

def tile_sync(n):
    A(f"s_waitcnt vmcnt({n}) lgkmcnt(0)")
    A("s_barrier")

def main_loop(hd):
    A(f"s_branch L_enter{hd}")
    out.append(".p2align 6")
    L(f"L_loop{hd}")
    for par in range(2):
        tile_sync(13 if par == 0 else 12)
        if a.stamps > 1: stamp()
        for k in range(6):
            if par == 0 and k == 2: L(f"L_enter{hd}")
            tile_step(hd, par, k)
    A(f"s_cbranch_scc1 L_loop{hd}")

def zero_o(qt):
    z = ar(aZ, 4)
    return [f"v_mfma_f32_32x32x16_bf16 {vr(vO + 32*qt + 16*i, 16)}, {z}, {z}, 0" for i in range(2)] + [f"{MF} {ar(aL + 4*qt, 4)}, {z}, {z}, 0"]

def window(srd, ptr, hreg, size):
    A(f"s_mul_i32 s{sT}, s{hreg}, 98304")
    A(f"s_mul_i32 s{sT2}, s{sWV}, 24576")
    A(f"s_add_u32 s{sT}, s{sT}, s{sT2}")
    A(f"s_add_u32 s{srd}, s{ptr}, s{sT}")
    A(f"s_addc_u32 s{srd+1}, s{ptr+1}, 0")
    A(f"s_mov_b32 s{srd+2}, {size}")

def kv_offset(hreg, kv):
    A(f"s_lshl_b32 s{kv}, s{hreg}, 17")
    A(f"s_and_b32 s{sT}, s{sWV}, 1")
    A(f"s_lshl_b32 s{sT}, s{sT}, 12")
    A(f"s_add_u32 s{kv}, s{kv}, s{sT}")

def kv_slot(slot, tile):
    A(f"s_add_u32 s{sT2}, s{sKVoff}, {tile*8192}")
    for p in range(4):
        A(f"s_add_u32 m0, s{sWpart}, {slot*SLOT + 32*p}")
        A("s_nop 0")
        A(dma(SRD_KV, sT2, p))

def q_tiles():
    for k in range(5):
        A(f"s_mov_b32 s{sT2}, {4096*k}")
        for p in range(4):
            A(f"s_add_u32 m0, s{sReg}, {4*k*QP + (QP-1024)*p}")
            A("s_nop 0")
            A(dma(SRD_Q, sT2, p))
    for ks in range(4):
        A(f"buffer_load_dwordx4 {ar(aQ + 80 + 4*ks, 4)}, v{vQd}, {sreg(SRD_Q,4)}, 0 offen offset:{64*ks} {LP}")

def drain(extra):
    u = 5
    mf = pv_mfmas(4, 1, 4) + pv_mfmas(5, 1, 5)
    g = {0: [sm_f(u, 5, 0), sm_f(u, 5, 1), sm_f(u, 5, 2), sm_f(u, 5, 3)], 1: [sm_e(u, 0), sm_e(u, 1)], 2: [sm_e(u, 2), sm_e(u, 3)],
         3: [sm_f(u, 5, 4), sm_f(u, 5, 5), sm_f(u, 5, 6), sm_f(u, 5, 7)], 4: [sm_e(u, 4), sm_e(u, 5)], 5: [sm_e(u, 6), sm_e(u, 7)],
         6: [sm_c(u, 0), sm_c(u, 1)], 7: [sm_c(u, 2), sm_c(u, 3)], 8: ["s_nop 0"]}
    extra = list(extra)
    for i in range(8, 18):
        g.setdefault(i, [])
        for _ in range(2):
            if extra: g[i].insert(0, extra.pop(0))
    assert not extra
    emit_step(mf, g)

def norm_tile(qt, woff, mid=()):
    A(f"v_accvgpr_read_b32 v{vT+2}, a{aL + 4*qt}")
    A("s_nop 0")
    A(f"v_rcp_f32 v{vT}, v{vT+2}")
    A(f"v_cmp_nle_f32 vcc, s{sLo}, v{vT+2}")
    A(f"v_cmp_nge_f32 {sreg(sCm,2)}, s{sHi}, v{vT+2}")
    for dt in range(8):
        o = Oreg(qt, dt)
        A(f"v_pk_mul_f32 {vr(o,2)}, {vr(o,2)}, {vr(vT,2)} op_sel_hi:[1,0]")
        A(f"v_pk_mul_f32 {vr(o+2,2)}, {vr(o+2,2)}, {vr(vT,2)} op_sel_hi:[1,0]")
    A(f"s_or_b64 {sreg(sBad,2)}, {sreg(sBad,2)}, vcc")
    A(f"s_or_b64 {sreg(sBad,2)}, {sreg(sBad,2)}, {sreg(sCm,2)}")
    mid = list(mid)
    for dt in range(8):
        o = Oreg(qt, dt)
        if mid and dt % 2 == 0: A(mid.pop(0))
        A(f"v_cvt_pk_bf16_f32 v{o}, v{o}, v{o+1}")
        A(f"v_cvt_pk_bf16_f32 v{o+1}, v{o+2}, v{o+3}")
        A(f"ds_write_b64 v{vOw}, {vr(o,2)} offset:{woff + 32*dt}")
    for x in mid: A(x)

def flag_update():
    A(f"s_cmp_lg_u64 {sreg(sBad,2)}, 0")
    A(f"s_cselect_b32 s{sT}, s{sBit}, 0")
    if a.abl: A(f"s_mov_b32 s{sT}, 0")
    A(f"s_or_b32 s{sFlag}, s{sFlag}, s{sT}")
    A(f"s_mov_b64 {sreg(sBad,2)}, 0")

def readback(base):
    for j in range(4):
        A(f"ds_read_b128 {ar(base + 4*j, 4)}, v{vOr} offset:{QP*j}")

hdr = open("standalone__mha_softmax__near_ridge.s.ref").read().split("; Override launch")[0]
out.append(hdr.rstrip())
out.append(f"; @launch grid=(256,1,1) block=(256,1,1) lds={LDS}")
out.append('.amdgcn_target "amdgcn-amd-amdhsa--gfx950"')
out.append(".text"); out.append(f".globl {NAME}"); out.append(".p2align 8"); out.append(f".type {NAME},@function")
L(NAME)
if a.probe == 100: A(f"s_memrealtime s[{sSt+6}:{sSt+7}]")
A("s_cmp_ge_u32 s2, 256"); A("s_cbranch_scc1 L_exit")
A("s_load_dwordx8 s[4:11], s[0:1], 0")
if a.stamps:
    A(f"s_load_dwordx2 s[{SRD_W}:{SRD_W+1}], s[0:1], 40")
    A(f"s_mov_b32 s{sSt+5}, 0")
A(f"v_lshrrev_b32 v{vT}, 6, v0")
A(f"v_and_b32 v0, 63, v0")
A(f"v_readfirstlane_b32 s{sWV}, v{vT}")
A(f"v_lshlrev_b32 v{vDMA}, 4, v0")
A(f"v_and_b32 v{vT}, 3, v0"); A(f"v_bfe_u32 v{vT+1}, v0, 2, 2"); A(f"v_lshl_add_u32 v{vT}, v{vT}, 2, v{vT+1}")
A(f"v_lshrrev_b32 v{vT+1}, 4, v0"); A(f"v_lshlrev_b32 v{vT+1}, 4, v{vT+1}"); A(f"v_lshl_add_u32 v{vQd}, v{vT}, 8, v{vT+1}")
A(f"v_add_u32 v{vQd}, 20480, v{vQd}")
if a.hmap == 0:
    A(f"s_lshl_b32 s{sHA}, s2, 1"); A(f"s_add_u32 s{sHB}, s{sHA}, 1")
else:
    A(f"s_mov_b32 s{sHA}, s2"); A(f"s_add_u32 s{sHB}, s2, 256")
A(f"s_mul_i32 s{sWpart}, s{sWV}, {4*PIECE}")
A(f"s_mul_i32 s{sReg}, s{sWV}, {REGW}"); A(f"s_add_u32 s{sReg}, s{sReg}, {REG}")
A(f"s_mov_b32 s{sCur}, s{sHA}")
A(f"s_mov_b32 s{sLeft}, 2")
for r in (SRD_Q, SRD_KV, SRD_O, SRD_X): A(f"s_mov_b32 s{r+3}, 0x20000")
A(f"s_cmp_lt_u32 s{sWV}, 2")
A("s_waitcnt lgkmcnt(0)")
A(f"s_cselect_b64 {sreg(SRD_KV,2)}, s[6:7], s[8:9]")
if a.stamps:
    A(f"s_mov_b32 s{SRD_W+2}, 268435456"); A(f"s_mov_b32 s{SRD_W+3}, 0x20000")
stamp()
A(f"s_mov_b32 s{sMode}, 0")
for j in range(6): A(f"v_mov_b32 v{vM+j}, 0")
L("L_start")
C("---- start of a stream: request KV0, Q, KV1.. of the current head")
A(f"s_mov_b32 s{SRD_KV+2}, {KBYTES}")
kv_offset(sCur, sKVoff)
kv_slot(0, 0)
window(SRD_Q, sQp, sCur, 24576)
q_tiles()
kv_slot(1, 1)
if not a.late:
    kv_slot(2, 2); kv_slot(3, 3)
window(SRD_O, sOp, sCur, 24576)
window(SRD_X, sQp, sHB, 24576)
kv_offset(sHB, sKVoffN)
A(f"s_cmp_eq_u32 s{sMode}, 0")
A(f"s_cselect_b32 s{SRD_X+2}, s{SRD_X+2}, 0")
A(f"s_cselect_b32 s{sNextSzKV}, s{SRD_KV+2}, 0")
A("s_cbranch_scc0 L_skipinit")
A(f"s_mov_b32 s{sFlag}, {a.force_redo}"); A(f"s_mov_b32 s{sBit}, 1"); A(f"s_mov_b32 s{sPend}, 0")
L("L_skipinit")
A(f"s_mov_b64 {sreg(sBad,2)}, 0")
A(f"s_mov_b32 s{sC}, 0x{CSCALE:08x}")
A(f"s_mov_b32 s{sLo}, 0x30800000")
A(f"s_mov_b32 s{sHi}, 0x4e800000")
C("---- per-lane LDS addresses")
A(f"v_and_b32 v{vT}, 15, v0")
A(f"v_lshrrev_b32 v{vT+1}, 4, v0")
A(f"v_and_b32 v{vT+2}, 7, v{vT}"); A(f"v_mul_u32_u24 v{vKl}, {PIECE}, v{vT+2}")
A(f"v_lshrrev_b32 v{vT+2}, 3, v{vT}"); A(f"v_lshl_add_u32 v{vKl}, v{vT+2}, 8, v{vKl}")
A(f"v_lshl_add_u32 v{vKl}, v{vT+1}, 4, v{vKl}")
A(f"v_bfe_u32 v{vT+2}, v0, 2, 3"); A(f"v_mul_u32_u24 v{vVl}, {PIECE}, v{vT+2}")
A(f"v_lshrrev_b32 v{vT+2}, 5, v0"); A(f"v_lshl_add_u32 v{vVl}, v{vT+2}, 8, v{vVl}")
A(f"v_and_b32 v{vT+2}, 3, v0"); A(f"v_lshl_add_u32 v{vVl}, v{vT+2}, 3, v{vVl}")
A(f"v_add_u32 v{vVl}, {8*PIECE}, v{vVl}")
A(f"v_and_b32 v{vT+2}, 3, v{vT}"); A(f"v_mul_u32_u24 v{vQ}, {QP}, v{vT+2}")
A(f"v_lshrrev_b32 v{vT+3}, 2, v{vT}"); A(f"v_lshl_add_u32 v{vQ}, v{vT+3}, 8, v{vQ}")
A(f"v_lshl_add_u32 v{vQ}, v{vT+1}, 4, v{vQ}")
A(f"v_add_u32 v{vQ}, s{sReg}, v{vQ}")
A(f"v_lshl_add_u32 v{vT+2}, v{vT+2}, 2, v{vT+3}"); A(f"v_mul_u32_u24 v{vOw}, 272, v{vT+2}")
A(f"v_lshl_add_u32 v{vOw}, v{vT+1}, 3, v{vOw}")
A(f"v_add_u32 v{vOw}, s{sReg}, v{vOw}")
A(f"v_mul_u32_u24 v{vOr}, 272, v{vT+1}"); A(f"v_lshl_add_u32 v{vOr}, v{vT}, 4, v{vOr}")
A(f"v_add_u32 v{vOr}, s{sReg}, v{vOr}")
A(f"v_mov_b32 v{vT}, 0x3f803f80")
for j in range(4): A(f"v_accvgpr_write_b32 a{aZ+j}, 0")
for j in range(4): A(f"v_accvgpr_write_b32 a{aONE+j}, v{vT}")
A(f"v_mov_b32 v{vK}, v{vKl}"); A(f"v_mov_b32 v{vV}, v{vVl}")
for qt in range(6):
    for m in zero_o(qt): A(m)
C("---- KV0 and Q -> registers")
post = 0 if a.late else 8
A(f"s_waitcnt vmcnt({28 + post})")
A("s_barrier")
for n in range(8): A(k_read(0, n))
for n in range(16): A(v_read(0, n))
for k in range(5):
    A(f"s_waitcnt vmcnt({24 - 4*k + post})")
    for ks in range(4): A(q_read(k, ks))
    if a.late == k + 1:
        kv_slot(2, 2); kv_slot(3, 3); post = 8
A(f"v_add_u32 v{vK}, {SLOT}, v{vKl}")
A(f"v_add_u32 v{vV}, {SLOT}, v{vVl}")
A(f"s_mov_b32 s{sR}, {SLOT}")
A(f"s_mov_b32 s{sW}, s{sWpart}")
A(f"s_add_u32 s{sPoff}, s{sKVoff}, {4*8192}")
A(f"s_mov_b32 s{sIt}, 0")
A(f"s_mov_b32 s{sXoff}, 0"); A(f"s_mov_b32 s{sXm}, s{sReg}"); A(f"s_add_u32 s{sXlim}, s{sReg}, {20*QP}")
tile_sync(8)
C("---- q-tile 5 of the next head goes straight to registers; then its window shrinks to tiles 0..4")
for ks in range(4):
    A(f"buffer_load_dwordx4 {vr(vQ5 + 4*ks, 4)}, v{vQd}, {sreg(SRD_X,4)}, 0 offen offset:{64*ks} {LP}")
A(f"s_min_u32 s{SRD_X+2}, s{SRD_X+2}, 20480")
stamp()
head_start(0)
main_loop(0)
stamp()
A(f"s_cmp_lg_u32 s{sMode}, 0")
A("s_cbranch_scc1 L_final")
C("---- head boundary: finish head A, park its output in LDS, start head B")
A("s_waitcnt vmcnt(11)")
drain([q_read(k, ks) for k in range(5) for ks in range(4)])
norm_tile(0, 0)
readback(aE)
for qt in range(1, 6):
    mid = zero_o(qt - 1)
    if qt == 1:
        mid = mid + ["s_waitcnt lgkmcnt(6)"] + [o_store(ar(aE + 4*j, 4), "0", 1024*j) for j in range(4)]
    norm_tile(qt, (qt - 1) * 4 * QP, mid)
A(f"ds_read_b128 {ar(aE + 8, 4)}, v{vOr}")
for m in zero_o(5): A(m)
flag_update()
A(f"s_mov_b32 s{sBit}, 2"); A(f"s_mov_b32 s{sNextSzKV}, 0"); A(f"s_mov_b32 s{sIt}, 0")
A(f"s_mov_b32 s{sXoff}, 4096")
stamp()
tile_sync(13)
stamp()
head_start(1)
main_loop(1)
stamp()
A(f"v_subrev_u32 v{vOr}, {24*QP}, v{vOr}")
window(SRD_O, sOp, sHB, 24576)
L("L_final")
curSP[0] = SP
C("---- last head of the stream: drain, normalise, transpose through LDS, store")
drain([])
for qt in range(6):
    mid = []
    if qt > 0:
        A(f"s_mov_b32 s{sT}, {4096*(qt-1)}")
        mid = ["s_waitcnt lgkmcnt(0)"] + [o_store(ar(aE + 4*j, 4), f"s{sT}", 1024*j) for j in range(4)]
    norm_tile(qt, 0, mid)
    readback(aE)
A(f"s_mov_b32 s{sT}, {4096*5}")
A("s_waitcnt lgkmcnt(0)")
for j in range(4): A(o_store(ar(aE + 4*j, 4), f"s{sT}", 1024*j))
flag_update()
stamp()
A(f"s_cmp_lg_u32 s{sMode}, 0")
A("s_cbranch_scc1 L_pend")
C("---- combine the per-wave 'row sum left the safe range' flags of the workgroup")
A(f"s_lshl_b32 s{sT}, s{sWV}, 2"); A(f"s_add_u32 s{sT}, s{sT}, {FLAGS}")
A(f"v_mov_b32 v{vT}, s{sT}"); A(f"v_mov_b32 v{vT+1}, s{sFlag}")
A(f"ds_write_b32 v{vT}, v{vT+1}")
A(f"v_mov_b32 v{vT}, {FLAGS}")
A("s_waitcnt lgkmcnt(0)"); A("s_barrier")
A(f"ds_read_b128 {vr(vT+2,4)}, v{vT}")
A("s_waitcnt lgkmcnt(0)")
A(f"v_or_b32 v{vT+2}, v{vT+2}, v{vT+3}"); A(f"v_or3_b32 v{vT+2}, v{vT+2}, v{vT+4}, v{vT+5}")
A("s_nop 0")
A(f"v_readfirstlane_b32 s{sPend}, v{vT+2}")
A(f"s_mov_b32 s{sMode}, 1")
A("s_nop 2")
L("L_pend")
A(f"s_cmp_eq_u32 s{sPend}, 0")
A("s_cbranch_scc1 L_done")
C("---- rare path: redo a head with the true row maximum")
A(f"s_bitcmp1_b32 s{sPend}, 0")
A(f"s_cselect_b32 s{sCur}, s{sHA}, s{sHB}")
A(f"s_cselect_b32 s{sT}, 2, 0")
A(f"s_and_b32 s{sPend}, s{sPend}, s{sT}")
A("s_waitcnt vmcnt(0) lgkmcnt(0)"); A("s_barrier")
A(f"s_mov_b32 s{SRD_KV+2}, {KBYTES}")
kv_offset(sCur, sKVoff)
window(SRD_Q, sQp, sCur, 24576)
q_tiles()
for j in range(6): A(f"v_mov_b32 v{vM+j}, 0xff800000")
A("s_waitcnt vmcnt(0)")
for k in range(5):
    for ks in range(4): A(q_read(k, ks))
    A("s_waitcnt lgkmcnt(0)")
A(f"v_mov_b32 v{vK}, v{vKl}")
A(f"s_mov_b32 s{sIt}, 0")
L("L_maxloop")
kv_slot(0, 0)
A(f"s_add_u32 s{sKVoff}, s{sKVoff}, 8192")
A("s_waitcnt vmcnt(0)"); A("s_barrier")
for n in range(8): A(k_read(0, n))
A("s_waitcnt lgkmcnt(0)"); A("s_barrier")
for qt in range(6):
    for m in qk_mfmas(0, qt, 0, 0): A(m)
    A("s_nop 7")
    for j in range(4):
        A(f"v_max3_f32 v{vM+qt}, v{vM+qt}, v{vS+2*j}, v{vS+2*j+1}")
    A("s_nop 1")
A(f"s_add_u32 s{sIt}, s{sIt}, 1"); A(f"s_cmp_lt_u32 s{sIt}, 16"); A("s_cbranch_scc1 L_maxloop")
for qt in range(6):
    m = vM + qt
    A(f"v_mov_b32 v{vT}, v{m}"); A("s_nop 1")
    A(f"v_permlane32_swap_b32 v{vT}, v{m}"); A("s_nop 1")
    A(f"v_max_f32 v{m}, v{m}, v{vT}")
    A(f"v_mov_b32 v{vT}, v{m}"); A("s_nop 1")
    A(f"v_permlane16_swap_b32 v{vT}, v{m}"); A("s_nop 1")
    A(f"v_max_f32 v{m}, v{m}, v{vT}")
    A(f"v_mul_f32 v{m}, s{sC}, v{m}")
    A(f"v_sub_f32 v{m}, 0, v{m}")
A("s_branch L_start")
L("L_done")
if a.probe >= 0:
    A("s_waitcnt vmcnt(0)")
    stamp()
    L("L_spin")
    A(f"s_memrealtime s[{sSt}:{sSt+1}]"); A("s_waitcnt lgkmcnt(0)")
    A(f"s_sub_u32 s{sSt}, s{sSt}, s{sSt+6}"); A(f"s_cmp_lt_u32 s{sSt}, 10000"); A("s_cbranch_scc1 L_spin")
if a.stamps:
    A("s_waitcnt vmcnt(0)")
    stamp()
    A(f"v_lshlrev_b32 v{vT}, 3, v0"); A(f"s_lshl_b32 s{sT}, s2, 2"); A(f"s_add_u32 s{sT}, s{sT}, s{sWV}"); A(f"s_lshl_b32 s{sT}, s{sT}, 9")
    A(f"buffer_store_dwordx2 {vr(vStamp,2)}, v{vT}, {sreg(SRD_W,4)}, s{sT} offen")
L("L_exit")
A("s_endpgm")
out.append('.section .rodata,"a"'); out.append(".p2align 6"); out.append(f".amdhsa_kernel {NAME}")
out.append("""  .amdhsa_next_free_vgpr 512
  .amdhsa_next_free_sgpr 102
  .amdhsa_accum_offset 256
  .amdhsa_group_segment_fixed_size 0
  .amdhsa_kernarg_size 48
  .amdhsa_user_sgpr_count 2
  .amdhsa_user_sgpr_kernarg_segment_ptr 1
  .amdhsa_system_sgpr_workgroup_id_x 1
  .amdhsa_float_denorm_mode_32 3""")
out.append(".end_amdhsa_kernel")
print("\n".join(out))
```

```python
import sys, argparse, struct
ap = argparse.ArgumentParser()
ap.add_argument("--lp", default="nt")
ap.add_argument("--sp", default="")
ap.add_argument("--spa", default=None)
ap.add_argument("--hmap", type=int, default=1)
ap.add_argument("--stamps", type=int, default=0)
ap.add_argument("--force_redo", type=int, default=0)
ap.add_argument("--late", type=int, default=0)
ap.add_argument("--probe", type=int, default=-1)
ap.add_argument("--stag", type=int, default=0)
ap.add_argument("--stagbit", type=int, default=3)
ap.add_argument("--abl", default="")
a = ap.parse_args()
ABL = set(a.abl.split(","))
LP = a.lp.replace("+", " ").replace("-", "")
SP = a.sp.replace("+", " ").replace("-", "")
SPA = SP if a.spa is None else a.spa.replace("+", " ").replace("-", "")
curSP = [SPA]

NAME = "standalone__mha_softmax__near_ridge_kernel"
PIECE = 1056
SLOT = 16 * PIECE
NS = 4
RING = NS * SLOT
QP = 1088
REGW = 21 * QP
REG = RING
FLAGS = REG + 4 * REGW
LDS = FLAGS + 64
assert LDS <= 163840
QBYTES = 16 * 32 * 384 * 128 * 2
KBYTES = 16 * 32 * 512 * 128 * 2
CSCALE = struct.unpack("<I", struct.pack("<f", 1.4426950408889634 * 128 ** -0.5))[0]

out = []
def A(s): out.append("    " + s)
def L(s): out.append(s + ":")
def C(s): out.append("    ; " + s)

sWV = 3
sQp, sOp = 4, 10
SRD_Q, SRD_KV, SRD_O, SRD_X = 16, 20, 24, 28
sC = 32
sPoff = 33
sR, sW, sD, sT = 35, 36, 37, 38
sWpart = 39
sIt = 40
sCur = 41
sNextSzKV = 44
sKVoffN = 46
sKVoff = 48
sXoff, sXm = 42, 43
sReg = 45
sXlim = 47
sBad = 50
sFlag, sBit, sPend, sMode = 52, 53, 54, 55
sHA, sHB = 56, 57
sLeft = 58
sT2 = 59
sLo, sHi = 60, 61
sCm = 62
SRD_W = 64
sSt = 68
vDMA, vK, vV, vQ, vOw, vOr, vKl, vVl, vQd = 1, 2, 3, 4, 5, 6, 7, 8, 9
vT = 10
vM = 16
vStamp = 22
vS = 24
vQ5 = 48
vO = 64
aQ, aK, aV, aL, aONE, aZ = 0, 96, 160, 224, 248, 252
aE = aQ + 80

def vr(b, n): return f"v[{b}:{b+n-1}]"
def ar(b, n): return f"a[{b}:{b+n-1}]"
def sreg(b, n): return f"s[{b}:{b+n-1}]"
def Sbuf(u): return vS + 8 * (u % 3)
def Oreg(qt, dt): return vO + 32 * qt + 4 * dt
def Qreg(hd, qt, ks):
    return vr(vQ5 + 4 * ks, 4) if (hd == 1 and qt == 5) else ar(aQ + 16 * qt + 4 * ks, 4)

MF = "v_mfma_f32_16x16x32_bf16"
def qk_mfmas(hd, qt, kpar, u):
    r = []
    for kt in range(2):
        d = vr(Sbuf(u) + 4 * kt, 4)
        for ks in range(4):
            r.append(f"{MF} {d}, {ar(aK + 32*kpar + 16*kt + 4*ks, 4)}, {Qreg(hd, qt, ks)}, {'0' if ks == 0 else d}")
    return r
def pv_mfmas(qt, vpar, u):
    r = []
    p = vr(Sbuf(u), 4)
    for dt in range(8):
        d = vr(Oreg(qt, dt), 4)
        r.append(f"{MF} {d}, {ar(aV + 32*vpar + 4*dt, 4)}, {p}, {d}")
    d = ar(aL + 4 * qt, 4)
    r.append(f"{MF} {d}, {ar(aONE, 4)}, {p}, {d}")
    return r
def sm_f(u, qt, j): return f"v_fma_f32 v{Sbuf(u)+j}, v{Sbuf(u)+j}, s{sC}, v{vM+qt}"
def sm_e(u, j): return f"v_exp_f32 v{Sbuf(u)+j}, v{Sbuf(u)+j}"
def sm_c(u, k): return f"v_cvt_pk_bf16_f32 v{Sbuf(u)+k}, v{Sbuf(u)+2*k}, v{Sbuf(u)+2*k+1}"
def k_read(kpar, n):
    kt, ks = n // 4, n % 4
    return f"ds_read_b128 {ar(aK + 32*kpar + 16*kt + 4*ks, 4)}, v{vK} offset:{kt*512 + ks*64}"
def v_read(vpar, n):
    dt, kt = n // 2, n % 2
    return f"ds_read_b64_tr_b16 {ar(aV + 32*vpar + 4*dt + 2*kt, 2)}, v{vV} offset:{kt*512 + dt*32}"
def q_read(qt, ks):
    return f"ds_read_b128 {ar(aQ + 16*qt + 4*ks, 4)}, v{vQ} offset:{qt*4*QP + 64*ks}"
def dma(srd, soff, piece):
    so = f"s{soff}" if soff is not None else "0"
    return f"buffer_load_dwordx4 v{vDMA}, {sreg(srd,4)}, {so} offen offset:{piece*1024} {LP} lds"
def o_store(reg, soff, off):
    return f"buffer_store_dwordx4 {reg}, v{vDMA}, {sreg(SRD_O,4)}, {soff} offen offset:{off} {curSP[0]}"

nst = [0]
def stamp():
    nst[0] += 1
    if a.probe == nst[0] - 1:
        A(f"s_memrealtime s[{sSt+6}:{sSt+7}]"); A("s_waitcnt lgkmcnt(0)")
    if not a.stamps: return
    A(f"s_memtime s[{sSt}:{sSt+1}]"); A(f"s_memrealtime s[{sSt+2}:{sSt+3}]"); A("s_waitcnt lgkmcnt(0)")
    A(f"s_mov_b32 s{sSt+4}, m0"); A(f"s_mov_b32 m0, s{sSt+5}")
    A(f"v_writelane_b32 v{vStamp}, s{sSt}, m0"); A(f"v_writelane_b32 v{vStamp+1}, s{sSt+2}, m0")
    A(f"s_add_u32 s{sSt+5}, s{sSt+5}, 1"); A(f"s_mov_b32 m0, s{sSt+4}")

def emit_step(mf, gaps):
    for i, m in enumerate(mf):
        A(m)
        for x in gaps.get(i, []):
            if "nodma" in ABL and x.startswith("buffer_load"): continue
            A(x)

def softmax_gaps(u, qt, reads, early_reads=False):
    g = {i: [] for i in range(17)}
    if early_reads:
        g[0] = [reads[0], sm_f(u, qt, 0)]
        g[2] = [reads[1], sm_f(u, qt, 1)]
        g[4] = [reads[2], sm_f(u, qt, 2)]
        g[6] = [reads[3], sm_f(u, qt, 3)]
        g[8] = [sm_f(u, qt, 4), sm_f(u, qt, 5)]
        g[10] = [sm_c(u, 0), sm_f(u, qt, 6)]
        g[12] = [sm_c(u, 1), sm_f(u, qt, 7)]
        g[14] = [sm_c(u, 2)]
        g[16] = [sm_c(u, 3)]
    else:
        g[0] = [sm_f(u, qt, 0), sm_f(u, qt, 1)]
        for i, gg in enumerate([2, 6, 10, 14]): g[gg].append(reads[i])
        g[2].append(sm_f(u, qt, 2)); g[4] += [sm_c(u, 0), sm_f(u, qt, 3)]
        g[6].append(sm_f(u, qt, 4)); g[8] += [sm_c(u, 1), sm_f(u, qt, 5)]
        g[10].append(sm_f(u, qt, 6)); g[12] += [sm_c(u, 2), sm_f(u, qt, 7)]
        g[16].append(sm_c(u, 3))
    for j in range(8): g[2 * j + 1].append(sm_e(u, j))
    return g

def head_start(hd):
    reads = [k_read(1, i) for i in range(8)]
    g = {0: [reads[0]], 1: [f"s_add_u32 m0, s{sW}, 0"], 2: [reads[1]], 3: [dma(SRD_KV, sPoff, 0)], 4: [reads[2]], 6: [reads[3]]}
    emit_step(qk_mfmas(hd, 0, 0, 0), g)
    A("s_nop 3")
    u, qt = 0, 0
    g = {0: [sm_f(u, qt, 0), sm_f(u, qt, 1), sm_f(u, qt, 2), sm_f(u, qt, 3)], 1: [reads[4], sm_e(u, 0), sm_e(u, 1)],
         2: [f"s_add_u32 m0, s{sW}, 32", sm_e(u, 2), sm_e(u, 3)], 3: [reads[5], sm_f(u, qt, 4), sm_f(u, qt, 5), sm_f(u, qt, 6), sm_f(u, qt, 7)],
         4: [dma(SRD_KV, sPoff, 1), sm_e(u, 4), sm_e(u, 5)], 5: [reads[6], sm_e(u, 6), sm_e(u, 7)],
         6: [reads[7], sm_c(u, 0), sm_c(u, 1)], 7: [sm_c(u, 2), sm_c(u, 3), "s_nop 4"]}
    emit_step(qk_mfmas(hd, 1, 0, 1), g)

def tile_step(hd, par, k):
    mf = qk_mfmas(hd, k, par, k)
    if k < 2: reads = [k_read(1 - par, 4 * k + i) for i in range(4)]
    else: reads = [v_read(1 - par, 4 * (k - 2) + i) for i in range(4)]
    mf += pv_mfmas((k - 2) % 6, par if k >= 2 else 1 - par, k - 2)
    g = softmax_gaps(k - 1, (k - 1) % 6, reads, early_reads=(k == 5))
    if k < 4:
        g[15].insert(0, f"s_add_u32 m0, s{sW}, {32*k}")
        g[16].insert(0, dma(SRD_KV, sPoff, k))
    if k == 4:
        g[1].insert(0, f"s_add_u32 s{sPoff}, s{sPoff}, 8192")
        g[3].insert(0, f"s_add_u32 s{sW}, s{sR}, s{sWpart}")
        g[5].insert(0, f"s_add_u32 s{sT}, s{sR}, {SLOT}")
        g[7].insert(0, f"s_cmp_eq_u32 s{sT}, {RING}")
        g[9].insert(0, f"s_cselect_b32 s{sT}, 0, s{sT}")
        g[11].insert(0, f"s_sub_u32 s{sD}, s{sT}, s{sR}")
        g[12].insert(0, f"s_mov_b32 s{sR}, s{sT}")
        g[14].append(f"v_add_u32 v{vK}, s{sD}, v{vK}")
    if k == 5:
        g[14].append(f"v_add_u32 v{vV}, s{sD}, v{vV}")
        if par == 1:
            g[1].insert(0, f"s_add_u32 s{sIt}, s{sIt}, 1")
            g[3].insert(0, f"s_cmp_eq_u32 s{sIt}, 6")
            g[5].insert(0, f"s_cselect_b32 s{SRD_KV+2}, s{sNextSzKV}, s{SRD_KV+2}")
            g[7].insert(0, f"s_cselect_b32 s{sPoff}, s{sKVoffN}, s{sPoff}")
    extra = (k == 4) or (k == 5 and par == 1)
    if hd == 0 and extra:
        g[13].insert(0, f"s_min_u32 m0, s{sXm}, s{sXlim}")
        g[15].insert(0, f"s_add_u32 s{sXm}, s{sXm}, {QP}")
        g[16].insert(0, dma(SRD_X, sXoff, 0))
        g[16].append(f"s_add_u32 s{sXoff}, s{sXoff}, 1024")
    if hd == 1:
        if par == 0 and k == 4: g[16].insert(0, o_store(ar(aE + 8, 4), f"s{sXoff}", 0))
        if par == 1 and k == 4: g[16].insert(0, o_store(ar(aE, 4), f"s{sXoff}", 1024))
        if par == 1 and k == 5:
            g[16].insert(0, o_store(ar(aE + 4, 4), f"s{sXoff}", 2048))
            g[16].append(f"s_add_u32 s{sXoff}, s{sXoff}, 3072")
        if par == 0 and k == 2: g[14].append(f"ds_read_b128 {ar(aE, 4)}, v{vOr} offset:{QP}")
        if par == 0 and k == 3: g[14].append(f"ds_read_b128 {ar(aE + 4, 4)}, v{vOr} offset:{2*QP}")
        if par == 1 and k == 2: g[14].append(f"ds_read_b128 {ar(aE + 8, 4)}, v{vOr} offset:{3*QP}")
        if par == 1 and k == 3: g[14].append(f"v_add_u32 v{vOr}, {3*QP}, v{vOr}")
    if k == 5 and par == 1:
        g[16].append(f"s_cmp_lt_u32 s{sIt}, 8")
    emit_step(mf, g)

def tile_sync(n):
    A(f"s_waitcnt vmcnt({n}) lgkmcnt(0)")
    A("s_barrier")

def main_loop(hd):
    A(f"s_branch L_enter{hd}")
    out.append(".p2align 6")
    L(f"L_loop{hd}")
    for par in range(2):
        tile_sync(13 if par == 0 else 12)
        if a.stamps > 1: stamp()
        for k in range(6):
            if par == 0 and k == 2: L(f"L_enter{hd}")
            tile_step(hd, par, k)
    A(f"s_cbranch_scc1 L_loop{hd}")

def zero_o(qt):
    z = ar(aZ, 4)
    return [f"v_mfma_f32_32x32x16_bf16 {vr(vO + 32*qt + 16*i, 16)}, {z}, {z}, 0" for i in range(2)] + [f"{MF} {ar(aL + 4*qt, 4)}, {z}, {z}, 0"]

def window(srd, ptr, hreg, size):
    A(f"s_mul_i32 s{sT}, s{hreg}, 98304")
    A(f"s_mul_i32 s{sT2}, s{sWV}, 24576")
    A(f"s_add_u32 s{sT}, s{sT}, s{sT2}")
    A(f"s_add_u32 s{srd}, s{ptr}, s{sT}")
    A(f"s_addc_u32 s{srd+1}, s{ptr+1}, 0")
    A(f"s_mov_b32 s{srd+2}, {size}")

def kv_offset(hreg, kv):
    A(f"s_lshl_b32 s{kv}, s{hreg}, 17")
    A(f"s_and_b32 s{sT}, s{sWV}, 1")
    A(f"s_lshl_b32 s{sT}, s{sT}, 12")
    A(f"s_add_u32 s{kv}, s{kv}, s{sT}")

def kv_slot(slot, tile):
    A(f"s_add_u32 s{sT2}, s{sKVoff}, {tile*8192}")
    for p in range(4):
        A(f"s_add_u32 m0, s{sWpart}, {slot*SLOT + 32*p}")
        A("s_nop 0")
        A(dma(SRD_KV, sT2, p))

def q_tiles(stag=0):
    for k in range(5):
        if k < stag:
            A(f"s_bitcmp1_b32 s2, {a.stagbit}")
            A(f"s_cbranch_scc0 L_nostag{k}")
            A("s_waitcnt vmcnt(0)")
            L(f"L_nostag{k}")
        A(f"s_mov_b32 s{sT2}, {4096*k}")
        for p in range(4):
            A(f"s_add_u32 m0, s{sReg}, {4*k*QP + (QP-1024)*p}")
            A("s_nop 0")
            A(dma(SRD_Q, sT2, p))
    for ks in range(4):
        A(f"buffer_load_dwordx4 {ar(aQ + 80 + 4*ks, 4)}, v{vQd}, {sreg(SRD_Q,4)}, 0 offen offset:{64*ks} {LP}")

def drain(extra):
    u = 5
    mf = pv_mfmas(4, 1, 4) + pv_mfmas(5, 1, 5)
    g = {0: [sm_f(u, 5, 0), sm_f(u, 5, 1), sm_f(u, 5, 2), sm_f(u, 5, 3)], 1: [sm_e(u, 0), sm_e(u, 1)], 2: [sm_e(u, 2), sm_e(u, 3)],
         3: [sm_f(u, 5, 4), sm_f(u, 5, 5), sm_f(u, 5, 6), sm_f(u, 5, 7)], 4: [sm_e(u, 4), sm_e(u, 5)], 5: [sm_e(u, 6), sm_e(u, 7)],
         6: [sm_c(u, 0), sm_c(u, 1)], 7: [sm_c(u, 2), sm_c(u, 3)], 8: ["s_nop 0"]}
    extra = list(extra)
    for i in range(8, 18):
        g.setdefault(i, [])
        for _ in range(2):
            if extra: g[i].insert(0, extra.pop(0))
    assert not extra
    emit_step(mf, g)

def norm_tile(qt, woff, mid=()):
    A(f"v_accvgpr_read_b32 v{vT+2}, a{aL + 4*qt}")
    A("s_nop 0")
    A(f"v_rcp_f32 v{vT}, v{vT+2}")
    A(f"v_cmp_nle_f32 vcc, s{sLo}, v{vT+2}")
    A(f"v_cmp_nge_f32 {sreg(sCm,2)}, s{sHi}, v{vT+2}")
    for dt in range(8):
        o = Oreg(qt, dt)
        A(f"v_pk_mul_f32 {vr(o,2)}, {vr(o,2)}, {vr(vT,2)} op_sel_hi:[1,0]")
        A(f"v_pk_mul_f32 {vr(o+2,2)}, {vr(o+2,2)}, {vr(vT,2)} op_sel_hi:[1,0]")
    A(f"s_or_b64 {sreg(sBad,2)}, {sreg(sBad,2)}, vcc")
    A(f"s_or_b64 {sreg(sBad,2)}, {sreg(sBad,2)}, {sreg(sCm,2)}")
    mid = list(mid)
    for dt in range(8):
        o = Oreg(qt, dt)
        if mid and dt % 2 == 0: A(mid.pop(0))
        A(f"v_cvt_pk_bf16_f32 v{o}, v{o}, v{o+1}")
        A(f"v_cvt_pk_bf16_f32 v{o+1}, v{o+2}, v{o+3}")
        A(f"ds_write_b64 v{vOw}, {vr(o,2)} offset:{woff + 32*dt}")
    for x in mid: A(x)

def flag_update():
    A(f"s_cmp_lg_u64 {sreg(sBad,2)}, 0")
    A(f"s_cselect_b32 s{sT}, s{sBit}, 0")
    if a.abl: A(f"s_mov_b32 s{sT}, 0")
    A(f"s_or_b32 s{sFlag}, s{sFlag}, s{sT}")
    A(f"s_mov_b64 {sreg(sBad,2)}, 0")

def readback(base):
    for j in range(4):
        A(f"ds_read_b128 {ar(base + 4*j, 4)}, v{vOr} offset:{QP*j}")

hdr = open("standalone__mha_softmax__near_ridge.s.ref").read().split("; Override launch")[0]
out.append(hdr.rstrip())
out.append(f"; @launch grid=(256,1,1) block=(256,1,1) lds={LDS}")
out.append('.amdgcn_target "amdgcn-amd-amdhsa--gfx950"')
out.append(".text"); out.append(f".globl {NAME}"); out.append(".p2align 8"); out.append(f".type {NAME},@function")
L(NAME)
if a.probe == 100: A(f"s_memrealtime s[{sSt+6}:{sSt+7}]")
A("s_cmp_ge_u32 s2, 256"); A("s_cbranch_scc1 L_exit")
A("s_load_dwordx8 s[4:11], s[0:1], 0")
if a.stamps:
    A(f"s_load_dwordx2 s[{SRD_W}:{SRD_W+1}], s[0:1], 40")
    A(f"s_mov_b32 s{sSt+5}, 0")
A(f"v_lshrrev_b32 v{vT}, 6, v0")
A(f"v_and_b32 v0, 63, v0")
A(f"v_readfirstlane_b32 s{sWV}, v{vT}")
A(f"v_lshlrev_b32 v{vDMA}, 4, v0")
A(f"v_and_b32 v{vT}, 3, v0"); A(f"v_bfe_u32 v{vT+1}, v0, 2, 2"); A(f"v_lshl_add_u32 v{vT}, v{vT}, 2, v{vT+1}")
A(f"v_lshrrev_b32 v{vT+1}, 4, v0"); A(f"v_lshlrev_b32 v{vT+1}, 4, v{vT+1}"); A(f"v_lshl_add_u32 v{vQd}, v{vT}, 8, v{vT+1}")
A(f"v_add_u32 v{vQd}, 20480, v{vQd}")
if a.hmap == 0:
    A(f"s_lshl_b32 s{sHA}, s2, 1"); A(f"s_add_u32 s{sHB}, s{sHA}, 1")
else:
    A(f"s_mov_b32 s{sHA}, s2"); A(f"s_add_u32 s{sHB}, s2, 256")
A(f"s_mul_i32 s{sWpart}, s{sWV}, {4*PIECE}")
A(f"s_mul_i32 s{sReg}, s{sWV}, {REGW}"); A(f"s_add_u32 s{sReg}, s{sReg}, {REG}")
A(f"s_mov_b32 s{sCur}, s{sHA}")
A(f"s_mov_b32 s{sLeft}, 2")
for r in (SRD_Q, SRD_KV, SRD_O, SRD_X): A(f"s_mov_b32 s{r+3}, 0x20000")
A(f"s_cmp_lt_u32 s{sWV}, 2")
A("s_waitcnt lgkmcnt(0)")
A(f"s_cselect_b64 {sreg(SRD_KV,2)}, s[6:7], s[8:9]")
if a.stamps:
    A(f"s_mov_b32 s{SRD_W+2}, 268435456"); A(f"s_mov_b32 s{SRD_W+3}, 0x20000")
stamp()
A(f"s_mov_b32 s{sMode}, 0")
for j in range(6): A(f"v_mov_b32 v{vM+j}, 0")
L("L_start")
C("---- start of a stream: request KV0, Q, KV1.. of the current head")
A(f"s_mov_b32 s{SRD_KV+2}, {KBYTES}")
kv_offset(sCur, sKVoff)
kv_slot(0, 0)
window(SRD_Q, sQp, sCur, 24576)
q_tiles(a.stag)
kv_slot(1, 1)
if not a.late:
    kv_slot(2, 2); kv_slot(3, 3)
window(SRD_O, sOp, sCur, 24576)
window(SRD_X, sQp, sHB, 24576)
kv_offset(sHB, sKVoffN)
A(f"s_cmp_eq_u32 s{sMode}, 0")
A(f"s_cselect_b32 s{SRD_X+2}, s{SRD_X+2}, 0")
A(f"s_cselect_b32 s{sNextSzKV}, s{SRD_KV+2}, 0")
A("s_cbranch_scc0 L_skipinit")
A(f"s_mov_b32 s{sFlag}, {a.force_redo}"); A(f"s_mov_b32 s{sBit}, 1"); A(f"s_mov_b32 s{sPend}, 0")
L("L_skipinit")
A(f"s_mov_b64 {sreg(sBad,2)}, 0")
A(f"s_mov_b32 s{sC}, 0x{CSCALE:08x}")
A(f"s_mov_b32 s{sLo}, 0x30800000")
A(f"s_mov_b32 s{sHi}, 0x4e800000")
C("---- per-lane LDS addresses")
A(f"v_and_b32 v{vT}, 15, v0")
A(f"v_lshrrev_b32 v{vT+1}, 4, v0")
A(f"v_and_b32 v{vT+2}, 7, v{vT}"); A(f"v_mul_u32_u24 v{vKl}, {PIECE}, v{vT+2}")
A(f"v_lshrrev_b32 v{vT+2}, 3, v{vT}"); A(f"v_lshl_add_u32 v{vKl}, v{vT+2}, 8, v{vKl}")
A(f"v_lshl_add_u32 v{vKl}, v{vT+1}, 4, v{vKl}")
A(f"v_bfe_u32 v{vT+2}, v0, 2, 3"); A(f"v_mul_u32_u24 v{vVl}, {PIECE}, v{vT+2}")
A(f"v_lshrrev_b32 v{vT+2}, 5, v0"); A(f"v_lshl_add_u32 v{vVl}, v{vT+2}, 8, v{vVl}")
A(f"v_and_b32 v{vT+2}, 3, v0"); A(f"v_lshl_add_u32 v{vVl}, v{vT+2}, 3, v{vVl}")
A(f"v_add_u32 v{vVl}, {8*PIECE}, v{vVl}")
A(f"v_and_b32 v{vT+2}, 3, v{vT}"); A(f"v_mul_u32_u24 v{vQ}, {QP}, v{vT+2}")
A(f"v_lshrrev_b32 v{vT+3}, 2, v{vT}"); A(f"v_lshl_add_u32 v{vQ}, v{vT+3}, 8, v{vQ}")
A(f"v_lshl_add_u32 v{vQ}, v{vT+1}, 4, v{vQ}")
A(f"v_add_u32 v{vQ}, s{sReg}, v{vQ}")
A(f"v_lshl_add_u32 v{vT+2}, v{vT+2}, 2, v{vT+3}"); A(f"v_mul_u32_u24 v{vOw}, 272, v{vT+2}")
A(f"v_lshl_add_u32 v{vOw}, v{vT+1}, 3, v{vOw}")
A(f"v_add_u32 v{vOw}, s{sReg}, v{vOw}")
A(f"v_mul_u32_u24 v{vOr}, 272, v{vT+1}"); A(f"v_lshl_add_u32 v{vOr}, v{vT}, 4, v{vOr}")
A(f"v_add_u32 v{vOr}, s{sReg}, v{vOr}")
A(f"v_mov_b32 v{vT}, 0x3f803f80")
for j in range(4): A(f"v_accvgpr_write_b32 a{aZ+j}, 0")
for j in range(4): A(f"v_accvgpr_write_b32 a{aONE+j}, v{vT}")
A(f"v_mov_b32 v{vK}, v{vKl}"); A(f"v_mov_b32 v{vV}, v{vVl}")
for qt in range(6):
    for m in zero_o(qt): A(m)
C("---- KV0 and Q -> registers")
post = 0 if a.late else 8
A(f"s_waitcnt vmcnt({28 + post})")
A("s_barrier")
for n in range(8): A(k_read(0, n))
for n in range(16): A(v_read(0, n))
for k in range(5):
    A(f"s_waitcnt vmcnt({24 - 4*k + post})")
    for ks in range(4): A(q_read(k, ks))
    if a.late == k + 1:
        kv_slot(2, 2); kv_slot(3, 3); post = 8
A(f"v_add_u32 v{vK}, {SLOT}, v{vKl}")
A(f"v_add_u32 v{vV}, {SLOT}, v{vVl}")
A(f"s_mov_b32 s{sR}, {SLOT}")
A(f"s_mov_b32 s{sW}, s{sWpart}")
A(f"s_add_u32 s{sPoff}, s{sKVoff}, {4*8192}")
A(f"s_mov_b32 s{sIt}, 0")
A(f"s_mov_b32 s{sXoff}, 0"); A(f"s_mov_b32 s{sXm}, s{sReg}"); A(f"s_add_u32 s{sXlim}, s{sReg}, {20*QP}")
tile_sync(8)
C("---- q-tile 5 of the next head goes straight to registers; then its window shrinks to tiles 0..4")
for ks in range(4):
    A(f"buffer_load_dwordx4 {vr(vQ5 + 4*ks, 4)}, v{vQd}, {sreg(SRD_X,4)}, 0 offen offset:{64*ks} {LP}")
A(f"s_min_u32 s{SRD_X+2}, s{SRD_X+2}, 20480")
stamp()
head_start(0)
main_loop(0)
stamp()
A(f"s_cmp_lg_u32 s{sMode}, 0")
A("s_cbranch_scc1 L_final")
C("---- head boundary: finish head A, park its output in LDS, start head B")
A("s_waitcnt vmcnt(11)")
drain([q_read(k, ks) for k in range(5) for ks in range(4)])
norm_tile(0, 0)
readback(aE)
for qt in range(1, 6):
    mid = zero_o(qt - 1)
    if qt == 1:
        mid = mid + ["s_waitcnt lgkmcnt(6)"] + [o_store(ar(aE + 4*j, 4), "0", 1024*j) for j in range(4)]
    norm_tile(qt, (qt - 1) * 4 * QP, mid)
A(f"ds_read_b128 {ar(aE + 8, 4)}, v{vOr}")
for m in zero_o(5): A(m)
flag_update()
A(f"s_mov_b32 s{sBit}, 2"); A(f"s_mov_b32 s{sNextSzKV}, 0"); A(f"s_mov_b32 s{sIt}, 0")
A(f"s_mov_b32 s{sXoff}, 4096")
stamp()
tile_sync(13)
stamp()
head_start(1)
main_loop(1)
stamp()
A(f"v_subrev_u32 v{vOr}, {24*QP}, v{vOr}")
window(SRD_O, sOp, sHB, 24576)
L("L_final")
curSP[0] = SP
C("---- last head of the stream: drain, normalise, transpose through LDS, store")
drain([])
for qt in range(6):
    mid = []
    if qt > 0:
        A(f"s_mov_b32 s{sT}, {4096*(qt-1)}")
        mid = ["s_waitcnt lgkmcnt(0)"] + [o_store(ar(aE + 4*j, 4), f"s{sT}", 1024*j) for j in range(4)]
    norm_tile(qt, 0, mid)
    readback(aE)
A(f"s_mov_b32 s{sT}, {4096*5}")
A("s_waitcnt lgkmcnt(0)")
for j in range(4): A(o_store(ar(aE + 4*j, 4), f"s{sT}", 1024*j))
flag_update()
stamp()
A(f"s_cmp_lg_u32 s{sMode}, 0")
A("s_cbranch_scc1 L_pend")
C("---- combine the per-wave 'row sum left the safe range' flags of the workgroup")
A(f"s_lshl_b32 s{sT}, s{sWV}, 2"); A(f"s_add_u32 s{sT}, s{sT}, {FLAGS}")
A(f"v_mov_b32 v{vT}, s{sT}"); A(f"v_mov_b32 v{vT+1}, s{sFlag}")
A(f"ds_write_b32 v{vT}, v{vT+1}")
A(f"v_mov_b32 v{vT}, {FLAGS}")
A("s_waitcnt lgkmcnt(0)"); A("s_barrier")
A(f"ds_read_b128 {vr(vT+2,4)}, v{vT}")
A("s_waitcnt lgkmcnt(0)")
A(f"v_or_b32 v{vT+2}, v{vT+2}, v{vT+3}"); A(f"v_or3_b32 v{vT+2}, v{vT+2}, v{vT+4}, v{vT+5}")
A("s_nop 0")
A(f"v_readfirstlane_b32 s{sPend}, v{vT+2}")
A(f"s_mov_b32 s{sMode}, 1")
A("s_nop 2")
L("L_pend")
A(f"s_cmp_eq_u32 s{sPend}, 0")
A("s_cbranch_scc1 L_done")
C("---- rare path: redo a head with the true row maximum")
A(f"s_bitcmp1_b32 s{sPend}, 0")
A(f"s_cselect_b32 s{sCur}, s{sHA}, s{sHB}")
A(f"s_cselect_b32 s{sT}, 2, 0")
A(f"s_and_b32 s{sPend}, s{sPend}, s{sT}")
A("s_waitcnt vmcnt(0) lgkmcnt(0)"); A("s_barrier")
A(f"s_mov_b32 s{SRD_KV+2}, {KBYTES}")
kv_offset(sCur, sKVoff)
window(SRD_Q, sQp, sCur, 24576)
q_tiles()
for j in range(6): A(f"v_mov_b32 v{vM+j}, 0xff800000")
A("s_waitcnt vmcnt(0)")
for k in range(5):
    for ks in range(4): A(q_read(k, ks))
    A("s_waitcnt lgkmcnt(0)")
A(f"v_mov_b32 v{vK}, v{vKl}")
A(f"s_mov_b32 s{sIt}, 0")
L("L_maxloop")
kv_slot(0, 0)
A(f"s_add_u32 s{sKVoff}, s{sKVoff}, 8192")
A("s_waitcnt vmcnt(0)"); A("s_barrier")
for n in range(8): A(k_read(0, n))
A("s_waitcnt lgkmcnt(0)"); A("s_barrier")
for qt in range(6):
    for m in qk_mfmas(0, qt, 0, 0): A(m)
    A("s_nop 7")
    for j in range(4):
        A(f"v_max3_f32 v{vM+qt}, v{vM+qt}, v{vS+2*j}, v{vS+2*j+1}")
    A("s_nop 1")
A(f"s_add_u32 s{sIt}, s{sIt}, 1"); A(f"s_cmp_lt_u32 s{sIt}, 16"); A("s_cbranch_scc1 L_maxloop")
for qt in range(6):
    m = vM + qt
    A(f"v_mov_b32 v{vT}, v{m}"); A("s_nop 1")
    A(f"v_permlane32_swap_b32 v{vT}, v{m}"); A("s_nop 1")
    A(f"v_max_f32 v{m}, v{m}, v{vT}")
    A(f"v_mov_b32 v{vT}, v{m}"); A("s_nop 1")
    A(f"v_permlane16_swap_b32 v{vT}, v{m}"); A("s_nop 1")
    A(f"v_max_f32 v{m}, v{m}, v{vT}")
    A(f"v_mul_f32 v{m}, s{sC}, v{m}")
    A(f"v_sub_f32 v{m}, 0, v{m}")
A("s_branch L_start")
L("L_done")
if a.probe >= 0:
    A("s_waitcnt vmcnt(0)")
    stamp()
    L("L_spin")
    A(f"s_memrealtime s[{sSt}:{sSt+1}]"); A("s_waitcnt lgkmcnt(0)")
    A(f"s_sub_u32 s{sSt}, s{sSt}, s{sSt+6}"); A(f"s_cmp_lt_u32 s{sSt}, 10000"); A("s_cbranch_scc1 L_spin")
if a.stamps:
    A("s_waitcnt vmcnt(0)")
    stamp()
    A(f"v_lshlrev_b32 v{vT}, 3, v0"); A(f"s_lshl_b32 s{sT}, s2, 2"); A(f"s_add_u32 s{sT}, s{sT}, s{sWV}"); A(f"s_lshl_b32 s{sT}, s{sT}, 9")
    A(f"buffer_store_dwordx2 {vr(vStamp,2)}, v{vT}, {sreg(SRD_W,4)}, s{sT} offen")
L("L_exit")
A("s_endpgm")
out.append('.section .rodata,"a"'); out.append(".p2align 6"); out.append(f".amdhsa_kernel {NAME}")
out.append("""  .amdhsa_next_free_vgpr 512
  .amdhsa_next_free_sgpr 102
  .amdhsa_accum_offset 256
  .amdhsa_group_segment_fixed_size 0
  .amdhsa_kernarg_size 48
  .amdhsa_user_sgpr_count 2
  .amdhsa_user_sgpr_kernarg_segment_ptr 1
  .amdhsa_system_sgpr_workgroup_id_x 1
  .amdhsa_float_denorm_mode_32 3""")
out.append(".end_amdhsa_kernel")
print("\n".join(out))
```

```python
import re

class Ins:
    __slots__ = ("text", "kind", "tag", "need_vm", "need_lg", "vm", "lg", "force")
    def __init__(self, text, tag=None):
        self.text = text
        self.tag = tag
        self.need_vm = None
        self.need_lg = None
        self.vm = None
        self.lg = None
        self.force = False
        self.kind = classify(text)
    def render(self):
        if self.kind == "wait" and (self.need_vm is not None or self.need_lg is not None):
            p = []
            if self.need_vm is not None and self.vm is not None: p.append(f"vmcnt({min(self.vm, 63)})")
            if self.need_lg is not None and self.lg is not None: p.append(f"lgkmcnt({min(self.lg, 15)})")
            if not p: return None
            return "s_waitcnt " + " ".join(p)
        return self.text

def classify(t):
    op = t.split()[0] if t.split() else ""
    if t.endswith(":"): return "label"
    if op.startswith(";") or op.startswith("."): return "meta"
    if "mfma" in op: return "mfma"
    if op in ("v_exp_f32", "v_rcp_f32", "v_log_f32"): return "trans"
    if op.startswith("v_"): return "valu"
    if op.startswith("ds_"): return "ds"
    if op.startswith("buffer_") or op.startswith("global_"): return "vmem"
    if op == "s_waitcnt": return "wait"
    if op == "s_barrier": return "barrier"
    if op.startswith("s_load") or op.startswith("s_mem"): return "smem"
    if op.startswith("s_"): return "salu"
    raise Exception("classify: " + t)

def W(vm=None, lg=None):
    i = Ins("s_waitcnt")
    i.need_vm, i.need_lg = vm, lg
    return i

def _ev(v, x): return v(x) if callable(v) else v

def resolve(trace):
    vm, lg = [], []
    for ins, x in trace:
        if ins.kind == "vmem": vm.append(_ev(ins.tag, x))
        elif ins.kind == "ds": lg.append(_ev(ins.tag, x))
        elif ins.kind == "wait":
            for need, hist, attr in ((ins.need_vm, vm, "vm"), (ins.need_lg, lg, "lg")):
                if need is None: continue
                need = _ev(need, x)
                if need == "all": n = 0
                else:
                    if isinstance(need, str): need = [need]
                    idx = [k for k, t in enumerate(hist) if t in need]
                    missing = [t for t in need if t not in hist]
                    assert not missing, f"wait for tags never issued: {missing} (x={x})"
                    if not idx: continue
                    n = len(hist) - 1 - max(idx)
                cur = getattr(ins, attr)
                setattr(ins, attr, n if cur is None else min(cur, n))

_R = re.compile(r"\b([vas])(?:\[(\d+):(\d+)\]|(\d+))")
def regs(op):
    r = set()
    for m in _R.finditer(op):
        if m.group(2) is not None: r.update((m.group(1), k) for k in range(int(m.group(2)), int(m.group(3)) + 1))
        else: r.add((m.group(1), int(m.group(4))))
    if re.search(r"\bvcc\b", op): r.add(("s", "vcc"))
    if re.search(r"\bm0\b", op): r.add(("s", "m0"))
    return r

def rw(text):
    parts = text.split(None, 1)
    op = parts[0]
    ops = [o.strip() for o in parts[1].split(",")] if len(parts) > 1 else []
    k = classify(text)
    if k in ("label", "meta", "wait", "barrier"): return set(), set(), set()
    if k == "mfma":
        if "smfmac" in op: return regs(ops[0]), regs(ops[1]) | regs(ops[2]) | regs(ops[3]), regs(ops[0])
        return regs(ops[0]), regs(ops[1]) | regs(ops[2]), regs(ops[3])
    if k == "ds":
        if op.startswith("ds_write"): return set(), set().union(*map(regs, ops)), set()
        return regs(ops[0]), set().union(*map(regs, ops[1:])), set()
    if k == "vmem":
        if "store" in op: return set(), set().union(*map(regs, ops)), set()
        if re.search(r"\blds\b", text): return set(), set().union(*map(regs, ops)) | {("s", "m0")}, set()
        return regs(ops[0]), set().union(*map(regs, ops[1:])), set()
    if op.startswith("s_cmp") or op.startswith("s_bitcmp") or op.startswith("s_cbranch") or op in ("s_branch", "s_nop", "s_endpgm", "s_sleep", "s_setprio"):
        return set(), set().union(set(), *map(regs, ops)), set()
    if "permlane" in op: return regs(ops[0]) | regs(ops[1]), regs(ops[0]) | regs(ops[1]), set()
    w = regs(ops[0]); r = set().union(set(), *map(regs, ops[1:]))
    if op.startswith("v_fmac") or op.startswith("v_writelane") or op.startswith("v_dot2c"): r |= w
    return w, r, set()

def verify(trace):
    errs = []
    pend_vm, pend_lg = [], []
    hist = []
    for ins, x in trace:
        t = ins.render()
        if t is None: continue
        k = classify(t)
        if k in ("label", "meta"): continue
        w, r, c = rw(t)
        touched = w | r | c
        for pend, nm in ((pend_vm, "vm"), (pend_lg, "lg")):
            for d, tt in pend:
                if d & touched and not (k == "ds" and nm == "lg" and not (d & (r | c))):
                    errs.append(f"[{nm} pending] x={x}: '{t}' touches dest of outstanding '{tt}'")
        dist = 0
        for (pk, pt, pw, pr, pc, st) in reversed(hist):
            need = 0
            if pk == "mfma":
                p8 = "32x32" in pt
                if k == "mfma":
                    if pw & r: need = 12 if p8 else 8
                    if pw & c and not (pw == c and (("32x32" in t) == p8)): need = max(need, 10 if p8 else 6)
                else:
                    if pw & touched: need = 12 if p8 else 8
                    if k in ("valu", "trans") and (pc & w): need = max(need, 7 if p8 else 3)
            elif pk in ("valu", "trans"):
                if k == "mfma" and pw & (r | c): need = 2
                if pk == "trans" and k == "valu" and pw & r: need = max(need, 1)
                if "permlane" in t and pw & r: need = max(need, 2)
                if ("readfirstlane" in t or "readlane" in t) and pw & r: need = max(need, 1)
                sw = {q for q in pw if q[0] == "s"}
                if sw & r and k == "vmem": need = max(need, 5)
                if sw & r and k in ("valu", "trans"): need = max(need, 2)
            elif pk == "salu":
                if ("s", "m0") in pw and k == "vmem" and ("s", "m0") in r: need = 1
            elif pk == "vmem" and "store_dwordx4" in pt:
                if k in ("valu", "trans") and (regs(pt.split(None, 1)[1].split(",")[0]) & w): need = 2
            if dist < need: errs.append(f"[hazard {need}] x={x}: '{pt}' -> '{t}' only {dist} states")
            dist += st
            if dist >= 12: break
        if k == "vmem": pend_vm.append((w, t))
        elif k == "ds": pend_lg.append((w, t))
        elif k == "wait":
            m = re.search(r"vmcnt\((\d+)\)", t)
            if m: n = int(m.group(1)); pend_vm = pend_vm[len(pend_vm) - n:] if n < len(pend_vm) else pend_vm
            m = re.search(r"lgkmcnt\((\d+)\)", t)
            if m: n = int(m.group(1)); pend_lg = pend_lg[len(pend_lg) - n:] if n < len(pend_lg) else pend_lg
        st = 1
        if t.startswith("s_nop"): st = int(t.split()[1]) + 1
        hist.append((k, t, w, r, c, st))
        if len(hist) > 16: hist.pop(0)
    return errs

def estimate(seq):
    cyc = 0; pipe_free = 0; valu_free = 0; mf_ok = 0
    for ins in seq:
        t = ins.render()
        if t is None: continue
        k = classify(t)
        if k in ("label", "meta"): continue
        if k == "mfma":
            s = max(cyc, pipe_free, valu_free, mf_ok)
            pipe_free = s + (32 if "32x32" in t else 16); valu_free = s + 8; cyc = s + 4
        elif k == "valu":
            s = max(cyc, valu_free); valu_free = cyc = s + 4
        elif k == "trans":
            s = max(cyc, valu_free); valu_free = cyc = s + 8
        elif k == "ds":
            valu_free = max(valu_free, cyc + 8); mf_ok = cyc + (12 if "b128" in t else 8); cyc += 4
        elif k == "vmem":
            cyc += 16
        elif k == "barrier":
            cyc += 28
        elif t.startswith("s_nop"):
            cyc += 4 * (int(t.split()[1]) + 1)
        else:
            cyc += 4
    return cyc
```

```python
import sys, argparse, struct
from asmlib import *
ap = argparse.ArgumentParser()
ap.add_argument("--lp", default="nt")
ap.add_argument("--sp", default="")
ap.add_argument("--spa", default="sc1")
ap.add_argument("--hmap", type=int, default=1)
ap.add_argument("--stamps", type=int, default=0)
ap.add_argument("--probe", type=int, default=-1)
ap.add_argument("--force_redo", type=int, default=0)
ap.add_argument("--cpf", type=int, default=1)
ap.add_argument("--dmapos", default="0,0,1,1")
ap.add_argument("--est", type=int, default=0)
a = ap.parse_args()
pol = lambda s: s.replace("+", " ").replace("-", "")
LP, SP, SPA = pol(a.lp), pol(a.sp), pol(a.spa)

NAME = "standalone__mha_softmax__near_ridge_kernel"
PIECE = 1056
SLOT = 16 * PIECE
NS = 3
RING = NS * SLOT
QP = 1088
REGW = 24 * QP
REG = RING
FLAGS = REG + 4 * REGW
LDS = FLAGS + 64
assert LDS <= 163840
KBYTES = 16 * 32 * 512 * 128 * 2
CSCALE = struct.unpack("<I", struct.pack("<f", 1.4426950408889634 * 128 ** -0.5))[0]

sWV = 3
sQp, sOp = 4, 10
SRD_Q, SRD_KV, SRD_O, SRD_X = 16, 20, 24, 28
sC, sPoff = 32, 33
sR, sW, sD, sT = 35, 36, 37, 38
sWpart, sIt, sCur = 39, 40, 41
sXoff, sXm = 42, 43
sNextSz, sReg, sKVoffN, sKVoff = 44, 45, 46, 48
sBad = 50
sFlag, sPend = 52, 54
sHA, sHB = 56, 57
sT2, sLo, sHi, sCm = 59, 60, 61, 62
SRD_W, sSt = 64, 68
vDMA, vK, vV, vQ, vOw, vOr, vKl, vVl, vX = 1, 2, 3, 4, 5, 6, 7, 8, 9
vT = 10
vM = 16
vStamp = 22
vS = 24
vE = 48
vO = 64
aQ, aK, aV, aL, aONE = 0, 96, 160, 224, 248

def vr(b, n): return f"v[{b}:{b+n-1}]"
def ar(b, n): return f"a[{b}:{b+n-1}]"
def sreg(b, n): return f"s[{b}:{b+n-1}]"
def Sbuf(n): return vS + 8 * (n % 3)
def Oreg(qt, dt): return vO + 32 * qt + 4 * dt

code = []
trace = []
ctx = [None]
def E(i, tr=True):
    if isinstance(i, str): i = Ins(i)
    code.append(i)
    if tr: trace.append((i, ctx[0]))
    return i
def A(*xs):
    for x in xs: E(x)
def L(s): E(s + ":")
def C(s): E("; " + s)

MF = "v_mfma_f32_16x16x32_bf16"
class U:
    def __init__(s, x, q, n): s.x, s.q, s.n = x, q, n
def qk_mfmas(u):
    r = []
    for kt in range(2):
        d = vr(Sbuf(u.n) + 4 * kt, 4)
        for ks in range(4):
            r.append(f"{MF} {d}, {ar(aK + 32*(u.x%2) + 16*kt + 4*ks, 4)}, {ar(aQ + 16*u.q + 4*ks, 4)}, {'0' if ks == 0 else d}")
    return r
def pv_mfmas(u, first=False):
    r = []
    p = vr(Sbuf(u.n), 4)
    for dt in range(8):
        d = vr(Oreg(u.q, dt), 4)
        r.append(f"{MF} {d}, {ar(aV + 32*(u.x%2) + 4*dt, 4)}, {p}, {'0' if first else d}")
    d = ar(aL + 4 * u.q, 4)
    r.append(f"{MF} {d}, {ar(aONE, 4)}, {p}, {'0' if first else d}")
    return r
def sm_f(u, j): return f"v_mul_f32 v{Sbuf(u.n)+j}, s{sC}, v{Sbuf(u.n)+j}"
def sm_e(u, j): return f"v_exp_f32 v{Sbuf(u.n)+j}, v{Sbuf(u.n)+j}"
def sm_c(u, k): return f"v_cvt_pk_bf16_f32 v{Sbuf(u.n)+k}, v{Sbuf(u.n)+2*k}, v{Sbuf(u.n)+2*k+1}"
def k_read(x, n, dyn=False):
    kt, ks = n // 4, n % 4
    base, off = (vK, 0) if dyn else (vKl, (x % NS) * SLOT)
    return Ins(f"ds_read_b128 {ar(aK + 32*(x%2) + 16*kt + 4*ks, 4)}, v{base} offset:{off + kt*512 + ks*64}", "K" if dyn else f"K{x}")
def v_read(x, n, dyn=False):
    dt, kt = n // 2, n % 2
    base, off = (vV, 0) if dyn else (vVl, (x % NS) * SLOT)
    return Ins(f"ds_read_b64_tr_b16 {ar(aV + 32*(x%2) + 4*dt + 2*kt, 2)}, v{base} offset:{off + kt*512 + dt*32}", "V" if dyn else f"V{x}")
def q_read(qt, ks, hd):
    return Ins(f"ds_read_b128 {ar(aQ + 16*qt + 4*ks, 4)}, v{vQ} offset:{qt*4*QP + 64*ks}", f"Q{hd}_{qt}")
def dma(srd, soff, off, tag):
    return Ins(f"buffer_load_dwordx4 v{vDMA}, {sreg(srd,4)}, {soff} offen offset:{off} {LP} lds", tag)
def o_store(reg, soff, off, sp):
    return Ins(f"buffer_store_dwordx4 {reg}, v{vDMA}, {sreg(SRD_O,4)}, {soff} offen offset:{off} {sp}", "st")

nst = [0]
def stamp():
    nst[0] += 1
    if a.probe == nst[0] - 1:
        A(f"s_memrealtime s[{sSt+6}:{sSt+7}]", "s_waitcnt lgkmcnt(0)")
    if not a.stamps: return
    A(f"s_memtime s[{sSt}:{sSt+1}]", f"s_memrealtime s[{sSt+2}:{sSt+3}]", "s_waitcnt lgkmcnt(0)",
      f"s_mov_b32 s{sSt+4}, m0", f"s_mov_b32 m0, s{sSt+5}",
      f"v_writelane_b32 v{vStamp}, s{sSt}, m0", f"v_writelane_b32 v{vStamp+1}, s{sSt+2}, m0",
      f"s_add_u32 s{sSt+5}, s{sSt+5}, 1", f"s_mov_b32 m0, s{sSt+4}")

COST = {"valu": 4, "trans": 8, "ds": 4, "vmem": 12, "salu": 0, "wait": 0, "barrier": 24}
class Phase:
    def __init__(s): s.mf, s.front, s.back, s.steps, s.pre = [], [], [], [], {}
    def step(s, qk=None, sm=None, pv=None, first=False, reads=(), early=False):
        g0 = len(s.mf)
        m = (qk_mfmas(qk) if qk else []) + (pv_mfmas(pv, first) if pv else [])
        s.mf += m; s.front += [[] for _ in m]; s.back += [[] for _ in m]
        s.steps.append(g0)
        if not qk: s.before(g0, "s_nop 1")
        reads = list(reads)
        if len(m) == 17 and sm:
            f = lambda j: sm_f(sm, j); c = lambda k: sm_c(sm, k)
            if early:
                pat = {0: [f(0)], 2: [f(1)], 4: [f(2)], 6: [f(3)], 8: [f(4), f(5)], 10: [c(0), f(6)], 12: [c(1), f(7)], 14: [c(2)], 16: [c(3)]}
                rg = [0, 2, 4, 6]
            else:
                pat = {0: [f(0), f(1)], 2: [f(2)], 4: [c(0), f(3)], 6: [f(4)], 8: [c(1), f(5)], 10: [f(6)], 12: [c(2), f(7)], 16: [c(3)]}
                rg = [2, 6, 10, 14]
            for j in range(8): pat[2 * j + 1] = [sm_e(sm, j)]
            for g, v in pat.items(): s.back[g0 + g] += [Ins(t) for t in v]
            for g in rg:
                if reads: s.front[g0 + g].append(reads.pop(0))
        elif sm:
            f = lambda j: sm_f(sm, j); c = lambda k: sm_c(sm, k); e = lambda j: sm_e(sm, j)
            pat = [[f(0), f(1), f(2), f(3)], [e(0), e(1)], [e(2), e(3)], [f(4), f(5), f(6), f(7)], [e(4), e(5)], [e(6), e(7)], [c(0), c(1)], [c(2), c(3)]]
            for g, v in enumerate(pat): s.back[g0 + g] += [Ins(t) for t in v]
        if reads: s.spread(reads, g0, len(s.mf) - 1)
        return g0
    def g(s, step, k=0): return s.steps[step] + k
    def load(s, g): return sum(COST[i.kind] for i in s.front[g] + s.back[g]) + 4 * max(0, len(s.front[g]) - 1)
    def put(s, g, *ins):
        for i in ins:
            if isinstance(i, str): i = Ins(i)
            (s.back if i.kind in ("valu", "trans") else s.front)[g].append(i)
    def before(s, g, *ins):
        s.pre.setdefault(g, []).extend(Ins(i) if isinstance(i, str) else i for i in ins)
    def spread(s, ops, g0, g1):
        ops = [Ins(i) if isinstance(i, str) else i for i in ops]
        tot = sum(max(COST[i.kind], 1) for i in ops); cum = 0
        ptr = g0; lastback = -1
        for i in ops:
            tg = min(g1, g0 + int(cum / tot * (g1 - g0 + 1))); cum += max(COST[i.kind], 1)
            if i.kind in ("valu", "trans"):
                cand = [g for g in range(max(ptr, tg - 1), min(g1, tg + 1) + 1) if s.load(g) + COST[i.kind] <= 8]
                g = cand[0] if cand else max(ptr, tg)
                s.back[g].append(i); lastback = g
            else:
                lo = max(ptr, tg, lastback + 1)
                if lo > g1:
                    g = g1; s.back[g].append(i); lastback = g
                else:
                    cand = [g for g in range(lo, min(g1, lo + 2) + 1) if not s.front[g]]
                    g = cand[0] if cand else lo
                    s.front[g].append(i)
            ptr = g
    def emit(s, name=None):
        n0 = len(code)
        for g, m in enumerate(s.mf):
            for i in s.pre.get(g, []): E(i)
            E(m)
            for i in s.front[g] + s.back[g]: E(i)
        if name: est.append((name, n0, len(code), len(s.mf)))
est = []

def sync(kv, lg="all"):
    return [W(vm=kv, lg=lg), Ins("s_barrier")]

def period(x, hd, dyn, ph=None, first=False):
    own = ph is None
    if own: ph = Phase()
    s0 = len(ph.steps)
    un = lambda t, q: U(t, q, 6 * t + q)
    for j in range(6):
        qk = un(x, j + 2) if j < 4 else un(x + 1, j - 4)
        sm = un(x, j + 1) if j < 5 else un(x + 1, 0)
        reads = [k_read(x + 1, 4 * j + i, dyn) for i in range(4)] if j < 2 else [v_read(x + 1, 4 * (j - 2) + i, dyn) for i in range(4)]
        ph.step(qk, sm, un(x, j), first, reads, early=(j == 5))
    G = lambda j, k: ph.g(s0 + j, k)
    if not dyn: ph.before(G(0, 0), *sync(f"KV{x+1}", [f"V{x}", "Q1_5"]))
    ph.put(G(3, 15), W(lg="K" if dyn else f"K{x+1}"))
    pos = [int(t) for t in a.dmapos.split(",")]
    used = {}
    for p in range(4):
        k = [16, 8][used.get(pos[p], 0)] if pos.count(pos[p]) == 1 else [8, 16][used.get(pos[p], 0)]
        used[pos[p]] = used.get(pos[p], 0) + 1
        if dyn:
            ph.put(G(pos[p], k - 1), f"s_add_u32 m0, s{sW}, {32*p}")
            ph.put(G(pos[p], k), dma(SRD_KV, f"s{sPoff}", 1024 * p, lambda y: f"KV{y+3}"))
        else:
            ph.put(G(pos[p], k - 1), f"s_add_u32 m0, s{sWpart}, {(x % NS) * SLOT + 32*p}")
            ph.put(G(pos[p], k), dma(SRD_KV, f"s{sPoff}", 1024 * p, f"KV{x+3}"))
    ph.put(G(4, 1), f"s_add_u32 s{sPoff}, s{sPoff}, 8192")
    if dyn:
        ph.put(G(4, 3), f"s_add_u32 s{sW}, s{sR}, s{sWpart}")
        ph.put(G(4, 5), f"s_add_u32 s{sT}, s{sR}, {SLOT}")
        ph.put(G(4, 7), f"s_cmp_eq_u32 s{sT}, {RING}")
        ph.put(G(4, 9), f"s_cselect_b32 s{sT}, 0, s{sT}")
        ph.put(G(4, 11), f"s_sub_u32 s{sD}, s{sT}, s{sR}")
        ph.put(G(4, 13), f"s_mov_b32 s{sR}, s{sT}")
        ph.put(G(4, 14), f"v_add_u32 v{vK}, s{sD}, v{vK}")
        ph.put(G(5, 14), f"v_add_u32 v{vV}, s{sD}, v{vV}")
        if x % 2 == 0:
            ph.put(G(5, 1), f"s_add_u32 s{sIt}, s{sIt}, 1")
            ph.put(G(5, 3), f"s_cmp_eq_u32 s{sIt}, 6")
            ph.put(G(5, 5), f"s_cselect_b32 s{SRD_KV+2}, s{sNextSz}, s{SRD_KV+2}")
            ph.put(G(5, 7), f"s_cselect_b32 s{sPoff}, s{sKVoffN}, s{sPoff}")
        if hd == 0:
            for p in range(2):
                ph.put(G(2 + p, 13), f"s_add_u32 m0, s{sXm}, {(QP-1024)*p}")
                ph.put(G(2 + p, 16), dma(SRD_X, f"s{sXoff}", 1024 * p, lambda y: f"QD1_{(y-2)//2}"))
            ph.put(G(5, 9), f"s_add_u32 s{sXm}, s{sXm}, {2*QP}")
            ph.put(G(5, 11), f"s_add_u32 s{sXoff}, s{sXoff}, 2048")
        else:
            for p in range(2):
                ph.put(G(2 + p, 16), o_store(vr(vE + 4*p, 4), f"s{sXoff}", 1024 * p, SPA))
            ph.put(G(5, 11), f"s_add_u32 s{sXoff}, s{sXoff}, 2048")
        if x % 2 == 1:
            ph.put(G(5, 15), f"s_cmp_lt_u32 s{sIt}, 6")
    if hd == 1:
        ph.put(G(3, 14), Ins(f"ds_read_b128 {vr(vE, 4)}, v{vX}", "T"))
        ph.put(G(4, 16), Ins(f"ds_read_b128 {vr(vE + 4, 4)}, v{vX} offset:{QP}", "T"))
        ph.put(G(5, 16), f"v_add_u32 v{vX}, {2*QP}, v{vX}")
    return ph

def main_loop(hd, x0, x1):
    A(*sync(f"KV{x0+1}"))
    if x0 % 2: A(f"s_branch L_mid{hd}")
    E(".p2align 6" if x0 % 2 else ".p2align 3")
    n0 = len(code); t0 = len(trace)
    L(f"L_loop{hd}")
    halves = []
    for par in range(2):
        if par: L(f"L_mid{hd}")
        b = len(code)
        if a.stamps == 2: stamp()
        period(par, hd, True).emit(f"period{hd}{par}")
        A(*sync(lambda y: f"KV{y+2}"))
        if par: A(f"s_cbranch_scc1 L_loop{hd}")
        halves.append(code[b:])
    del trace[t0:]
    for x in range(x0, x1 + 1):
        trace.extend((i, x) for i in halves[x % 2])

def window(srd, ptr, hreg):
    A(f"s_mul_i32 s{sT}, s{hreg}, 98304", f"s_mul_i32 s{sT2}, s{sWV}, 24576", f"s_add_u32 s{sT}, s{sT}, s{sT2}",
      f"s_add_u32 s{srd}, s{ptr}, s{sT}", f"s_addc_u32 s{srd+1}, s{ptr+1}, 0", f"s_mov_b32 s{srd+2}, 24576")
def kv_offset(hreg, kv):
    A(f"s_lshl_b32 s{kv}, s{hreg}, 17", f"s_and_b32 s{sT}, s{sWV}, 1", f"s_lshl_b32 s{sT}, s{sT}, 12", f"s_add_u32 s{kv}, s{kv}, s{sT}")
def kv_issue(x):
    r = []
    for p in range(4):
        r += [f"s_add_u32 m0, s{sWpart}, {(x % NS)*SLOT + 32*p}", "s_nop 0", dma(SRD_KV, f"s{sPoff}", 1024*p, f"KV{x}")]
    return r + [f"s_add_u32 s{sPoff}, s{sPoff}, 8192"]
def q_issue(k):
    r = [f"s_mov_b32 s{sT2}, {4096*k}"]
    for p in range(4):
        r += [f"s_add_u32 m0, s{sReg}, {4*k*QP + (QP-1024)*p}", "s_nop 0", dma(SRD_Q, f"s{sT2}", 1024*p, f"QD0_{k}")]
    return r

def norm_ops(qt, packed=False):
    t = vT + 2 * (qt % 2)
    r = [f"v_accvgpr_read_b32 v{t+1}, a{aL + 4*qt}", f"v_rcp_f32 v{t}, v{t+1}",
         f"v_cmp_nle_f32 vcc, s{sLo}, v{t+1}", f"v_cmp_nge_f32 {sreg(sCm,2)}, s{sHi}, v{t+1}"]
    for dt in range(8):
        o = Oreg(qt, dt)
        if packed:
            r += [f"v_pk_mul_f32 {vr(o,2)}, {vr(o,2)}, {vr(t,2)} op_sel_hi:[1,0]", f"v_pk_mul_f32 {vr(o+2,2)}, {vr(o+2,2)}, {vr(t,2)} op_sel_hi:[1,0]"]
        else:
            r += [f"v_mul_f32 v{o+j}, v{o+j}, v{t}" for j in range(4)]
        if dt == 0: r += [f"s_or_b64 {sreg(sBad,2)}, {sreg(sBad,2)}, vcc"]
        if dt == 1: r += [f"s_or_b64 {sreg(sBad,2)}, {sreg(sBad,2)}, {sreg(sCm,2)}"]
        r += [f"v_cvt_pk_bf16_f32 v{o}, v{o}, v{o+1}", f"v_cvt_pk_bf16_f32 v{o+1}, v{o+2}, v{o+3}",
              Ins(f"ds_write_b64 v{vOw}, {vr(o,2)} offset:{qt*4*QP + 32*dt}", f"W{qt}")]
    return r
def back_ops(qt):
    return [Ins(f"ds_read_b128 {vr(Oreg(qt, j), 4)}, v{vOr} offset:{qt*4*QP + QP*j}", f"B{qt}") for j in range(4)]
def store_ops(qt, sp):
    return [f"s_mov_b32 s{sT2}, {4096*qt}", W(lg=f"B{qt}")] + [o_store(vr(Oreg(qt, j), 4), f"s{sT2}", 1024*j, sp) for j in range(4)]
def flag_ops(bit):
    return [f"s_cmp_lg_u64 {sreg(sBad,2)}, 0", f"s_cselect_b32 s{sT2}, {bit}, 0", f"s_or_b32 s{sFlag}, s{sFlag}, s{sT2}", f"s_mov_b64 {sreg(sBad,2)}, 0"]

def finish(hd):
    b = 16 * hd
    order = [(14, 0), (14, 1), (14, 2), (15, 0), (15, 1), (15, 2), (14, 3), (15, 3), (14, 4), (15, 4), (14, 5), (15, 5)]
    us = [U(b + t, q, 6 * (b + 14) + i) for i, (t, q) in enumerate(order)]
    if hd == 0: us += [U(16, 0, 96), U(16, 1, 97)]
    else: us += [None, None]
    ph = Phase()
    for j in range(12):
        reads = []
        if j == 0: reads = [k_read(b + 15, n) for n in range(8)]
        if j in (1, 2): reads = [v_read(b + 15, 8 * (j - 1) + n) for n in range(8)]
        if j == 0:
            g0 = ph.step(us[j + 2], us[j + 1], us[j], reads=reads[:4], early=True)
            for n in range(4): ph.put(g0 + 1 + 2 * n, reads[4 + n])
        else:
            ph.step(us[j + 2], us[j + 1], us[j], reads=reads)
    G = ph.g
    ph.put(G(0, 16), W(lg=f"K{b+15}"))
    ph.put(G(3, 7), W(lg=f"V{b+15}"))
    if hd == 0:
        for p in range(4):
            ph.put(G(p // 2, [9, 13][p % 2]), f"s_add_u32 m0, s{sWpart}, {(17 % NS) * SLOT + 32*p}")
            ph.put(G(p // 2, [11, 15][p % 2]), dma(SRD_KV, f"s{sPoff}", 1024 * p, "KV17"))
        ph.put(G(2, 15), f"s_add_u32 s{sPoff}, s{sPoff}, 8192")
        qs = {0: 3, 1: 3, 2: 4, 3: 6, 4: 8, 5: 10}
        pre = {k: [W(vm=f"QD1_{k}")] + [q_read(k, ks, 1) for ks in range(4)] for k in range(6)}
        ph.spread(pre[0] + pre[1], G(3, 0), G(3, 16))
        ph.spread(pre[2], G(4, 0), G(4, 8)); ph.spread(pre[3], G(6, 0), G(6, 8)); ph.spread(pre[4], G(8, 0), G(8, 7))
        ph.spread(pre[5], G(10, 0), G(10, 7))
        ph.before(G(8, 8), *sync("KV16", "V15"))
        ph.spread([k_read(16, n) for n in range(8)], G(8, 8), G(9, 8))
        ph.put(G(9, 16), W(lg=["K16", "Q1_0", "Q1_1"]))
        for p in range(4):
            ph.put(G(9, 9 + 2 * p), f"s_add_u32 m0, s{sWpart}, {(18 % NS) * SLOT + 32*p}")
            ph.put(G(9, 10 + 2 * p), dma(SRD_KV, f"s{sPoff}", 1024 * p, "KV18"))
        ph.put(G(10, 8), f"s_add_u32 s{sPoff}, s{sPoff}, 8192")
        ph.spread([v_read(16, n) for n in range(16)], G(10, 10), G(11, 8))
        period(16, 1, False, ph, first=True)
        ph.spread(norm_ops(0) + norm_ops(1) + norm_ops(2), G(4, 4), G(9, 16))
        ph.spread(norm_ops(3) + norm_ops(4), G(10, 0), G(13, 16))
        ph.spread(norm_ops(5) + flag_ops(1), G(14, 0), G(16, 16))
        ph.emit("boundary")
    else:
        ops = norm_ops(0) + back_ops(0)
        for k in (1, 2):
            n = norm_ops(k); ops += n[:30] + store_ops(k - 1, SP) + n[30:] + back_ops(k)
        ph.spread(ops, G(4, 4), G(8, 2))
        n = norm_ops(3)
        ph.spread(n[:30] + store_ops(2, SP) + n[30:] + back_ops(3), G(8, 4), G(9, 16))
        n = norm_ops(4)
        ph.spread(n[:30] + store_ops(3, SP) + n[30:] + back_ops(4), G(10, 3), G(11, 8))
        ph.emit("finish")
        n = norm_ops(5, packed=True)
        A("s_nop 2")
        A(*(n[:20] + store_ops(4, SP) + n[20:] + back_ops(5) + flag_ops(2) + store_ops(5, SP)))

L(NAME)
A("s_cmp_ge_u32 s2, 256", "s_cbranch_scc1 L_exit", "s_load_dwordx8 s[4:11], s[0:1], 0")
if a.stamps: A(f"s_load_dwordx2 s[{SRD_W}:{SRD_W+1}], s[0:1], 40", f"s_mov_b32 s{sSt+5}, 0")
A(f"v_lshrrev_b32 v{vT}, 6, v0", "v_and_b32 v0, 63, v0", f"v_readfirstlane_b32 s{sWV}, v{vT}", f"v_lshlrev_b32 v{vDMA}, 4, v0")
if a.hmap == 0: A(f"s_lshl_b32 s{sHA}, s2, 1", f"s_add_u32 s{sHB}, s{sHA}, 1")
else: A(f"s_mov_b32 s{sHA}, s2", f"s_add_u32 s{sHB}, s2, 256")
for r in (SRD_Q, SRD_KV, SRD_O, SRD_X): A(f"s_mov_b32 s{r+3}, 0x20000")
A(f"s_mul_i32 s{sWpart}, s{sWV}, {4*PIECE}", f"s_mul_i32 s{sReg}, s{sWV}, {REGW}", f"s_add_u32 s{sReg}, s{sReg}, {REG}")
A(f"s_mov_b32 s{SRD_KV+2}, {KBYTES}")
kv_offset(sHA, sPoff)
if a.cpf:
    C("touch two 128-byte lines of this kernel's code per wave so that later instruction fetches hit in L2")
    A("s_getpc_b64 s[12:13]", f"s_lshr_b32 s{sT}, s2, 3", f"s_lshl_b32 s{sT}, s{sT}, 2", f"s_add_u32 s{sT}, s{sT}, s{sWV}", f"s_lshl_b32 s{sT}, s{sT}, 8",
      f"v_and_b32 v{vT}, 1, v0", f"v_lshl_add_u32 v{vT}, v{vT}, 7, s{sT}", f"v_min_u32 v{vT}, L_exit-{NAME}-512, v{vT}",
      Ins(f"global_load_dword v{vT+5}, v{vT}, s[12:13]", "code"))
A(f"s_cmp_lt_u32 s{sWV}, 2", "s_waitcnt lgkmcnt(0)", f"s_cselect_b64 {sreg(SRD_KV,2)}, s[6:7], s[8:9]")
if a.stamps: A(f"s_mov_b32 s{SRD_W+2}, 268435456", f"s_mov_b32 s{SRD_W+3}, 0x20000")
stamp()
A(*kv_issue(0))
window(SRD_Q, sQp, sHA)
A(*q_issue(0))
C("---- per-lane LDS addresses (i = lane%16, g = lane/16)")
A(f"v_and_b32 v{vT}, 15, v0", f"v_lshrrev_b32 v{vT+1}, 4, v0")
A(f"v_and_b32 v{vT+2}, 7, v{vT}", f"v_mul_u32_u24 v{vKl}, {PIECE}, v{vT+2}", f"v_lshrrev_b32 v{vT+2}, 3, v{vT}",
  f"v_lshl_add_u32 v{vKl}, v{vT+2}, 8, v{vKl}", f"v_lshl_add_u32 v{vKl}, v{vT+1}, 4, v{vKl}")
A(f"v_bfe_u32 v{vT+2}, v0, 2, 3", f"v_mul_u32_u24 v{vVl}, {PIECE}, v{vT+2}", f"v_lshrrev_b32 v{vT+2}, 5, v0",
  f"v_lshl_add_u32 v{vVl}, v{vT+2}, 8, v{vVl}", f"v_and_b32 v{vT+2}, 3, v0", f"v_lshl_add_u32 v{vVl}, v{vT+2}, 3, v{vVl}",
  f"v_add_u32 v{vVl}, {8*PIECE}, v{vVl}")
A(f"v_and_b32 v{vT+2}, 3, v{vT}", f"v_mul_u32_u24 v{vQ}, {QP}, v{vT+2}", f"v_lshrrev_b32 v{vT+3}, 2, v{vT}",
  f"v_lshl_add_u32 v{vQ}, v{vT+3}, 8, v{vQ}", f"v_lshl_add_u32 v{vQ}, v{vT+1}, 4, v{vQ}", f"v_add_u32 v{vQ}, s{sReg}, v{vQ}")
A(f"v_lshl_add_u32 v{vT+2}, v{vT+2}, 2, v{vT+3}", f"v_mul_u32_u24 v{vOw}, 272, v{vT+2}", f"v_lshl_add_u32 v{vOw}, v{vT+1}, 3, v{vOw}",
  f"v_add_u32 v{vOw}, s{sReg}, v{vOw}", f"v_mul_u32_u24 v{vOr}, 272, v{vT+1}", f"v_lshl_add_u32 v{vOr}, v{vT}, 4, v{vOr}",
  f"v_add_u32 v{vOr}, s{sReg}, v{vOr}", f"v_mov_b32 v{vX}, v{vOr}", f"v_mov_b32 v{vT}, 0x3f803f80")
for j in range(4): A(f"v_accvgpr_write_b32 a{aONE+j}, v{vT}")
A(*kv_issue(1))
window(SRD_O, sOp, sHA)
window(SRD_X, sQp, sHB)
kv_offset(sHB, sKVoffN)
A(f"s_mov_b32 s{sNextSz}, {KBYTES}", f"s_mov_b32 s{sFlag}, {a.force_redo}", f"s_mov_b64 {sreg(sBad,2)}, 0", f"s_mov_b32 s{sC}, 0x{CSCALE:08x}",
  f"s_mov_b32 s{sLo}, 0x30800000", f"s_mov_b32 s{sHi}, 0x4e800000",
  f"s_mov_b32 s{sIt}, 0", f"s_mov_b32 s{sXoff}, 0", f"s_mov_b32 s{sXm}, s{sReg}",
  f"s_mov_b32 s{sR}, {(3 % NS) * SLOT}", f"s_add_u32 s{sW}, s{sWpart}, {(2 % NS) * SLOT}",
  f"v_add_u32 v{vK}, {(3 % NS) * SLOT}, v{vKl}", f"v_add_u32 v{vV}, {(3 % NS) * SLOT}, v{vVl}")
C("---- start-up: tiles 0 and 1 are processed q-major while Q arrives")
us = [U(t, q, 2 * q + t) for q in range(6) for t in range(2)]
def steps(lo, hi):
    ph = Phase()
    for n in range(lo, hi):
        g = lambda k: us[k] if 0 <= k < 12 else None
        ph.step(g(n), g(n - 1), g(n - 2), first=(n % 2 == 0))
    ph.emit()
A(*sync("KV0")); A(*q_issue(1))
A(*[k_read(0, n) for n in range(8)]); A(*[v_read(0, n) for n in range(16)])
A(W(vm="QD0_0")); A(*[q_read(0, ks, 0) for ks in range(4)]); A(*q_issue(2)); A(W(lg="all"))
steps(0, 1)
A(*sync("KV1")); A(*[k_read(1, n) for n in range(8)]); A(*[v_read(1, n) for n in range(16)]); A(*q_issue(3)); A(W(lg="K1"))
steps(1, 2)
nxt = {1: q_issue(4), 2: q_issue(5), 3: kv_issue(2), 4: kv_issue(3), 5: kv_issue(4)}
for q in range(1, 6):
    A(W(vm=f"QD0_{q}")); A(*[q_read(q, ks, 0) for ks in range(4)])
    if q == 2: A("s_barrier")
    A(*nxt[q]); A(W(lg="all"))
    steps(2 * q, 2 * q + 2 + (2 if q == 5 else 0))
A(*sync("KV2")); A(*[k_read(2, n) for n in range(8)])
A(*[v_read(2, n) for n in range(7)]); A(W(lg="K2"))
ph = Phase()
ph.step(U(2, 0, 12), reads=[v_read(2, n) for n in range(7, 16)])
ph.step(U(2, 1, 13), U(2, 0, 12))
ph.emit()
stamp()
main_loop(0, 2, 13)
stamp()
finish(0)
A(f"s_mov_b32 s{sNextSz}, 0", f"s_mov_b32 s{sIt}, 0", f"s_mov_b32 s{sXoff}, 0",
  f"s_mov_b32 s{sR}, {(18 % NS) * SLOT}", f"s_add_u32 s{sW}, s{sWpart}, {(17 % NS) * SLOT}",
  f"v_add_u32 v{vK}, {(18 % NS) * SLOT}, v{vKl}", f"v_add_u32 v{vV}, {(18 % NS) * SLOT}, v{vVl}")
stamp()
main_loop(1, 17, 29)
stamp()
window(SRD_O, sOp, sHB)
finish(1)
stamp()
C("---- combine the per-wave 'row sum left the safe range' flags of the workgroup")
A(f"s_lshl_b32 s{sT}, s{sWV}, 2", f"s_add_u32 s{sT}, s{sT}, {FLAGS}", f"v_mov_b32 v{vT}, s{sT}", f"v_mov_b32 v{vT+1}, s{sFlag}",
  f"ds_write_b32 v{vT}, v{vT+1}", f"v_mov_b32 v{vT}, {FLAGS}", "s_waitcnt lgkmcnt(0)", "s_barrier",
  f"ds_read_b128 {vr(vT+2,4)}, v{vT}", "s_waitcnt lgkmcnt(0)",
  f"v_or_b32 v{vT+2}, v{vT+2}, v{vT+3}", f"v_or3_b32 v{vT+2}, v{vT+2}, v{vT+4}, v{vT+5}", "s_nop 0",
  f"v_readfirstlane_b32 s{sPend}, v{vT+2}", "s_nop 3")
L("L_pend")
A(f"s_cmp_eq_u32 s{sPend}, 0", "s_cbranch_scc1 L_done")
C("==== rare path: redo a head, subtracting the true row maximum (plain, unpipelined code)")
A(f"s_bitcmp1_b32 s{sPend}, 0", f"s_cselect_b32 s{sCur}, s{sHA}, s{sHB}", f"s_cselect_b32 s{sT}, 2, 0", f"s_and_b32 s{sPend}, s{sPend}, s{sT}",
  "s_waitcnt vmcnt(0) lgkmcnt(0)", "s_barrier", f"s_mov_b32 s{SRD_KV+2}, {KBYTES}")
window(SRD_Q, sQp, sCur); window(SRD_O, sOp, sCur)
for k in range(6): A(*q_issue(k))
for j in range(6): A(f"v_mov_b32 v{vM+j}, 0xff800000")
A("s_waitcnt vmcnt(0)")
for k in range(6):
    A(*[q_read(k, ks, 0) for ks in range(4)]); A("s_waitcnt lgkmcnt(0)")
kv_offset(sCur, sPoff)
A(f"s_mov_b32 s{sIt}, 0")
L("L_maxloop")
A(*kv_issue(0)); A("s_waitcnt vmcnt(0)", "s_barrier")
A(*[k_read(0, n) for n in range(8)]); A("s_waitcnt lgkmcnt(0)", "s_barrier")
for qt in range(6):
    A(*qk_mfmas(U(0, qt, 0))); A("s_nop 7")
    for j in range(4): A(f"v_max3_f32 v{vM+qt}, v{vM+qt}, v{vS+2*j}, v{vS+2*j+1}")
A(f"s_add_u32 s{sIt}, s{sIt}, 1", f"s_cmp_lt_u32 s{sIt}, 16", "s_cbranch_scc1 L_maxloop")
for qt in range(6):
    m = vM + qt
    A(f"v_mov_b32 v{vT}, v{m}", "s_nop 1", f"v_permlane32_swap_b32 v{vT}, v{m}", "s_nop 1", f"v_max_f32 v{m}, v{m}, v{vT}",
      f"v_mov_b32 v{vT}, v{m}", "s_nop 1", f"v_permlane16_swap_b32 v{vT}, v{m}", "s_nop 1", f"v_max_f32 v{m}, v{m}, v{vT}",
      f"v_mul_f32 v{m}, s{sC}, v{m}", f"v_sub_f32 v{m}, 0, v{m}")
for r in range(vO, 256, 2): A(f"v_mov_b64 {vr(r,2)}, 0")
for r in range(24): A(f"v_accvgpr_write_b32 a{aL+r}, 0")
kv_offset(sCur, sPoff)
A(f"s_mov_b32 s{sIt}, 0")
L("L_slowloop")
A(*kv_issue(0)); A("s_waitcnt vmcnt(0)", "s_barrier")
A(*[k_read(0, n) for n in range(8)]); A("s_waitcnt lgkmcnt(0)")
A(*[v_read(0, n) for n in range(16)]); A("s_waitcnt lgkmcnt(0)", "s_barrier")
for qt in range(6):
    u = U(0, qt, 0)
    A(*qk_mfmas(u)); A("s_nop 7")
    for j in range(8): A(f"v_fma_f32 v{vS+j}, v{vS+j}, s{sC}, v{vM+qt}")
    for j in range(8): A(sm_e(u, j))
    A("s_nop 0")
    for k in range(4): A(sm_c(u, k))
    A("s_nop 1"); A(*pv_mfmas(u))
A(f"s_add_u32 s{sIt}, s{sIt}, 1", f"s_cmp_lt_u32 s{sIt}, 16", "s_cbranch_scc1 L_slowloop")
A("s_nop 7")
for qt in range(6): A(*(norm_ops(qt, packed=True) + back_ops(qt) + store_ops(qt, SP)))
A("s_branch L_pend")
L("L_done")
if a.probe >= 0:
    A("s_waitcnt vmcnt(0)"); stamp()
    L("L_spin")
    A(f"s_memrealtime s[{sSt}:{sSt+1}]", "s_waitcnt lgkmcnt(0)", f"s_sub_u32 s{sSt}, s{sSt}, s{sSt+6}", f"s_cmp_lt_u32 s{sSt}, 10000", "s_cbranch_scc1 L_spin")
if a.stamps:
    A("s_waitcnt vmcnt(0)"); stamp()
    A(f"v_lshlrev_b32 v{vT}, 3, v0", f"s_lshl_b32 s{sT}, s2, 2", f"s_add_u32 s{sT}, s{sT}, s{sWV}", f"s_lshl_b32 s{sT}, s{sT}, 9",
      f"buffer_store_dwordx2 {vr(vStamp,2)}, v{vT}, {sreg(SRD_W,4)}, s{sT} offen")
L("L_exit")
A("s_endpgm")

resolve(trace)
errs = verify(trace)
for e in errs[:40]: print("VERIFY:", e, file=sys.stderr)
if a.est:
    for (name, n0, n1, nm) in est: print(f"est {name}: {estimate(code[n0:n1])} cycles, {nm} mfma", file=sys.stderr)
hdr = open("standalone__mha_softmax__near_ridge.s.ref").read().split("; Override launch")[0]
o = [hdr.rstrip(), f"; @launch grid=(256,1,1) block=(256,1,1) lds={LDS}", '.amdgcn_target "amdgcn-amd-amdhsa--gfx950"',
     ".text", f".globl {NAME}", ".p2align 8", f".type {NAME},@function"]
for i in code:
    t = i.render()
    if t is None: continue
    o.append(t if i.kind == "label" or t.startswith(".") else "    " + t.rstrip())
o += ['.section .rodata,"a"', ".p2align 6", f".amdhsa_kernel {NAME}", """  .amdhsa_next_free_vgpr 512
  .amdhsa_next_free_sgpr 102
  .amdhsa_accum_offset 256
  .amdhsa_group_segment_fixed_size 0
  .amdhsa_kernarg_size 48
  .amdhsa_user_sgpr_count 2
  .amdhsa_user_sgpr_kernarg_segment_ptr 1
  .amdhsa_system_sgpr_workgroup_id_x 1
  .amdhsa_float_denorm_mode_32 3""", ".end_amdhsa_kernel"]
print("\n".join(o))
sys.exit(1 if errs else 0)
```

```python
import re

class Ins:
    __slots__ = ("text", "kind", "tag", "need_vm", "need_lg", "vm", "lg", "force")
    def __init__(self, text, tag=None):
        self.text = text
        self.tag = tag
        self.need_vm = None
        self.need_lg = None
        self.vm = None
        self.lg = None
        self.force = False
        self.kind = classify(text)
    def render(self):
        if self.kind == "wait" and (self.need_vm is not None or self.need_lg is not None):
            p = []
            if self.need_vm is not None and self.vm is not None: p.append(f"vmcnt({min(self.vm, 63)})")
            if self.need_lg is not None and self.lg is not None: p.append(f"lgkmcnt({min(self.lg, 15)})")
            if not p: return None
            return "s_waitcnt " + " ".join(p)
        return self.text

def classify(t):
    op = t.split()[0] if t.split() else ""
    if t.endswith(":"): return "label"
    if op.startswith(";") or op.startswith("."): return "meta"
    if "mfma" in op: return "mfma"
    if op in ("v_exp_f32", "v_rcp_f32", "v_log_f32"): return "trans"
    if op.startswith("v_"): return "valu"
    if op.startswith("ds_"): return "ds"
    if op.startswith("buffer_") or op.startswith("global_"): return "vmem"
    if op == "s_waitcnt": return "wait"
    if op == "s_barrier": return "barrier"
    if op.startswith("s_load") or op.startswith("s_mem"): return "smem"
    if op.startswith("s_"): return "salu"
    raise Exception("classify: " + t)

def W(vm=None, lg=None):
    i = Ins("s_waitcnt")
    i.need_vm, i.need_lg = vm, lg
    return i

def _ev(v, x): return v(x) if callable(v) else v

def resolve(trace):
    vm, lg = [], []
    for ins, x in trace:
        if ins.kind == "vmem": vm.append(_ev(ins.tag, x))
        elif ins.kind == "ds": lg.append(_ev(ins.tag, x))
        elif ins.kind == "wait":
            for need, hist, attr in ((ins.need_vm, vm, "vm"), (ins.need_lg, lg, "lg")):
                if need is None: continue
                need = _ev(need, x)
                if need == "all": n = 0
                else:
                    if isinstance(need, str): need = [need]
                    idx = [k for k, t in enumerate(hist) if t in need]
                    missing = [t for t in need if t not in hist]
                    assert not missing, f"wait for tags never issued: {missing} (x={x})"
                    if not idx: continue
                    n = len(hist) - 1 - max(idx)
                cur = getattr(ins, attr)
                setattr(ins, attr, n if cur is None else min(cur, n))

_R = re.compile(r"\b([vas])(?:\[(\d+):(\d+)\]|(\d+))")
def regs(op):
    r = set()
    for m in _R.finditer(op):
        if m.group(2) is not None: r.update((m.group(1), k) for k in range(int(m.group(2)), int(m.group(3)) + 1))
        else: r.add((m.group(1), int(m.group(4))))
    if re.search(r"\bvcc\b", op): r.add(("s", "vcc"))
    if re.search(r"\bm0\b", op): r.add(("s", "m0"))
    return r

def rw(text):
    parts = text.split(None, 1)
    op = parts[0]
    ops = [o.strip() for o in parts[1].split(",")] if len(parts) > 1 else []
    k = classify(text)
    if k in ("label", "meta", "wait", "barrier"): return set(), set(), set()
    if k == "mfma":
        if "smfmac" in op: return regs(ops[0]), regs(ops[1]) | regs(ops[2]) | regs(ops[3]), regs(ops[0])
        return regs(ops[0]), regs(ops[1]) | regs(ops[2]), regs(ops[3])
    if k == "ds":
        if op.startswith("ds_write"): return set(), set().union(*map(regs, ops)), set()
        return regs(ops[0]), set().union(*map(regs, ops[1:])), set()
    if k == "vmem":
        if "store" in op: return set(), set().union(*map(regs, ops)), set()
        if re.search(r"\blds\b", text): return set(), set().union(*map(regs, ops)) | {("s", "m0")}, set()
        return regs(ops[0]), set().union(*map(regs, ops[1:])), set()
    if op.startswith("s_cmp") or op.startswith("s_bitcmp") or op.startswith("s_cbranch") or op in ("s_branch", "s_nop", "s_endpgm", "s_sleep", "s_setprio"):
        return set(), set().union(set(), *map(regs, ops)), set()
    if "permlane" in op: return regs(ops[0]) | regs(ops[1]), regs(ops[0]) | regs(ops[1]), set()
    w = regs(ops[0]); r = set().union(set(), *map(regs, ops[1:]))
    if op.startswith("v_fmac") or op.startswith("v_writelane") or op.startswith("v_dot2c"): r |= w
    return w, r, set()

def verify(trace):
    errs = []
    pend_vm, pend_lg = [], []
    hist = []
    for ins, x in trace:
        t = ins.render()
        if t is None: continue
        k = classify(t)
        if k in ("label", "meta"): continue
        w, r, c = rw(t)
        touched = w | r | c
        for pend, nm in ((pend_vm, "vm"), (pend_lg, "lg")):
            for d, tt in pend:
                if d & touched and not (k == "ds" and nm == "lg" and not (d & (r | c))):
                    errs.append(f"[{nm} pending] x={x}: '{t}' touches dest of outstanding '{tt}'")
        dist = 0
        for (pk, pt, pw, pr, pc, st) in reversed(hist):
            need = 0
            if pk == "mfma":
                p8 = "32x32" in pt
                if k == "mfma":
                    if pw & r: need = 12 if p8 else 8
                    if pw & c and not (pw == c and (("32x32" in t) == p8)): need = max(need, 10 if p8 else 6)
                else:
                    if pw & touched: need = 12 if p8 else 8
                    if k in ("valu", "trans") and (pc & w): need = max(need, 7 if p8 else 3)
            elif pk in ("valu", "trans"):
                if k == "mfma" and pw & (r | c): need = 2
                if pk == "trans" and k == "valu" and pw & r: need = max(need, 1)
                if "permlane" in t and pw & r: need = max(need, 2)
                if ("readfirstlane" in t or "readlane" in t) and pw & r: need = max(need, 1)
                sw = {q for q in pw if q[0] == "s"}
                if sw & r and k == "vmem": need = max(need, 5)
                if sw & r and k in ("valu", "trans"): need = max(need, 2)
            elif pk == "salu":
                if ("s", "m0") in pw and k == "vmem" and ("s", "m0") in r: need = 1
            elif pk == "vmem" and "store_dwordx4" in pt:
                if k in ("valu", "trans") and (regs(pt.split(None, 1)[1].split(",")[0]) & w): need = 2
            if dist < need: errs.append(f"[hazard {need}] x={x}: '{pt}' -> '{t}' only {dist} states")
            dist += st
            if dist >= 12: break
        if k == "vmem": pend_vm.append((w, t))
        elif k == "ds": pend_lg.append((w, t))
        elif k == "wait":
            m = re.search(r"vmcnt\((\d+)\)", t)
            if m: n = int(m.group(1)); pend_vm = pend_vm[len(pend_vm) - n:] if n < len(pend_vm) else pend_vm
            m = re.search(r"lgkmcnt\((\d+)\)", t)
            if m: n = int(m.group(1)); pend_lg = pend_lg[len(pend_lg) - n:] if n < len(pend_lg) else pend_lg
        st = 1
        if t.startswith("s_nop"): st = int(t.split()[1]) + 1
        hist.append((k, t, w, r, c, st))
        if len(hist) > 16: hist.pop(0)
    return errs

def estimate(seq):
    cyc = 0; pipe_free = 0; vec_free = 0; mf_done = 0; last = None
    for ins in seq:
        t = ins.render()
        if t is None: continue
        k = classify(t)
        if k in ("label", "meta"): continue
        if k == "mfma":
            s = max(cyc, pipe_free, vec_free)
            n = 32 if "32x32" in t else 16
            pipe_free = s + n; mf_done = s + n + 12; vec_free = s + 8; cyc = s + 4
        elif k == "valu":
            s = max(cyc, vec_free)
            if t.startswith("v_pk_") or t.startswith("v_dot2"): s = max(s, mf_done)
            vec_free = cyc = s + 4
        elif k == "trans":
            s = max(cyc, vec_free); vec_free = cyc = s + 8
        elif k in ("ds", "vmem"):
            s = max(cyc, vec_free) + (8 if last in ("valu", "trans") else 0)
            c = 4
            if t.startswith("ds_write_b64"): c = 12
            if t.startswith("ds_write2_b64"): c = 20
            if k == "vmem": c = 40 if "store" in t else 13
            vec_free = cyc = s + c
        elif k == "barrier":
            cyc += 28
        elif t.startswith("s_nop"):
            cyc += 4 * (int(t.split()[1]) + 1)
        else:
            cyc += 4
        last = k
    return cyc
```

```python
import sys, argparse, struct
from asmlib import *
ap = argparse.ArgumentParser()
ap.add_argument("--lp", default="nt")
ap.add_argument("--sp", default="sc1")
ap.add_argument("--spa", default="sc1")
ap.add_argument("--hmap", type=int, default=1)
ap.add_argument("--stamps", type=int, default=0)
ap.add_argument("--probe", type=int, default=-1)
ap.add_argument("--force_redo", type=int, default=0)
ap.add_argument("--cpf", type=int, default=1)
ap.add_argument("--dmapos", default="0,0,1,1")
ap.add_argument("--est", type=int, default=0)
ap.add_argument("--abl", default="")
ap.add_argument("--pad", type=int, default=0)
a = ap.parse_args()
pol = lambda s: s.replace("+", " ").replace("-", "")
LP, SP, SPA = pol(a.lp), pol(a.sp), pol(a.spa)

NAME = "standalone__mha_softmax__near_ridge_kernel"
PIECE = 1056
SLOT = 16 * PIECE
NS = 3
RING = NS * SLOT
QP = 1088
REGW = 24 * QP
REG = RING
FLAGS = REG + 4 * REGW
LDS = FLAGS + 64
assert LDS <= 163840
KBYTES = 16 * 32 * 512 * 128 * 2
CSCALE = struct.unpack("<I", struct.pack("<f", 1.4426950408889634 * 128 ** -0.5))[0]

sWV = 3
sQp, sOp = 4, 10
SRD_Q, SRD_KV, SRD_O, SRD_X = 16, 20, 24, 28
sC, sPoff = 32, 33
sR, sW, sD, sT = 35, 36, 37, 38
sWpart, sIt, sCur = 39, 40, 41
sXoff, sXm = 42, 43
sNextSz, sReg, sKVoffN, sKVoff = 44, 45, 46, 48
sBad = 50
sFlag, sPend = 52, 54
sHA, sHB = 56, 57
sT2, sLo, sHi, sCm = 59, 60, 61, 62
SRD_W, sSt = 64, 68
vDMA, vK, vV, vQ, vOw, vOr, vKl, vVl, vX = 1, 2, 3, 4, 5, 6, 7, 8, 9
vT = 10
vM = 16
vStamp = 22
vS = 24
vE = 48
vO = 64
aQ, aK, aV, aL, aONE = 0, 96, 160, 224, 248

def vr(b, n): return f"v[{b}:{b+n-1}]"
def ar(b, n): return f"a[{b}:{b+n-1}]"
def sreg(b, n): return f"s[{b}:{b+n-1}]"
def Sbuf(n): return vS + 8 * (n % 3)
def Oreg(qt, dt): return vO + 32 * qt + 4 * dt

code = []
trace = []
ctx = [None]
def E(i, tr=True):
    if isinstance(i, str): i = Ins(i)
    code.append(i)
    if tr: trace.append((i, ctx[0]))
    return i
def A(*xs):
    for x in xs: E(x)
def L(s): E(s + ":")
def C(s): E("; " + s)

MF = "v_mfma_f32_16x16x32_bf16"
class U:
    def __init__(s, x, q, n): s.x, s.q, s.n = x, q, n
def qk_mfmas(u):
    r = []
    for kt in range(2):
        d = vr(Sbuf(u.n) + 4 * kt, 4)
        for ks in range(4):
            r.append(f"{MF} {d}, {ar(aK + 32*(u.x%2) + 16*kt + 4*ks, 4)}, {ar(aQ + 16*u.q + 4*ks, 4)}, {'0' if ks == 0 else d}")
    return r
def pv_mfmas(u, first=False):
    r = []
    p = vr(Sbuf(u.n), 4)
    for dt in range(8):
        d = vr(Oreg(u.q, dt), 4)
        r.append(f"{MF} {d}, {ar(aV + 32*(u.x%2) + 4*dt, 4)}, {p}, {'0' if first else d}")
    d = ar(aL + 4 * u.q, 4)
    r.append(f"{MF} {d}, {ar(aONE, 4)}, {p}, {'0' if first else d}")
    return r
def sm_f(u, j): return f"v_mul_f32 v{Sbuf(u.n)+j}, s{sC}, v{Sbuf(u.n)+j}"
def sm_e(u, j): return f"v_exp_f32 v{Sbuf(u.n)+j}, v{Sbuf(u.n)+j}"
def sm_c(u, k): return f"v_cvt_pk_bf16_f32 v{Sbuf(u.n)+k}, v{Sbuf(u.n)+2*k}, v{Sbuf(u.n)+2*k+1}"
def k_read(x, n, dyn=False):
    kt, ks = n // 4, n % 4
    base, off = (vK, 0) if dyn else (vKl, (x % NS) * SLOT)
    return Ins(f"ds_read_b128 {ar(aK + 32*(x%2) + 16*kt + 4*ks, 4)}, v{base} offset:{off + kt*512 + ks*64}", "K" if dyn else f"K{x}")
def v_read(x, n, dyn=False):
    dt, kt = n // 2, n % 2
    base, off = (vV, 0) if dyn else (vVl, (x % NS) * SLOT)
    return Ins(f"ds_read_b64_tr_b16 {ar(aV + 32*(x%2) + 4*dt + 2*kt, 2)}, v{base} offset:{off + kt*512 + dt*32}", "V" if dyn else f"V{x}")
def q_read(qt, ks, hd):
    return Ins(f"ds_read_b128 {ar(aQ + 16*qt + 4*ks, 4)}, v{vQ} offset:{qt*4*QP + 64*ks}", f"Q{hd}_{qt}")
def dma(srd, soff, off, tag):
    return Ins(f"buffer_load_dwordx4 v{vDMA}, {sreg(srd,4)}, {soff} offen offset:{off} {LP} lds", tag)
def o_store(reg, soff, off, sp):
    return Ins(f"buffer_store_dwordx4 {reg}, v{vDMA}, {sreg(SRD_O,4)}, {soff} offen offset:{off} {sp}", "st")

nst = [0]
def stamp():
    nst[0] += 1
    if a.probe == nst[0] - 1:
        A(f"s_memrealtime s[{sSt+6}:{sSt+7}]", "s_waitcnt lgkmcnt(0)")
    if not a.stamps: return
    A(f"s_memtime s[{sSt}:{sSt+1}]", f"s_memrealtime s[{sSt+2}:{sSt+3}]", "s_waitcnt lgkmcnt(0)",
      f"s_mov_b32 s{sSt+4}, m0", f"s_mov_b32 m0, s{sSt+5}",
      f"v_writelane_b32 v{vStamp}, s{sSt}, m0", f"v_writelane_b32 v{vStamp+1}, s{sSt+2}, m0",
      f"s_add_u32 s{sSt+5}, s{sSt+5}, 1", f"s_mov_b32 m0, s{sSt+4}")

COST = {"valu": 4, "trans": 8, "ds": 4, "vmem": 12, "salu": 0, "wait": 0, "barrier": 24}
def cost(i):
    if i.text.startswith("ds_write2"): return 20
    if i.text.startswith("buffer_store"): return 40
    return COST[i.kind]
class Phase:
    def __init__(s): s.mf, s.front, s.back, s.steps, s.pre = [], [], [], [], {}
    def step(s, qk=None, sm=None, pv=None, first=False, reads=(), early=False, hole=False):
        g0 = len(s.mf)
        m = (qk_mfmas(qk) if qk else []) + (pv_mfmas(pv, first) if pv else [])
        s.mf += m; s.front += [[] for _ in m]; s.back += [[] for _ in m]
        s.steps.append(g0)
        if not qk: s.before(g0, "s_nop 1")
        reads = list(reads)
        if len(m) == 17 and sm:
            f = lambda j: sm_f(sm, j); c = lambda k: sm_c(sm, k)
            if early:
                pat = {0: [f(0)], 2: [f(1)], 4: [f(2)], 6: [f(3)], 8: [f(4), f(5)], 10: [c(0), f(6)], 12: [c(1), f(7)], 14: [c(2)], 16: [c(3)]}
                rg = [0, 2, 4, 6]
            else:
                pat = {0: [f(0), f(1)], 2: [f(2)], 4: [c(0), f(3)], 6: [f(4)], 8: [c(1), f(5)], 10: [f(6)], 12: [c(2), f(7)], 16: [c(3)]}
                rg = [2, 6, 10, 16 if hole else 14]
            for j in range(8): pat[2 * j + 1] = [sm_e(sm, j)]
            for g, v in pat.items(): s.back[g0 + g] += [Ins(t) for t in v]
            for g in rg:
                if reads: s.front[g0 + g].append(reads.pop(0))
        elif sm:
            f = lambda j: sm_f(sm, j); c = lambda k: sm_c(sm, k); e = lambda j: sm_e(sm, j)
            pat = [[f(0), f(1), f(2), f(3)], [e(0), e(1)], [e(2), e(3)], [f(4), f(5), f(6), f(7)], [e(4), e(5)], [e(6), e(7)], [c(0), c(1)], [c(2), c(3)]]
            for g, v in enumerate(pat): s.back[g0 + g] += [Ins(t) for t in v]
        if reads: s.spread(reads, g0, len(s.mf) - 1)
        return g0
    def g(s, step, k=0): return s.steps[step] + k
    def load(s, g):
        sc = [k for k, i in enumerate(s.front[g]) if i.kind in ("salu", "wait")]
        return sum(cost(i) for i in s.front[g] + s.back[g]) + 4 * len([k for k in sc if k > 0])
    def put(s, g, *ins):
        for i in ins:
            if isinstance(i, str): i = Ins(i)
            (s.back if i.kind in ("valu", "trans") else s.front)[g].append(i)
    def shadow(s, g, *ins):
        s.front[g][0:0] = [Ins(i) if isinstance(i, str) else i for i in ins]
    def before(s, g, *ins):
        s.pre.setdefault(g, []).extend(Ins(i) if isinstance(i, str) else i for i in ins)
    def spread(s, ops, g0, g1):
        ops = [Ins(i) if isinstance(i, str) else i for i in ops]
        tot = sum(max(cost(i), 1) for i in ops); cum = 0
        ptr = g0; lastback = -1
        for i in ops:
            tg = min(g1, g0 + int(cum / tot * (g1 - g0 + 1))); cum += max(cost(i), 1)
            if i.kind in ("valu", "trans"):
                cand = [g for g in range(max(ptr, tg - 1), min(g1, tg + 1) + 1) if s.load(g) + COST[i.kind] <= 8]
                g = cand[0] if cand else max(ptr, tg)
                s.back[g].append(i); lastback = g
            else:
                lo = max(ptr, tg, lastback + 1)
                if lo > g1:
                    g = g1; s.back[g].append(i); lastback = g
                else:
                    rng = range(lo, min(g1, lo + 2) + 1)
                    if i.kind in ("salu", "wait"): cand = [g for g in rng if not s.front[g]]
                    else: cand = [g for g in rng if s.load(g) <= 4]
                    g = cand[0] if cand else lo
                    s.front[g].append(i)
            ptr = g
    def emit(s, name=None):
        n0 = len(code)
        for g, m in enumerate(s.mf):
            for i in s.pre.get(g, []): E(i)
            E(m)
            for i in s.front[g] + s.back[g]: E(i)
        if name: est.append((name, n0, len(code), len(s.mf)))
est = []

def sync(kv, lg="all"):
    return [W(vm=kv, lg=lg), Ins("s_barrier")]

def kv_dma(ph, gs, x, dyn=False):
    for p, g in enumerate(gs):
        if dyn:
            ph.shadow(g - 1, f"s_add_u32 m0, s{sW}, {32*p}")
            ph.put(g, dma(SRD_KV, f"s{sPoff}", 1024 * p, lambda y: f"KV{y+3}"))
        else:
            ph.shadow(g - 1, f"s_add_u32 m0, s{sWpart}, {(x % NS) * SLOT + 32*p}")
            ph.put(g, dma(SRD_KV, f"s{sPoff}", 1024 * p, f"KV{x}"))
    ph.shadow(gs[-1] + 1, f"s_add_u32 s{sPoff}, s{sPoff}, 8192")

def period(x, hd, dyn, ph=None, first=False, last=False):
    if ph is None: ph = Phase()
    s0 = len(ph.steps)
    un = lambda t, q: U(t, q, 6 * t + q)
    for j in range(6):
        qk = un(x, j + 2) if j < 4 else un(x + 1, j - 4)
        sm = un(x, j + 1) if j < 5 else un(x + 1, 0)
        reads = [k_read(x + 1, 4 * j + i, dyn) for i in range(4)] if j < 2 else [v_read(x + 1, 4 * (j - 2) + i, dyn) for i in range(4)]
        ph.step(qk, sm, un(x, j), first, reads, early=(j == 5), hole=(j < 4))
    G = lambda j, k: ph.g(s0 + j, k)
    if a.pad:
        for j in range(6): ph.back[G(j, 7)].append(Ins(f"s_nop {a.pad-1}"))
    ph.shadow(G(3, 15), W(lg="K" if dyn else f"K{x+1}"))
    kv_dma(ph, [G(0, 5), G(0, 14), G(1, 5), G(1, 14)], x + 3, dyn)
    if dyn:
        ph.shadow(G(4, 1), f"s_add_u32 s{sW}, s{sR}, s{sWpart}")
        ph.shadow(G(4, 2), f"s_add_u32 s{sT}, s{sR}, {SLOT}")
        ph.shadow(G(4, 3), f"s_cmp_eq_u32 s{sT}, {RING}")
        ph.shadow(G(4, 4), f"s_cselect_b32 s{sT}, 0, s{sT}")
        ph.shadow(G(4, 5), f"s_sub_u32 s{sD}, s{sT}, s{sR}")
        ph.shadow(G(4, 6), f"s_mov_b32 s{sR}, s{sT}")
        ph.put(G(4, 14), f"v_add_u32 v{vK}, s{sD}, v{vK}")
        ph.put(G(5, 14), f"v_add_u32 v{vV}, s{sD}, v{vV}")
        if not last:
            ph.shadow(G(5, 1), f"s_add_u32 s{sIt}, s{sIt}, 1")
            if hd == 0:
                ph.shadow(G(5, 2), f"s_cmp_eq_u32 s{sIt}, 6")
                ph.shadow(G(5, 3), f"s_cselect_b32 s{sPoff}, s{sKVoffN}, s{sPoff}")
        if hd == 0:
            for p in range(2):
                ph.shadow(G(2 + p, 13), f"s_add_u32 m0, s{sXm}, {(QP-1024)*p}")
                ph.put(G(2 + p, 14), dma(SRD_X, f"s{sXoff}", 1024 * p, lambda y: f"QD1_{(y-2)//2}"))
            ph.shadow(G(5, 9), f"s_add_u32 s{sXm}, s{sXm}, {2*QP}")
        else:
            for p in range(2):
                ph.put(G(2 + p, 14), o_store(vr(vE + 4*p, 4), f"s{sXoff}", 1024 * p, SPA.split("/")[p % len(SPA.split("/"))]))
        ph.shadow(G(5, 11), f"s_add_u32 s{sXoff}, s{sXoff}, 2048")
        if last: ph.shadow(G(5, 15), f"s_cmp_lt_u32 s{sIt}, 6")
    if hd == 1:
        ph.put(G(4, 16), Ins(f"ds_read_b128 {vr(vE, 4)}, v{vX}", "T"))
        ph.put(G(4, 9), Ins(f"ds_read_b128 {vr(vE + 4, 4)}, v{vX} offset:{QP}", "T"))
        ph.put(G(5, 16), f"v_add_u32 v{vX}, {2*QP}, v{vX}")
    ph.shadow(G(5, 16), *sync((lambda y: f"KV{y+2}") if dyn else f"KV{x+2}", "all" if dyn else [f"V{x+1}", "T"]))
    return ph

def main_loop(hd, x0):
    E(".p2align 3")
    t0 = len(trace)
    L(f"L_loop{hd}")
    halves = []
    for h in range(2):
        b = len(code)
        if a.stamps == 2: stamp()
        period(x0 + h, hd, True, last=(h == 1)).emit(f"period{hd}{h}")
        if h: A(f"s_cbranch_scc1 L_loop{hd}")
        halves.append(code[b:])
    del trace[t0:]
    for x in range(x0, x0 + 12):
        trace.extend((i, x) for i in halves[(x - x0) % 2])

def window(srd, ptr, hreg):
    A(f"s_mul_i32 s{sT}, s{hreg}, 98304", f"s_mul_i32 s{sT2}, s{sWV}, 24576", f"s_add_u32 s{sT}, s{sT}, s{sT2}",
      f"s_add_u32 s{srd}, s{ptr}, s{sT}", f"s_addc_u32 s{srd+1}, s{ptr+1}, 0", f"s_mov_b32 s{srd+2}, 24576")
def kv_offset(hreg, kv):
    A(f"s_lshl_b32 s{kv}, s{hreg}, 17", f"s_and_b32 s{sT}, s{sWV}, 1", f"s_lshl_b32 s{sT}, s{sT}, 12", f"s_add_u32 s{kv}, s{kv}, s{sT}")
def kv_issue(x):
    r = []
    for p in range(4):
        r += [f"s_add_u32 m0, s{sWpart}, {(x % NS)*SLOT + 32*p}", "s_nop 0", dma(SRD_KV, f"s{sPoff}", 1024*p, f"KV{x}")]
    return r + [f"s_add_u32 s{sPoff}, s{sPoff}, 8192"]
def q_issue(k):
    r = [f"s_mov_b32 s{sT2}, {4096*k}"]
    for p in range(4):
        r += [f"s_add_u32 m0, s{sReg}, {4*k*QP + (QP-1024)*p}", "s_nop 0", dma(SRD_Q, f"s{sT2}", 1024*p, f"QD0_{k}")]
    return r

def norm_a(qt):
    r = [f"v_accvgpr_read_b32 v{vT+1}, a{aL + 4*qt}", f"v_rcp_f32 v{vT}, v{vT+1}", f"v_cmp_nle_f32 vcc, s{sLo}, v{vT+1}"]
    for o in range(Oreg(qt, 0), Oreg(qt, 8), 2):
        r.append(f"v_pk_mul_f32 {vr(o,2)}, {vr(o,2)}, {vr(vT,2)} op_sel_hi:[1,0]")
    return r
def norm_b(qt):
    r = [f"s_or_b64 {sreg(sBad,2)}, {sreg(sBad,2)}, vcc", f"v_cmp_nge_f32 vcc, s{sHi}, v{vT+1}", f"v_add_u32 v{vT+2}, {qt*4*QP}, v{vOw}"]
    for dt in range(0, 8, 2):
        for d in (dt, dt + 1):
            o = Oreg(qt, d)
            r += [f"v_cvt_pk_bf16_f32 v{o}, v{o}, v{o+1}", f"v_cvt_pk_bf16_f32 v{o+1}, v{o+2}, v{o+3}"]
        if dt == 0: r.append(f"s_or_b64 {sreg(sBad,2)}, {sreg(sBad,2)}, vcc")
        r.append(Ins(f"ds_write2_b64 v{vT+2}, {vr(Oreg(qt, dt),2)}, {vr(Oreg(qt, dt+1),2)} offset0:{4*dt} offset1:{4*dt+4}", f"W{qt}"))
    return r
def back_ops(qt):
    return [Ins(f"ds_read_b128 {vr(Oreg(qt, j), 4)}, v{vOr} offset:{qt*4*QP + QP*j}", f"B{qt}_{j}") for j in range(4)]
def store_ops(qt, sp):
    r = [f"s_mov_b32 s{sT2}, {4096*qt}"]
    for j in range(4): r += [W(lg=f"B{qt}_{j}"), o_store(vr(Oreg(qt, j), 4), f"s{sT2}", 1024*j, sp)]
    return r
def flag_ops(bit):
    return [f"s_cmp_lg_u64 {sreg(sBad,2)}, 0", f"s_cselect_b32 s{sT2}, {bit}, 0", f"s_or_b32 s{sFlag}, s{sFlag}, s{sT2}", f"s_mov_b64 {sreg(sBad,2)}, 0"]

def boundary():
    order = [(14, 0), (14, 1), (14, 2), (15, 0), (15, 1), (15, 2), (14, 3), (15, 3), (14, 4), (15, 4), (14, 5), (15, 5), (16, 0), (16, 1)]
    us = [U(t, q, 84 + i) for i, (t, q) in enumerate(order)]
    ph = Phase()
    for j in range(12):
        reads = []
        if j in (1, 2): reads = [v_read(15, 8 * (j - 1) + n) for n in range(8)]
        if j == 0:
            reads = [k_read(15, n) for n in range(8)]
            g0 = ph.step(us[j + 2], us[j + 1], us[j], reads=reads[:4], early=True)
            for n in range(4): ph.put(g0 + 1 + 2 * n, reads[4 + n])
        else:
            ph.step(us[j + 2], us[j + 1], us[j], reads=reads)
    G = ph.g
    ph.shadow(G(0, 16), W(lg="K15"))
    ph.shadow(G(3, 7), W(lg="V15"))
    kv_dma(ph, [G(0, 11), G(0, 15), G(1, 11), G(1, 15)], 17)
    pre = {k: [W(vm=f"QD1_{k}")] + [q_read(k, ks, 1) for ks in range(4)] for k in range(6)}
    ph.spread(pre[0] + pre[1], G(3, 0), G(3, 16))
    ph.spread(pre[2], G(4, 0), G(4, 16)); ph.spread(pre[3], G(6, 0), G(6, 16)); ph.spread(pre[4], G(8, 0), G(8, 6))
    ph.spread(pre[5], G(10, 0), G(10, 7))
    ph.shadow(G(8, 7), *sync("KV16", "V15"))
    ph.spread([k_read(16, n) for n in range(8)], G(8, 8), G(9, 8))
    ph.shadow(G(9, 16), W(lg=["K16", "Q1_0", "Q1_1"]))
    kv_dma(ph, [G(9, 9), G(9, 11), G(9, 13), G(9, 15)], 18)
    ph.spread([v_read(16, n) for n in range(16)], G(10, 10), G(11, 8))
    ph.shadow(G(11, 16), *sync("KV17", ["V16", "Q1_5"]))
    period(16, 1, False, ph, first=True)
    for k, (ga, gb) in enumerate([(G(4, 5), G(5, 16)), (G(6, 1), G(7, 16)), (G(8, 1), G(9, 16)), (G(11, 9), G(13, 0)), (G(13, 1), G(14, 16)), (G(15, 1), G(16, 16))]):
        ph.put(ga, *norm_a(k))
        ph.spread(norm_b(k), ga + 1, gb)
    for k, i in enumerate(flag_ops(1) + [f"s_mov_b32 s{sIt}, 0", f"s_mov_b32 s{sXoff}, 0", f"s_mov_b32 s{sR}, {(18 % NS) * SLOT}", f"s_add_u32 s{sW}, s{sWpart}, {(17 % NS) * SLOT}"]):
        ph.shadow(G(17, 1 + k), i)
    ph.put(G(17, 14), f"v_add_u32 v{vK}, {(18 % NS) * SLOT}, v{vKl}")
    ph.put(G(16, 14), f"v_add_u32 v{vV}, {(18 % NS) * SLOT}, v{vVl}")
    ph.emit("boundary")

def finish():
    order = [(29, q) for q in range(6)] + [(t, q) for q in range(6) for t in (30, 31)]
    us = [U(t, q, 174 + i) for i, (t, q) in enumerate(order)] + [None, None]
    ph = Phase()
    vr30 = [v_read(30, n) for n in range(16)]
    rd = {0: [k_read(30, n) for n in range(6)], 1: [k_read(30, n) for n in range(6, 8)] + vr30[:4], 2: vr30[4:10], 5: vr30[12:]}
    for j in range(18):
        ph.step(us[j + 2], us[j + 1], us[j], reads=rd.get(j, []), early=(j == 5))
    G = ph.g
    for k, i in enumerate([f"s_mul_i32 s{sT}, s{sHB}, 98304", f"s_mul_i32 s{sT2}, s{sWV}, 24576", f"s_add_u32 s{sT}, s{sT}, s{sT2}",
                           f"s_add_u32 s{SRD_O}, s{sOp}, s{sT}", f"s_addc_u32 s{SRD_O+1}, s{sOp+1}, 0"]):
        ph.shadow(G(0, 1 + k), i)
    ph.spread(vr30[10:12], G(3, 0), G(3, 6))
    ph.shadow(G(3, 7), *sync("KV31", "K30"))
    ph.spread([k_read(31, n) for n in range(8)], G(3, 8), G(4, 10))
    ph.shadow(G(4, 16), W(lg="K31"))
    ph.spread([v_read(31, n) for n in range(16)], G(5, 10), G(6, 16))
    ph.shadow(G(6, 7), W(lg="V30"))
    ph.shadow(G(7, 7), W(lg="V31"))
    for k in range(4):
        j = 8 + 2 * k
        ph.put(G(j, 3), *norm_a(k))
        ph.spread(norm_b(k) + back_ops(k), G(j, 4), G(j, 16))
        ph.spread(store_ops(k, SP), G(j + 1, 4), G(j + 1, 16))
    ph.put(G(16, 2), *norm_a(4))
    ph.spread(norm_b(4) + back_ops(4), G(16, 3), G(17, 4))
    ph.emit("finish")
    n0 = len(code)
    st4 = store_ops(4, SP)
    A(*st4[:5]); A("s_nop 2")
    A(*norm_a(5)); nb = norm_b(5)
    A(*(nb[:9] + st4[5:7] + nb[9:14] + st4[7:] + nb[14:] + back_ops(5) + flag_ops(2) + store_ops(5, SP)))
    est.append(("tail", n0, len(code), 0))

L(NAME)
A("s_load_dwordx8 s[4:11], s[0:1], 0", "s_cmp_ge_u32 s2, 256", "s_cbranch_scc1 L_exit")
if a.cpf:
    C("touch eight 128-byte lines of this kernel's code per workgroup so that later instruction fetches hit in L2")
    A("s_getpc_b64 s[12:13]", f"s_lshr_b32 s{sT}, s2, 3", f"s_lshl_b32 s{sT}, s{sT}, 10", f"v_lshrrev_b32 v{vT}, 5, v0",
      f"v_lshl_add_u32 v{vT}, v{vT}, 7, s{sT}", f"v_min_u32 v{vT}, L_exit-{NAME}-64, v{vT}",
      Ins(f"global_load_dword v{vT+5}, v{vT}, s[12:13]", "code"))
if a.stamps: A(f"s_load_dwordx2 s[{SRD_W}:{SRD_W+1}], s[0:1], 40", f"s_mov_b32 s{sSt+5}, 0")
A(f"v_lshrrev_b32 v{vT}, 6, v0", "v_and_b32 v0, 63, v0", f"v_readfirstlane_b32 s{sWV}, v{vT}", f"v_lshlrev_b32 v{vDMA}, 4, v0")
if a.hmap == 0: A(f"s_lshl_b32 s{sHA}, s2, 1")
else: A(f"s_mov_b32 s{sHA}, s2")
A(f"s_mov_b32 s{SRD_KV+3}, 0x20000", f"s_mov_b32 s{SRD_KV+2}, {KBYTES}", f"s_mul_i32 s{sWpart}, s{sWV}, {4*PIECE}")
kv_offset(sHA, sPoff)
A(f"s_cmp_lt_u32 s{sWV}, 2", "s_waitcnt lgkmcnt(0)", f"s_cselect_b64 {sreg(SRD_KV,2)}, s[6:7], s[8:9]")
if a.stamps: A(f"s_mov_b32 s{SRD_W+2}, 268435456", f"s_mov_b32 s{SRD_W+3}, 0x20000")
stamp()
def fill(seq, filler):
    for i in seq:
        if i == "s_nop 0" and filler: A(filler.pop(0))
        else: A(i)
fl = [f"s_mul_i32 s{sReg}, s{sWV}, {REGW}", f"s_add_u32 s{sReg}, s{sReg}, {REG}", f"s_mov_b32 s{SRD_Q+3}, 0x20000", f"s_add_u32 s{sHB}, s{sHA}, {256 if a.hmap else 1}"]
fill(kv_issue(0), fl)
window(SRD_Q, sQp, sHA)
fl = [f"s_mov_b32 s{SRD_O+3}, 0x20000", f"s_mov_b32 s{SRD_X+3}, 0x20000", f"s_mov_b32 s{sFlag}, {a.force_redo}", f"s_mov_b64 {sreg(sBad,2)}, 0",
      f"s_mov_b32 s{sC}, 0x{CSCALE:08x}", f"s_mov_b32 s{sLo}, 0x30800000", f"s_mov_b32 s{sHi}, 0x4e800000", f"s_mov_b32 s{sIt}, 0"]
fill(q_issue(0), fl)
k1 = kv_issue(1)
fill(k1[:6], fl)
C("---- per-lane LDS addresses (i = lane%16, g = lane/16)")
A(f"v_and_b32 v{vT}, 15, v0", f"v_lshrrev_b32 v{vT+1}, 4, v0")
A(f"v_and_b32 v{vT+2}, 7, v{vT}", f"v_mul_u32_u24 v{vKl}, {PIECE}, v{vT+2}", f"v_lshrrev_b32 v{vT+2}, 3, v{vT}",
  f"v_lshl_add_u32 v{vKl}, v{vT+2}, 8, v{vKl}", f"v_lshl_add_u32 v{vKl}, v{vT+1}, 4, v{vKl}")
A(f"v_bfe_u32 v{vT+2}, v0, 2, 3", f"v_mul_u32_u24 v{vVl}, {PIECE}, v{vT+2}", f"v_lshrrev_b32 v{vT+2}, 5, v0",
  f"v_lshl_add_u32 v{vVl}, v{vT+2}, 8, v{vVl}", f"v_and_b32 v{vT+2}, 3, v0", f"v_lshl_add_u32 v{vVl}, v{vT+2}, 3, v{vVl}",
  f"v_add_u32 v{vVl}, {8*PIECE}, v{vVl}")
A(f"v_cmp_eq_u32 vcc, 0, v{vT+2}", f"v_mov_b32 v{vT+4}, 0x3f803f80")
A(f"v_mul_u32_u24 v{vQ}, {QP}, v{vT+2}", f"v_cndmask_b32 v{vT+4}, 0, v{vT+4}, vcc", f"v_lshrrev_b32 v{vT+3}, 2, v{vT}",
  f"v_lshl_add_u32 v{vQ}, v{vT+3}, 8, v{vQ}", f"v_lshl_add_u32 v{vQ}, v{vT+1}, 4, v{vQ}", f"v_add_u32 v{vQ}, s{sReg}, v{vQ}")
A(f"v_lshl_add_u32 v{vT+2}, v{vT+2}, 2, v{vT+3}", f"v_mul_u32_u24 v{vOw}, 272, v{vT+2}", f"v_lshl_add_u32 v{vOw}, v{vT+1}, 3, v{vOw}",
  f"v_add_u32 v{vOw}, s{sReg}, v{vOw}", f"v_mul_u32_u24 v{vOr}, 272, v{vT+1}", f"v_lshl_add_u32 v{vOr}, v{vT}, 4, v{vOr}",
  f"v_add_u32 v{vOr}, s{sReg}, v{vOr}", f"v_mov_b32 v{vX}, v{vOr}")
for j in range(4): A(f"v_accvgpr_write_b32 a{aONE+j}, v{vT+4}")
A(f"v_add_u32 v{vK}, {(3 % NS) * SLOT}, v{vKl}", f"v_add_u32 v{vV}, {(3 % NS) * SLOT}, v{vVl}")
window(SRD_O, sOp, sHA)
if "nost" in a.abl: A(f"s_mov_b32 s{SRD_O+2}, 0")
window(SRD_X, sQp, sHB)
kv_offset(sHB, sKVoffN)
A(f"s_mov_b32 s{sXoff}, 0", f"s_mov_b32 s{sXm}, s{sReg}", f"s_mov_b32 s{sR}, {(3 % NS) * SLOT}", f"s_add_u32 s{sW}, s{sWpart}, {(2 % NS) * SLOT}")
fill(k1[6:], fl)
assert not fl
C("---- start-up: tiles 0 and 1 are processed q-major while Q arrives")
def st3():
    if a.stamps == 3: stamp()
st3()
A(*sync("KV0", None)); st3()
A(*[k_read(0, n) for n in range(8)]); A(*q_issue(1))
A(W(vm="QD0_0")); st3(); A(*[q_read(0, ks, 0) for ks in range(4)]); A(*q_issue(2)); A(W(lg="all"))
us = [U(t, q, 2 * q + t) for q in range(6) for t in range(2)] + [U(2, 0, 12), U(2, 1, 13)]
ph = Phase()
ph.step(us[0], reads=[v_read(0, n) for n in range(16)])
ph.emit()
A(*sync("KV1")); st3()
A(*[k_read(1, n) for n in range(8)]); A(*q_issue(3)); A(W(lg="all"))
def q_dma(ph, gs, k):
    ph.shadow(gs[0] - 2, f"s_mov_b32 s{sT2}, {4096*k}")
    for p, g in enumerate(gs):
        ph.shadow(g - 1, f"s_add_u32 m0, s{sReg}, {4*k*QP + (QP-1024)*p}")
        ph.put(g, dma(SRD_Q, f"s{sT2}", 1024*p, f"QD0_{k}"))
ph = Phase()
for n in range(1, 14):
    ph.step(us[n], us[n - 1], us[n - 2] if n >= 2 else None, first=(n % 2 == 0))
G = lambda n, k: ph.g(n - 1, k)
ph.spread([W(vm="QD0_1")] + [q_read(1, ks, 0) for ks in range(4)], G(1, 0), G(1, 4))
ph.shadow(G(1, 7), W(lg="Q0_1"))
ph.spread([v_read(1, n) for n in range(16)], G(2, 0), G(2, 16))
ph.shadow(G(3, 7), W(lg="V1"))
q_dma(ph, [G(2, 3), G(2, 7), G(2, 11), G(2, 15)], 4)
for q in range(2, 6):
    n = 2 * q - 1
    ph.shadow(G(n, 1), W(vm=f"QD0_{q}"))
    for ks in range(4): ph.put(G(n, [2, 6, 10, 10][ks]), q_read(q, ks, 0))
    ph.shadow(G(n, 16), W(lg=f"Q0_{q}"))
    gs = [G(n, 5), G(n, 9), G(n, 14), G(n + 1, 2)]
    if q == 2: q_dma(ph, gs, 5)
    else: kv_dma(ph, gs, q - 1)
ph.shadow(G(6, 8), "s_barrier")
ph.shadow(G(10, 8), *sync("KV2", None))
ph.spread([k_read(2, n) for n in range(8)], G(10, 9), G(11, 10))
ph.shadow(G(11, 16), W(lg="K2"))
ph.spread([v_read(2, n) for n in range(16)], G(12, 10), G(13, 8))
ph.shadow(G(13, 16), *sync("KV3"))
ph.emit("start")
stamp()
main_loop(0, 2)
stamp()
boundary()
stamp()
main_loop(1, 17)
stamp()
finish()
stamp()
C("---- combine the per-wave 'row sum left the safe range' flags of the workgroup")
A(f"s_lshl_b32 s{sT}, s{sWV}, 2", f"s_add_u32 s{sT}, s{sT}, {FLAGS}", f"v_mov_b32 v{vT}, s{sT}", f"v_mov_b32 v{vT+1}, s{sFlag}",
  f"ds_write_b32 v{vT}, v{vT+1}", f"v_mov_b32 v{vT}, {FLAGS}", "s_waitcnt lgkmcnt(0)", "s_barrier",
  f"ds_read_b128 {vr(vT+2,4)}, v{vT}", "s_waitcnt lgkmcnt(0)",
  f"v_or_b32 v{vT+2}, v{vT+2}, v{vT+3}", f"v_or3_b32 v{vT+2}, v{vT+2}, v{vT+4}, v{vT+5}", "s_nop 0",
  f"v_readfirstlane_b32 s{sPend}, v{vT+2}", "s_nop 3")
L("L_pend")
A(f"s_cmp_eq_u32 s{sPend}, 0", "s_cbranch_scc1 L_done")
C("==== rare path: redo a head, subtracting the true row maximum (plain, unpipelined code)")
A(f"s_bitcmp1_b32 s{sPend}, 0", f"s_cselect_b32 s{sCur}, s{sHA}, s{sHB}", f"s_cselect_b32 s{sT}, 2, 0", f"s_and_b32 s{sPend}, s{sPend}, s{sT}",
  "s_waitcnt vmcnt(0) lgkmcnt(0)", "s_barrier", f"s_mov_b32 s{SRD_KV+2}, {KBYTES}")
window(SRD_Q, sQp, sCur); window(SRD_O, sOp, sCur)
for k in range(6): A(*q_issue(k))
for j in range(6): A(f"v_mov_b32 v{vM+j}, 0xff800000")
A("s_waitcnt vmcnt(0)")
for k in range(6):
    A(*[q_read(k, ks, 0) for ks in range(4)]); A("s_waitcnt lgkmcnt(0)")
kv_offset(sCur, sPoff)
A(f"s_mov_b32 s{sIt}, 0")
L("L_maxloop")
A(*kv_issue(0)); A("s_waitcnt vmcnt(0)", "s_barrier")
A(*[k_read(0, n) for n in range(8)]); A("s_waitcnt lgkmcnt(0)", "s_barrier")
for qt in range(6):
    A(*qk_mfmas(U(0, qt, 0))); A("s_nop 7")
    for j in range(4): A(f"v_max3_f32 v{vM+qt}, v{vM+qt}, v{vS+2*j}, v{vS+2*j+1}")
A(f"s_add_u32 s{sIt}, s{sIt}, 1", f"s_cmp_lt_u32 s{sIt}, 16", "s_cbranch_scc1 L_maxloop")
for qt in range(6):
    m = vM + qt
    A(f"v_mov_b32 v{vT}, v{m}", "s_nop 1", f"v_permlane32_swap_b32 v{vT}, v{m}", "s_nop 1", f"v_max_f32 v{m}, v{m}, v{vT}",
      f"v_mov_b32 v{vT}, v{m}", "s_nop 1", f"v_permlane16_swap_b32 v{vT}, v{m}", "s_nop 1", f"v_max_f32 v{m}, v{m}, v{vT}",
      f"v_mul_f32 v{m}, s{sC}, v{m}", f"v_sub_f32 v{m}, 0, v{m}")
for r in range(vO, 256, 2): A(f"v_mov_b64 {vr(r,2)}, 0")
for r in range(24): A(f"v_accvgpr_write_b32 a{aL+r}, 0")
kv_offset(sCur, sPoff)
A(f"s_mov_b32 s{sIt}, 0")
L("L_slowloop")
A(*kv_issue(0)); A("s_waitcnt vmcnt(0)", "s_barrier")
A(*[k_read(0, n) for n in range(8)]); A("s_waitcnt lgkmcnt(0)")
A(*[v_read(0, n) for n in range(16)]); A("s_waitcnt lgkmcnt(0)", "s_barrier")
for qt in range(6):
    u = U(0, qt, 0)
    A(*qk_mfmas(u)); A("s_nop 7")
    for j in range(8): A(f"v_fma_f32 v{vS+j}, v{vS+j}, s{sC}, v{vM+qt}")
    for j in range(8): A(sm_e(u, j))
    A("s_nop 0")
    for k in range(4): A(sm_c(u, k))
    A("s_nop 1"); A(*pv_mfmas(u))
A(f"s_add_u32 s{sIt}, s{sIt}, 1", f"s_cmp_lt_u32 s{sIt}, 16", "s_cbranch_scc1 L_slowloop")
A("s_nop 7")
for qt in range(6): A(*(norm_a(qt) + norm_b(qt) + back_ops(qt) + store_ops(qt, SP)))
A("s_branch L_pend")
L("L_done")
if a.probe >= 0:
    A("s_waitcnt vmcnt(0)"); stamp()
    L("L_spin")
    A(f"s_memrealtime s[{sSt}:{sSt+1}]", "s_waitcnt lgkmcnt(0)", f"s_sub_u32 s{sSt}, s{sSt}, s{sSt+6}", f"s_cmp_lt_u32 s{sSt}, 10000", "s_cbranch_scc1 L_spin")
if a.stamps:
    A("s_waitcnt vmcnt(0)"); stamp()
    A(f"v_lshlrev_b32 v{vT}, 3, v0", f"s_lshl_b32 s{sT}, s2, 2", f"s_add_u32 s{sT}, s{sT}, s{sWV}", f"s_lshl_b32 s{sT}, s{sT}, 9",
      f"buffer_store_dwordx2 {vr(vStamp,2)}, v{vT}, {sreg(SRD_W,4)}, s{sT} offen")
L("L_exit")
A("s_endpgm")

resolve(trace)
errs = verify(trace)
for e in errs[:40]: print("VERIFY:", e, file=sys.stderr)
if a.est:
    for (name, n0, n1, nm) in est: print(f"est {name}: {estimate(code[n0:n1])} cycles, {nm} mfma", file=sys.stderr)
hdr = open("standalone__mha_softmax__near_ridge.s.ref").read().split("; Override launch")[0]
o = [hdr.rstrip(), f"; @launch grid=(256,1,1) block=(256,1,1) lds={LDS}", '.amdgcn_target "amdgcn-amd-amdhsa--gfx950"',
     ".text", f".globl {NAME}", ".p2align 8", f".type {NAME},@function"]
for i in code:
    t = i.render()
    if t is None: continue
    o.append(t if i.kind == "label" or t.startswith(".") else "    " + t.rstrip())
o += ['.section .rodata,"a"', ".p2align 6", f".amdhsa_kernel {NAME}", """  .amdhsa_next_free_vgpr 512
  .amdhsa_next_free_sgpr 102
  .amdhsa_accum_offset 256
  .amdhsa_group_segment_fixed_size 0
  .amdhsa_kernarg_size 48
  .amdhsa_user_sgpr_count 2
  .amdhsa_user_sgpr_kernarg_segment_ptr 1
  .amdhsa_system_sgpr_workgroup_id_x 1
  .amdhsa_float_denorm_mode_32 3""", ".end_amdhsa_kernel"]
print("\n".join(o))
sys.exit(1 if errs else 0)
```

```python
import sys, argparse, struct
from asmlib import *
ap = argparse.ArgumentParser()
ap.add_argument("--lp", default="nt")
ap.add_argument("--sp", default="sc1")
ap.add_argument("--spa", default="sc1")
ap.add_argument("--hmap", type=int, default=1)
ap.add_argument("--stamps", type=int, default=0)
ap.add_argument("--probe", type=int, default=-1)
ap.add_argument("--force_redo", type=int, default=0)
ap.add_argument("--cpf", type=int, default=1)
ap.add_argument("--dmapos", default="0,0,1,1")
ap.add_argument("--est", type=int, default=0)
ap.add_argument("--probec", default="")
ap.add_argument("--abl", default="")
ap.add_argument("--pad", type=int, default=0)
a = ap.parse_args()
pol = lambda s: s.replace("+", " ").replace("-", "")
LP, SP, SPA = pol(a.lp), pol(a.sp), pol(a.spa)

NAME = "standalone__mha_softmax__near_ridge_kernel"
PIECE = 1056
SLOT = 16 * PIECE
NS = 3
RING = NS * SLOT
QP = 1088
REGW = 24 * QP
REG = RING
FLAGS = REG + 4 * REGW
LDS = FLAGS + 64
assert LDS <= 163840
KBYTES = 16 * 32 * 512 * 128 * 2
CSCALE = struct.unpack("<I", struct.pack("<f", 1.4426950408889634 * 128 ** -0.5))[0]

sWV = 3
sQp, sOp = 4, 10
SRD_Q, SRD_KV, SRD_O, SRD_X = 16, 20, 24, 28
sC, sPoff = 32, 33
sR, sW, sD, sT = 35, 36, 37, 38
sWpart, sIt, sCur = 39, 40, 41
sXoff, sXm = 42, 43
sNextSz, sReg, sKVoffN, sKVoff = 44, 45, 46, 48
sBad = 50
sFlag, sPend = 52, 54
sHA, sHB = 56, 57
sT2, sLo, sHi, sCm = 59, 60, 61, 62
SRD_W, sSt = 64, 68
vDMA, vK, vV, vQ, vOw, vOr, vKl, vVl, vX = 1, 2, 3, 4, 5, 6, 7, 8, 9
vT = 10
vM = 16
vStamp = 22
vS = 24
vE = 48
vO = 64
aQ, aK, aV, aL, aONE = 0, 96, 160, 224, 248

def vr(b, n): return f"v[{b}:{b+n-1}]"
def ar(b, n): return f"a[{b}:{b+n-1}]"
def sreg(b, n): return f"s[{b}:{b+n-1}]"
def Sbuf(n): return vS + 8 * (n % 3)
def Oreg(qt, dt): return vO + 32 * qt + 4 * dt

code = []
trace = []
ctx = [None]
def E(i, tr=True):
    if isinstance(i, str): i = Ins(i)
    code.append(i)
    if tr: trace.append((i, ctx[0]))
    return i
def A(*xs):
    for x in xs: E(x)
def L(s): E(s + ":")
def C(s): E("; " + s)

MF = "v_mfma_f32_16x16x32_bf16"
class U:
    def __init__(s, x, q, n): s.x, s.q, s.n = x, q, n
def qk_mfmas(u):
    r = []
    for kt in range(2):
        d = vr(Sbuf(u.n) + 4 * kt, 4)
        for ks in range(4):
            r.append(f"{MF} {d}, {ar(aK + 32*(u.x%2) + 16*kt + 4*ks, 4)}, {ar(aQ + 16*u.q + 4*ks, 4)}, {'0' if ks == 0 else d}")
    return r
def pv_mfmas(u, first=False):
    r = []
    p = vr(Sbuf(u.n), 4)
    for dt in range(8):
        d = vr(Oreg(u.q, dt), 4)
        r.append(f"{MF} {d}, {ar(aV + 32*(u.x%2) + 4*dt, 4)}, {p}, {'0' if first else d}")
    d = ar(aL + 4 * u.q, 4)
    r.append(f"{MF} {d}, {ar(aONE, 4)}, {p}, {'0' if first else d}")
    return r
def sm_f(u, j): return f"v_mul_f32 v{Sbuf(u.n)+j}, s{sC}, v{Sbuf(u.n)+j}"
def sm_e(u, j): return f"v_exp_f32 v{Sbuf(u.n)+j}, v{Sbuf(u.n)+j}"
def sm_c(u, k): return f"v_cvt_pk_bf16_f32 v{Sbuf(u.n)+k}, v{Sbuf(u.n)+2*k}, v{Sbuf(u.n)+2*k+1}"
def k_read(x, n, dyn=False):
    kt, ks = n // 4, n % 4
    base, off = (vK, 0) if dyn else (vKl, (x % NS) * SLOT)
    return Ins(f"ds_read_b128 {ar(aK + 32*(x%2) + 16*kt + 4*ks, 4)}, v{base} offset:{off + kt*512 + ks*64}", "K" if dyn else f"K{x}")
def v_read(x, n, dyn=False):
    dt, kt = n // 2, n % 2
    base, off = (vV, 0) if dyn else (vVl, (x % NS) * SLOT)
    return Ins(f"ds_read_b64_tr_b16 {ar(aV + 32*(x%2) + 4*dt + 2*kt, 2)}, v{base} offset:{off + kt*512 + dt*32}", "V" if dyn else f"V{x}")
def q_read(qt, ks, hd):
    return Ins(f"ds_read_b128 {ar(aQ + 16*qt + 4*ks, 4)}, v{vQ} offset:{qt*4*QP + 64*ks}", f"Q{hd}_{qt}")
def dma(srd, soff, off, tag):
    return Ins(f"buffer_load_dwordx4 v{vDMA}, {sreg(srd,4)}, {soff} offen offset:{off} {LP} lds", tag)
def o_store(reg, soff, off, sp):
    return Ins(f"buffer_store_dwordx4 {reg}, v{vDMA}, {sreg(SRD_O,4)}, {soff} offen offset:{off} {sp}", "st")

nst = [0]
def stamp():
    nst[0] += 1
    if a.probe == nst[0] - 1:
        A(f"s_memrealtime s[{sSt+6}:{sSt+7}]", "s_waitcnt lgkmcnt(0)")
    if a.probec:
        pa, pb = map(int, a.probec.split(","))
        if nst[0] - 1 == 0: A(f"s_memrealtime s[{sSt+6}:{sSt+7}]", "s_waitcnt lgkmcnt(0)")
        if nst[0] - 1 == pa: A(f"s_memtime s[{sSt+8}:{sSt+9}]", "s_waitcnt lgkmcnt(0)")
        if nst[0] - 1 == pb: A(f"s_memtime s[{sSt+10}:{sSt+11}]", "s_waitcnt lgkmcnt(0)")
    if not a.stamps: return
    A(f"s_memtime s[{sSt}:{sSt+1}]", f"s_memrealtime s[{sSt+2}:{sSt+3}]", "s_waitcnt lgkmcnt(0)",
      f"s_mov_b32 s{sSt+4}, m0", f"s_mov_b32 m0, s{sSt+5}",
      f"v_writelane_b32 v{vStamp}, s{sSt}, m0", f"v_writelane_b32 v{vStamp+1}, s{sSt+2}, m0",
      f"s_add_u32 s{sSt+5}, s{sSt+5}, 1", f"s_mov_b32 m0, s{sSt+4}")

COST = {"valu": 4, "trans": 8, "ds": 4, "vmem": 12, "salu": 0, "wait": 0, "barrier": 24}
def cost(i):
    if i.text.startswith("ds_write2"): return 20
    if i.text.startswith("buffer_store"): return 40
    return COST[i.kind]
class Phase:
    def __init__(s): s.mf, s.front, s.back, s.steps, s.pre = [], [], [], [], {}
    def step(s, qk=None, sm=None, pv=None, first=False, reads=(), early=False, hole=False):
        g0 = len(s.mf)
        m = (qk_mfmas(qk) if qk else []) + (pv_mfmas(pv, first) if pv else [])
        s.mf += m; s.front += [[] for _ in m]; s.back += [[] for _ in m]
        s.steps.append(g0)
        if not qk: s.before(g0, "s_nop 1")
        reads = list(reads)
        if len(m) == 17 and sm:
            f = lambda j: sm_f(sm, j); c = lambda k: sm_c(sm, k)
            if early:
                pat = {0: [f(0)], 2: [f(1)], 4: [f(2)], 6: [f(3)], 8: [f(4), f(5)], 10: [c(0), f(6)], 12: [c(1), f(7)], 14: [c(2)], 16: [c(3)]}
                rg = [0, 2, 4, 6]
            else:
                pat = {0: [f(0), f(1)], 2: [f(2)], 4: [c(0), f(3)], 6: [f(4)], 8: [c(1), f(5)], 10: [f(6)], 12: [c(2), f(7)], 16: [c(3)]}
                rg = [2, 6, 10, 16 if hole else 14]
            for j in range(8): pat[2 * j + 1] = [sm_e(sm, j)]
            for g, v in pat.items(): s.back[g0 + g] += [Ins(t) for t in v]
            for g in rg:
                if reads: s.front[g0 + g].append(reads.pop(0))
        elif sm:
            f = lambda j: sm_f(sm, j); c = lambda k: sm_c(sm, k); e = lambda j: sm_e(sm, j)
            pat = [[f(0), f(1), f(2), f(3)], [e(0), e(1)], [e(2), e(3)], [f(4), f(5), f(6), f(7)], [e(4), e(5)], [e(6), e(7)], [c(0), c(1)], [c(2), c(3)]]
            for g, v in enumerate(pat): s.back[g0 + g] += [Ins(t) for t in v]
        if reads: s.spread(reads, g0, len(s.mf) - 1)
        return g0
    def g(s, step, k=0): return s.steps[step] + k
    def load(s, g):
        sc = [k for k, i in enumerate(s.front[g]) if i.kind in ("salu", "wait")]
        return sum(cost(i) for i in s.front[g] + s.back[g]) + 4 * len([k for k in sc if k > 0])
    def put(s, g, *ins):
        for i in ins:
            if isinstance(i, str): i = Ins(i)
            (s.back if i.kind in ("valu", "trans") else s.front)[g].append(i)
    def shadow(s, g, *ins):
        s.front[g][0:0] = [Ins(i) if isinstance(i, str) else i for i in ins]
    def before(s, g, *ins):
        s.pre.setdefault(g, []).extend(Ins(i) if isinstance(i, str) else i for i in ins)
    def spread(s, ops, g0, g1):
        ops = [Ins(i) if isinstance(i, str) else i for i in ops]
        tot = sum(max(cost(i), 1) for i in ops); cum = 0
        ptr = g0; lastback = -1
        for i in ops:
            tg = min(g1, g0 + int(cum / tot * (g1 - g0 + 1))); cum += max(cost(i), 1)
            if i.kind in ("valu", "trans"):
                cand = [g for g in range(max(ptr, tg - 1), min(g1, tg + 1) + 1) if s.load(g) + COST[i.kind] <= 8]
                g = cand[0] if cand else max(ptr, tg)
                s.back[g].append(i); lastback = g
            else:
                lo = max(ptr, tg, lastback + 1)
                if lo > g1:
                    g = g1; s.back[g].append(i); lastback = g
                else:
                    rng = range(lo, min(g1, lo + 2) + 1)
                    if i.kind in ("salu", "wait"): cand = [g for g in rng if not s.front[g]]
                    else: cand = [g for g in rng if s.load(g) <= 4]
                    g = cand[0] if cand else lo
                    s.front[g].append(i)
            ptr = g
    def emit(s, name=None):
        n0 = len(code)
        for g, m in enumerate(s.mf):
            for i in s.pre.get(g, []): E(i)
            E(m)
            for i in s.front[g] + s.back[g]: E(i)
        if name: est.append((name, n0, len(code), len(s.mf)))
est = []

def sync(kv, lg="all"):
    return [W(vm=kv, lg=lg), Ins("s_barrier")]

def kv_dma(ph, gs, x, dyn=False):
    for p, g in enumerate(gs):
        if dyn:
            ph.shadow(g - 1, f"s_add_u32 m0, s{sW}, {32*p}")
            ph.put(g, dma(SRD_KV, f"s{sPoff}", 1024 * p, lambda y: f"KV{y+3}"))
        else:
            ph.shadow(g - 1, f"s_add_u32 m0, s{sWpart}, {(x % NS) * SLOT + 32*p}")
            ph.put(g, dma(SRD_KV, f"s{sPoff}", 1024 * p, f"KV{x}"))
    ph.shadow(gs[-1] + 1, f"s_add_u32 s{sPoff}, s{sPoff}, 8192")

def period(x, hd, dyn, ph=None, first=False, last=False):
    if ph is None: ph = Phase()
    s0 = len(ph.steps)
    un = lambda t, q: U(t, q, 6 * t + q)
    for j in range(6):
        qk = un(x, j + 2) if j < 4 else un(x + 1, j - 4)
        sm = un(x, j + 1) if j < 5 else un(x + 1, 0)
        reads = [k_read(x + 1, 4 * j + i, dyn) for i in range(4)] if j < 2 else [v_read(x + 1, 4 * (j - 2) + i, dyn) for i in range(4)]
        ph.step(qk, sm, un(x, j), first, reads, early=(j == 5), hole=(j < 4))
    G = lambda j, k: ph.g(s0 + j, k)
    if a.pad:
        for j in range(6): ph.back[G(j, 7)].append(Ins(f"s_nop {a.pad-1}"))
    ph.shadow(G(3, 15), W(lg="K" if dyn else f"K{x+1}"))
    kv_dma(ph, [G(0, 5), G(0, 14), G(1, 5), G(1, 14)], x + 3, dyn)
    if dyn:
        ph.shadow(G(4, 1), f"s_add_u32 s{sW}, s{sR}, s{sWpart}")
        ph.shadow(G(4, 2), f"s_add_u32 s{sT}, s{sR}, {SLOT}")
        ph.shadow(G(4, 3), f"s_cmp_eq_u32 s{sT}, {RING}")
        ph.shadow(G(4, 4), f"s_cselect_b32 s{sT}, 0, s{sT}")
        ph.shadow(G(4, 5), f"s_sub_u32 s{sD}, s{sT}, s{sR}")
        ph.shadow(G(4, 6), f"s_mov_b32 s{sR}, s{sT}")
        ph.put(G(4, 14), f"v_add_u32 v{vK}, s{sD}, v{vK}")
        ph.put(G(5, 14), f"v_add_u32 v{vV}, s{sD}, v{vV}")
        if not last:
            ph.shadow(G(5, 1), f"s_add_u32 s{sIt}, s{sIt}, 1")
            if hd == 0:
                ph.shadow(G(5, 2), f"s_cmp_eq_u32 s{sIt}, 6")
                ph.shadow(G(5, 3), f"s_cselect_b32 s{sPoff}, s{sKVoffN}, s{sPoff}")
        if hd == 0:
            for p in range(2):
                ph.shadow(G(2 + p, 13), f"s_add_u32 m0, s{sXm}, {(QP-1024)*p}")
                ph.put(G(2 + p, 14), dma(SRD_X, f"s{sXoff}", 1024 * p, lambda y: f"QD1_{(y-2)//2}"))
            ph.shadow(G(5, 9), f"s_add_u32 s{sXm}, s{sXm}, {2*QP}")
        else:
            for p in range(2):
                ph.put(G(2 + p, 14), o_store(vr(vE + 4*p, 4), f"s{sXoff}", 1024 * p, SPA.split("/")[p % len(SPA.split("/"))]))
        ph.shadow(G(5, 11), f"s_add_u32 s{sXoff}, s{sXoff}, 2048")
        if last: ph.shadow(G(5, 15), f"s_cmp_lt_u32 s{sIt}, 6")
    if hd == 1:
        ph.put(G(4, 16), Ins(f"ds_read_b128 {vr(vE, 4)}, v{vX}", "T"))
        ph.put(G(4, 9), Ins(f"ds_read_b128 {vr(vE + 4, 4)}, v{vX} offset:{QP}", "T"))
        ph.put(G(5, 16), f"v_add_u32 v{vX}, {2*QP}, v{vX}")
    ph.shadow(G(5, 16), *sync((lambda y: f"KV{y+2}") if dyn else f"KV{x+2}", "all" if dyn else [f"V{x+1}", "T"]))
    return ph

def main_loop(hd, x0):
    E(".p2align 3")
    t0 = len(trace)
    L(f"L_loop{hd}")
    halves = []
    for h in range(2):
        b = len(code)
        if a.stamps == 2: stamp()
        period(x0 + h, hd, True, last=(h == 1)).emit(f"period{hd}{h}")
        if h: A(f"s_cbranch_scc1 L_loop{hd}")
        halves.append(code[b:])
    del trace[t0:]
    for x in range(x0, x0 + 12):
        trace.extend((i, x) for i in halves[(x - x0) % 2])

def window(srd, ptr, hreg):
    A(f"s_mul_i32 s{sT}, s{hreg}, 98304", f"s_mul_i32 s{sT2}, s{sWV}, 24576", f"s_add_u32 s{sT}, s{sT}, s{sT2}",
      f"s_add_u32 s{srd}, s{ptr}, s{sT}", f"s_addc_u32 s{srd+1}, s{ptr+1}, 0", f"s_mov_b32 s{srd+2}, 24576")
def kv_offset(hreg, kv):
    A(f"s_lshl_b32 s{kv}, s{hreg}, 17", f"s_and_b32 s{sT}, s{sWV}, 1", f"s_lshl_b32 s{sT}, s{sT}, 12", f"s_add_u32 s{kv}, s{kv}, s{sT}")
def kv_issue(x):
    r = []
    for p in range(4):
        r += [f"s_add_u32 m0, s{sWpart}, {(x % NS)*SLOT + 32*p}", "s_nop 0", dma(SRD_KV, f"s{sPoff}", 1024*p, f"KV{x}")]
    return r + [f"s_add_u32 s{sPoff}, s{sPoff}, 8192"]
def q_issue(k):
    r = [f"s_mov_b32 s{sT2}, {4096*k}"]
    for p in range(4):
        r += [f"s_add_u32 m0, s{sReg}, {4*k*QP + (QP-1024)*p}", "s_nop 0", dma(SRD_Q, f"s{sT2}", 1024*p, f"QD0_{k}")]
    return r

def norm_a(qt):
    r = [f"v_accvgpr_read_b32 v{vT+1}, a{aL + 4*qt}", f"v_rcp_f32 v{vT}, v{vT+1}", f"v_cmp_nle_f32 vcc, s{sLo}, v{vT+1}"]
    for o in range(Oreg(qt, 0), Oreg(qt, 8), 2):
        r.append(f"v_pk_mul_f32 {vr(o,2)}, {vr(o,2)}, {vr(vT,2)} op_sel_hi:[1,0]")
    return r
def norm_b(qt):
    r = [f"s_or_b64 {sreg(sBad,2)}, {sreg(sBad,2)}, vcc", f"v_cmp_nge_f32 vcc, s{sHi}, v{vT+1}", f"v_add_u32 v{vT+2}, {qt*4*QP}, v{vOw}"]
    for dt in range(0, 8, 2):
        for d in (dt, dt + 1):
            o = Oreg(qt, d)
            r += [f"v_cvt_pk_bf16_f32 v{o}, v{o}, v{o+1}", f"v_cvt_pk_bf16_f32 v{o+1}, v{o+2}, v{o+3}"]
        if dt == 0: r.append(f"s_or_b64 {sreg(sBad,2)}, {sreg(sBad,2)}, vcc")
        r.append(Ins(f"ds_write2_b64 v{vT+2}, {vr(Oreg(qt, dt),2)}, {vr(Oreg(qt, dt+1),2)} offset0:{4*dt} offset1:{4*dt+4}", f"W{qt}"))
    return r
def back_ops(qt):
    return [Ins(f"ds_read_b128 {vr(Oreg(qt, j), 4)}, v{vOr} offset:{qt*4*QP + QP*j}", f"B{qt}_{j}") for j in range(4)]
def store_ops(qt, sp):
    r = [f"s_mov_b32 s{sT2}, {4096*qt}"]
    for j in range(4): r += [W(lg=f"B{qt}_{j}"), o_store(vr(Oreg(qt, j), 4), f"s{sT2}", 1024*j, sp)]
    return r
def flag_ops(bit):
    return [f"s_cmp_lg_u64 {sreg(sBad,2)}, 0", f"s_cselect_b32 s{sT2}, {bit}, 0", f"s_or_b32 s{sFlag}, s{sFlag}, s{sT2}", f"s_mov_b64 {sreg(sBad,2)}, 0"]

def boundary():
    order = [(14, 0), (14, 1), (14, 2), (15, 0), (15, 1), (15, 2), (14, 3), (15, 3), (14, 4), (15, 4), (14, 5), (15, 5), (16, 0), (16, 1)]
    us = [U(t, q, 84 + i) for i, (t, q) in enumerate(order)]
    ph = Phase()
    for j in range(12):
        reads = []
        if j in (1, 2): reads = [v_read(15, 8 * (j - 1) + n) for n in range(8)]
        if j == 0:
            reads = [k_read(15, n) for n in range(8)]
            g0 = ph.step(us[j + 2], us[j + 1], us[j], reads=reads[:4], early=True)
            for n in range(4): ph.put(g0 + 1 + 2 * n, reads[4 + n])
        else:
            ph.step(us[j + 2], us[j + 1], us[j], reads=reads)
    G = ph.g
    ph.shadow(G(0, 16), W(lg="K15"))
    ph.shadow(G(3, 7), W(lg="V15"))
    kv_dma(ph, [G(0, 11), G(0, 15), G(1, 11), G(1, 15)], 17)
    pre = {k: [W(vm=f"QD1_{k}")] + [q_read(k, ks, 1) for ks in range(4)] for k in range(6)}
    ph.spread(pre[0] + pre[1], G(3, 0), G(3, 16))
    ph.spread(pre[2], G(4, 0), G(4, 16)); ph.spread(pre[3], G(6, 0), G(6, 16)); ph.spread(pre[4], G(8, 0), G(8, 6))
    ph.spread(pre[5], G(10, 0), G(10, 7))
    ph.shadow(G(8, 7), *sync("KV16", "V15"))
    ph.spread([k_read(16, n) for n in range(8)], G(8, 8), G(9, 8))
    ph.shadow(G(9, 16), W(lg=["K16", "Q1_0", "Q1_1"]))
    kv_dma(ph, [G(9, 9), G(9, 11), G(9, 13), G(9, 15)], 18)
    ph.spread([v_read(16, n) for n in range(16)], G(10, 10), G(11, 8))
    ph.shadow(G(11, 16), *sync("KV17", ["V16", "Q1_5"]))
    period(16, 1, False, ph, first=True)
    for k, (ga, gb) in enumerate([(G(4, 5), G(5, 16)), (G(6, 1), G(7, 16)), (G(8, 1), G(9, 16)), (G(11, 9), G(13, 0)), (G(13, 1), G(14, 16)), (G(15, 1), G(16, 16))]):
        ph.put(ga, *norm_a(k))
        ph.spread(norm_b(k), ga + 1, gb)
    for k, i in enumerate(flag_ops(1) + [f"s_mov_b32 s{sIt}, 0", f"s_mov_b32 s{sXoff}, 0", f"s_mov_b32 s{sR}, {(18 % NS) * SLOT}", f"s_add_u32 s{sW}, s{sWpart}, {(17 % NS) * SLOT}"]):
        ph.shadow(G(17, 1 + k), i)
    ph.put(G(17, 14), f"v_add_u32 v{vK}, {(18 % NS) * SLOT}, v{vKl}")
    ph.put(G(16, 14), f"v_add_u32 v{vV}, {(18 % NS) * SLOT}, v{vVl}")
    ph.emit("boundary")

def finish():
    order = [(29, q) for q in range(6)] + [(t, q) for q in range(6) for t in (30, 31)]
    us = [U(t, q, 174 + i) for i, (t, q) in enumerate(order)] + [None, None]
    ph = Phase()
    vr30 = [v_read(30, n) for n in range(16)]
    rd = {0: [k_read(30, n) for n in range(6)], 1: [k_read(30, n) for n in range(6, 8)] + vr30[:4], 2: vr30[4:10], 5: vr30[12:]}
    for j in range(18):
        ph.step(us[j + 2], us[j + 1], us[j], reads=rd.get(j, []), early=(j == 5))
    G = ph.g
    for k, i in enumerate([f"s_mul_i32 s{sT}, s{sHB}, 98304", f"s_mul_i32 s{sT2}, s{sWV}, 24576", f"s_add_u32 s{sT}, s{sT}, s{sT2}",
                           f"s_add_u32 s{SRD_O}, s{sOp}, s{sT}", f"s_addc_u32 s{SRD_O+1}, s{sOp+1}, 0"]):
        ph.shadow(G(0, 1 + k), i)
    ph.spread(vr30[10:12], G(3, 0), G(3, 6))
    ph.shadow(G(3, 7), *sync("KV31", "K30"))
    ph.spread([k_read(31, n) for n in range(8)], G(3, 8), G(4, 10))
    ph.shadow(G(4, 16), W(lg="K31"))
    ph.spread([v_read(31, n) for n in range(16)], G(5, 10), G(6, 16))
    ph.shadow(G(6, 7), W(lg="V30"))
    ph.shadow(G(7, 7), W(lg="V31"))
    for k in range(4):
        j = 8 + 2 * k
        ph.put(G(j, 3), *norm_a(k))
        ph.spread(norm_b(k) + back_ops(k), G(j, 4), G(j, 16))
        ph.spread(store_ops(k, SP), G(j + 1, 4), G(j + 1, 16))
    ph.put(G(16, 2), *norm_a(4))
    ph.spread(norm_b(4) + back_ops(4), G(16, 3), G(17, 4))
    ph.emit("finish")
    n0 = len(code)
    st4 = store_ops(4, SP)
    A(*st4[:5]); A("s_nop 2")
    A(*norm_a(5)); nb = norm_b(5)
    A(*(nb[:9] + st4[5:7] + nb[9:14] + st4[7:] + nb[14:] + back_ops(5) + flag_ops(2) + store_ops(5, SP)))
    est.append(("tail", n0, len(code), 0))

L(NAME)
A("s_load_dwordx8 s[4:11], s[0:1], 0", "s_cmp_ge_u32 s2, 256", "s_cbranch_scc1 L_exit")
if a.cpf:
    C("touch eight 128-byte lines of this kernel's code per workgroup so that later instruction fetches hit in L2")
    A("s_getpc_b64 s[12:13]", f"s_lshr_b32 s{sT}, s2, 3", f"s_lshl_b32 s{sT}, s{sT}, 10", f"v_lshrrev_b32 v{vT}, 5, v0",
      f"v_lshl_add_u32 v{vT}, v{vT}, 7, s{sT}", f"v_min_u32 v{vT}, L_exit-{NAME}-64, v{vT}",
      Ins(f"global_load_dword v{vT+5}, v{vT}, s[12:13]", "code"))
if a.stamps: A(f"s_load_dwordx2 s[{SRD_W}:{SRD_W+1}], s[0:1], 40", f"s_mov_b32 s{sSt+5}, 0")
A(f"v_lshrrev_b32 v{vT}, 6, v0", "v_and_b32 v0, 63, v0", f"v_readfirstlane_b32 s{sWV}, v{vT}", f"v_lshlrev_b32 v{vDMA}, 4, v0")
if a.hmap == 0: A(f"s_lshl_b32 s{sHA}, s2, 1")
else: A(f"s_mov_b32 s{sHA}, s2")
A(f"s_mov_b32 s{SRD_KV+3}, 0x20000", f"s_mov_b32 s{SRD_KV+2}, {KBYTES}", f"s_mul_i32 s{sWpart}, s{sWV}, {4*PIECE}")
kv_offset(sHA, sPoff)
A(f"s_cmp_lt_u32 s{sWV}, 2", "s_waitcnt lgkmcnt(0)", f"s_cselect_b64 {sreg(SRD_KV,2)}, s[6:7], s[8:9]")
if a.stamps: A(f"s_mov_b32 s{SRD_W+2}, 268435456", f"s_mov_b32 s{SRD_W+3}, 0x20000")
stamp()
def fill(seq, filler):
    for i in seq:
        if i == "s_nop 0" and filler: A(filler.pop(0))
        else: A(i)
fl = [f"s_mul_i32 s{sReg}, s{sWV}, {REGW}", f"s_add_u32 s{sReg}, s{sReg}, {REG}", f"s_mov_b32 s{SRD_Q+3}, 0x20000", f"s_add_u32 s{sHB}, s{sHA}, {256 if a.hmap else 1}"]
fill(kv_issue(0), fl)
window(SRD_Q, sQp, sHA)
fl = [f"s_mov_b32 s{SRD_O+3}, 0x20000", f"s_mov_b32 s{SRD_X+3}, 0x20000", f"s_mov_b32 s{sFlag}, {a.force_redo}", f"s_mov_b64 {sreg(sBad,2)}, 0",
      f"s_mov_b32 s{sC}, 0x{CSCALE:08x}", f"s_mov_b32 s{sLo}, 0x30800000", f"s_mov_b32 s{sHi}, 0x4e800000", f"s_mov_b32 s{sIt}, 0"]
fill(q_issue(0), fl)
k1 = kv_issue(1)
fill(k1[:6], fl)
C("---- per-lane LDS addresses (i = lane%16, g = lane/16)")
A(f"v_and_b32 v{vT}, 15, v0", f"v_lshrrev_b32 v{vT+1}, 4, v0")
A(f"v_and_b32 v{vT+2}, 7, v{vT}", f"v_mul_u32_u24 v{vKl}, {PIECE}, v{vT+2}", f"v_lshrrev_b32 v{vT+2}, 3, v{vT}",
  f"v_lshl_add_u32 v{vKl}, v{vT+2}, 8, v{vKl}", f"v_lshl_add_u32 v{vKl}, v{vT+1}, 4, v{vKl}")
A(f"v_bfe_u32 v{vT+2}, v0, 2, 3", f"v_mul_u32_u24 v{vVl}, {PIECE}, v{vT+2}", f"v_lshrrev_b32 v{vT+2}, 5, v0",
  f"v_lshl_add_u32 v{vVl}, v{vT+2}, 8, v{vVl}", f"v_and_b32 v{vT+2}, 3, v0", f"v_lshl_add_u32 v{vVl}, v{vT+2}, 3, v{vVl}",
  f"v_add_u32 v{vVl}, {8*PIECE}, v{vVl}")
A(f"v_cmp_eq_u32 vcc, 0, v{vT+2}", f"v_mov_b32 v{vT+4}, 0x3f803f80")
A(f"v_mul_u32_u24 v{vQ}, {QP}, v{vT+2}", f"v_cndmask_b32 v{vT+4}, 0, v{vT+4}, vcc", f"v_lshrrev_b32 v{vT+3}, 2, v{vT}",
  f"v_lshl_add_u32 v{vQ}, v{vT+3}, 8, v{vQ}", f"v_lshl_add_u32 v{vQ}, v{vT+1}, 4, v{vQ}", f"v_add_u32 v{vQ}, s{sReg}, v{vQ}")
A(f"v_lshl_add_u32 v{vT+2}, v{vT+2}, 2, v{vT+3}", f"v_mul_u32_u24 v{vOw}, 272, v{vT+2}", f"v_lshl_add_u32 v{vOw}, v{vT+1}, 3, v{vOw}",
  f"v_add_u32 v{vOw}, s{sReg}, v{vOw}", f"v_mul_u32_u24 v{vOr}, 272, v{vT+1}", f"v_lshl_add_u32 v{vOr}, v{vT}, 4, v{vOr}",
  f"v_add_u32 v{vOr}, s{sReg}, v{vOr}", f"v_mov_b32 v{vX}, v{vOr}")
for j in range(4): A(f"v_accvgpr_write_b32 a{aONE+j}, v{vT+4}")
A(f"v_add_u32 v{vK}, {(3 % NS) * SLOT}, v{vKl}", f"v_add_u32 v{vV}, {(3 % NS) * SLOT}, v{vVl}")
window(SRD_O, sOp, sHA)
if "nost" in a.abl: A(f"s_mov_b32 s{SRD_O+2}, 0")
window(SRD_X, sQp, sHB)
kv_offset(sHB, sKVoffN)
A(f"s_mov_b32 s{sXoff}, 0", f"s_mov_b32 s{sXm}, s{sReg}", f"s_mov_b32 s{sR}, {(3 % NS) * SLOT}", f"s_add_u32 s{sW}, s{sWpart}, {(2 % NS) * SLOT}")
fill(k1[6:], fl)
assert not fl
C("---- start-up: tiles 0 and 1 are processed q-major while Q arrives")
def st3():
    if a.stamps == 3: stamp()
st3()
A(*sync("KV0", None)); st3()
A(*[k_read(0, n) for n in range(8)]); A(*q_issue(1))
A(W(vm="QD0_0")); st3(); A(*[q_read(0, ks, 0) for ks in range(4)]); A(*q_issue(2)); A(W(lg="all"))
us = [U(t, q, 2 * q + t) for q in range(6) for t in range(2)] + [U(2, 0, 12), U(2, 1, 13)]
ph = Phase()
ph.step(us[0], reads=[v_read(0, n) for n in range(16)])
ph.emit()
A(*sync("KV1")); st3()
A(*[k_read(1, n) for n in range(8)]); A(*q_issue(3)); A(W(lg="all"))
def q_dma(ph, gs, k):
    ph.shadow(gs[0] - 2, f"s_mov_b32 s{sT2}, {4096*k}")
    for p, g in enumerate(gs):
        ph.shadow(g - 1, f"s_add_u32 m0, s{sReg}, {4*k*QP + (QP-1024)*p}")
        ph.put(g, dma(SRD_Q, f"s{sT2}", 1024*p, f"QD0_{k}"))
ph = Phase()
for n in range(1, 14):
    ph.step(us[n], us[n - 1], us[n - 2] if n >= 2 else None, first=(n % 2 == 0))
G = lambda n, k: ph.g(n - 1, k)
ph.spread([W(vm="QD0_1")] + [q_read(1, ks, 0) for ks in range(4)], G(1, 0), G(1, 4))
ph.shadow(G(1, 7), W(lg="Q0_1"))
ph.spread([v_read(1, n) for n in range(16)], G(2, 0), G(2, 16))
ph.shadow(G(3, 7), W(lg="V1"))
q_dma(ph, [G(2, 3), G(2, 7), G(2, 11), G(2, 15)], 4)
for q in range(2, 6):
    n = 2 * q - 1
    ph.shadow(G(n, 1), W(vm=f"QD0_{q}"))
    for ks in range(4): ph.put(G(n, [2, 6, 10, 10][ks]), q_read(q, ks, 0))
    ph.shadow(G(n, 16), W(lg=f"Q0_{q}"))
    gs = [G(n, 5), G(n, 9), G(n, 14), G(n + 1, 2)]
    if q == 2: q_dma(ph, gs, 5)
    else: kv_dma(ph, gs, q - 1)
ph.shadow(G(6, 8), "s_barrier")
ph.shadow(G(10, 8), *sync("KV2", None))
ph.spread([k_read(2, n) for n in range(8)], G(10, 9), G(11, 10))
ph.shadow(G(11, 16), W(lg="K2"))
ph.spread([v_read(2, n) for n in range(16)], G(12, 10), G(13, 8))
ph.shadow(G(13, 16), *sync("KV3"))
ph.emit("start")
stamp()
main_loop(0, 2)
stamp()
boundary()
stamp()
main_loop(1, 17)
stamp()
finish()
stamp()
C("---- combine the per-wave 'row sum left the safe range' flags of the workgroup")
A(f"s_lshl_b32 s{sT}, s{sWV}, 2", f"s_add_u32 s{sT}, s{sT}, {FLAGS}", f"v_mov_b32 v{vT}, s{sT}", f"v_mov_b32 v{vT+1}, s{sFlag}",
  f"ds_write_b32 v{vT}, v{vT+1}", f"v_mov_b32 v{vT}, {FLAGS}", "s_waitcnt lgkmcnt(0)", "s_barrier",
  f"ds_read_b128 {vr(vT+2,4)}, v{vT}", "s_waitcnt lgkmcnt(0)",
  f"v_or_b32 v{vT+2}, v{vT+2}, v{vT+3}", f"v_or3_b32 v{vT+2}, v{vT+2}, v{vT+4}, v{vT+5}", "s_nop 0",
  f"v_readfirstlane_b32 s{sPend}, v{vT+2}", "s_nop 3")
L("L_pend")
A(f"s_cmp_eq_u32 s{sPend}, 0", "s_cbranch_scc1 L_done")
C("==== rare path: redo a head, subtracting the true row maximum (plain, unpipelined code)")
A(f"s_bitcmp1_b32 s{sPend}, 0", f"s_cselect_b32 s{sCur}, s{sHA}, s{sHB}", f"s_cselect_b32 s{sT}, 2, 0", f"s_and_b32 s{sPend}, s{sPend}, s{sT}",
  "s_waitcnt vmcnt(0) lgkmcnt(0)", "s_barrier", f"s_mov_b32 s{SRD_KV+2}, {KBYTES}")
window(SRD_Q, sQp, sCur); window(SRD_O, sOp, sCur)
for k in range(6): A(*q_issue(k))
for j in range(6): A(f"v_mov_b32 v{vM+j}, 0xff800000")
A("s_waitcnt vmcnt(0)")
for k in range(6):
    A(*[q_read(k, ks, 0) for ks in range(4)]); A("s_waitcnt lgkmcnt(0)")
kv_offset(sCur, sPoff)
A(f"s_mov_b32 s{sIt}, 0")
L("L_maxloop")
A(*kv_issue(0)); A("s_waitcnt vmcnt(0)", "s_barrier")
A(*[k_read(0, n) for n in range(8)]); A("s_waitcnt lgkmcnt(0)", "s_barrier")
for qt in range(6):
    A(*qk_mfmas(U(0, qt, 0))); A("s_nop 7")
    for j in range(4): A(f"v_max3_f32 v{vM+qt}, v{vM+qt}, v{vS+2*j}, v{vS+2*j+1}")
A(f"s_add_u32 s{sIt}, s{sIt}, 1", f"s_cmp_lt_u32 s{sIt}, 16", "s_cbranch_scc1 L_maxloop")
for qt in range(6):
    m = vM + qt
    A(f"v_mov_b32 v{vT}, v{m}", "s_nop 1", f"v_permlane32_swap_b32 v{vT}, v{m}", "s_nop 1", f"v_max_f32 v{m}, v{m}, v{vT}",
      f"v_mov_b32 v{vT}, v{m}", "s_nop 1", f"v_permlane16_swap_b32 v{vT}, v{m}", "s_nop 1", f"v_max_f32 v{m}, v{m}, v{vT}",
      f"v_mul_f32 v{m}, s{sC}, v{m}", f"v_sub_f32 v{m}, 0, v{m}")
for r in range(vO, 256, 2): A(f"v_mov_b64 {vr(r,2)}, 0")
for r in range(24): A(f"v_accvgpr_write_b32 a{aL+r}, 0")
kv_offset(sCur, sPoff)
A(f"s_mov_b32 s{sIt}, 0")
L("L_slowloop")
A(*kv_issue(0)); A("s_waitcnt vmcnt(0)", "s_barrier")
A(*[k_read(0, n) for n in range(8)]); A("s_waitcnt lgkmcnt(0)")
A(*[v_read(0, n) for n in range(16)]); A("s_waitcnt lgkmcnt(0)", "s_barrier")
for qt in range(6):
    u = U(0, qt, 0)
    A(*qk_mfmas(u)); A("s_nop 7")
    for j in range(8): A(f"v_fma_f32 v{vS+j}, v{vS+j}, s{sC}, v{vM+qt}")
    for j in range(8): A(sm_e(u, j))
    A("s_nop 0")
    for k in range(4): A(sm_c(u, k))
    A("s_nop 1"); A(*pv_mfmas(u))
A(f"s_add_u32 s{sIt}, s{sIt}, 1", f"s_cmp_lt_u32 s{sIt}, 16", "s_cbranch_scc1 L_slowloop")
A("s_nop 7")
for qt in range(6): A(*(norm_a(qt) + norm_b(qt) + back_ops(qt) + store_ops(qt, SP)))
A("s_branch L_pend")
L("L_done")
if a.probe >= 0 or a.probec:
    A("s_waitcnt vmcnt(0)"); stamp()
    if a.probec: A(f"s_sub_u32 s{sSt+8}, s{sSt+10}, s{sSt+8}", f"s_lshr_b32 s{sSt+8}, s{sSt+8}, 3", f"s_add_u32 s{sSt+6}, s{sSt+6}, s{sSt+8}")
    L("L_spin")
    A(f"s_memrealtime s[{sSt}:{sSt+1}]", "s_waitcnt lgkmcnt(0)", f"s_sub_u32 s{sSt}, s{sSt}, s{sSt+6}", f"s_cmp_lt_i32 s{sSt}, 10000", "s_cbranch_scc1 L_spin")
if a.stamps:
    A("s_waitcnt vmcnt(0)"); stamp()
    A(f"v_lshlrev_b32 v{vT}, 3, v0", f"s_lshl_b32 s{sT}, s2, 2", f"s_add_u32 s{sT}, s{sT}, s{sWV}", f"s_lshl_b32 s{sT}, s{sT}, 9",
      f"buffer_store_dwordx2 {vr(vStamp,2)}, v{vT}, {sreg(SRD_W,4)}, s{sT} offen")
L("L_exit")
A("s_endpgm")

resolve(trace)
errs = verify(trace)
for e in errs[:40]: print("VERIFY:", e, file=sys.stderr)
if a.est:
    for (name, n0, n1, nm) in est: print(f"est {name}: {estimate(code[n0:n1])} cycles, {nm} mfma", file=sys.stderr)
hdr = open("standalone__mha_softmax__near_ridge.s.ref").read().split("; Override launch")[0]
o = [hdr.rstrip(), f"; @launch grid=(256,1,1) block=(256,1,1) lds={LDS}", '.amdgcn_target "amdgcn-amd-amdhsa--gfx950"',
     ".text", f".globl {NAME}", ".p2align 8", f".type {NAME},@function"]
for i in code:
    t = i.render()
    if t is None: continue
    o.append(t if i.kind == "label" or t.startswith(".") else "    " + t.rstrip())
o += ['.section .rodata,"a"', ".p2align 6", f".amdhsa_kernel {NAME}", """  .amdhsa_next_free_vgpr 512
  .amdhsa_next_free_sgpr 102
  .amdhsa_accum_offset 256
  .amdhsa_group_segment_fixed_size 0
  .amdhsa_kernarg_size 48
  .amdhsa_user_sgpr_count 2
  .amdhsa_user_sgpr_kernarg_segment_ptr 1
  .amdhsa_system_sgpr_workgroup_id_x 1
  .amdhsa_float_denorm_mode_32 3""", ".end_amdhsa_kernel"]
print("\n".join(o))
sys.exit(1 if errs else 0)
```

```python
import sys, argparse, struct
from asmlib import *
ap = argparse.ArgumentParser()
ap.add_argument("--lp", default="nt")
ap.add_argument("--sp", default="sc1")
ap.add_argument("--spa", default="sc1")
ap.add_argument("--hmap", type=int, default=1)
ap.add_argument("--stamps", type=int, default=0)
ap.add_argument("--probe", type=int, default=-1)
ap.add_argument("--force_redo", type=int, default=0)
ap.add_argument("--cpf", type=int, default=1)
ap.add_argument("--dmapos", default="0,0,1,1")
ap.add_argument("--est", type=int, default=0)
a = ap.parse_args()
pol = lambda s: s.replace("+", " ").replace("-", "")
LP, SP, SPA = pol(a.lp), pol(a.sp), pol(a.spa)

NAME = "standalone__mha_softmax__near_ridge_kernel"
PIECE = 1056
SLOT = 16 * PIECE
NS = 3
RING = NS * SLOT
QP = 1088
REGW = 24 * QP
REG = RING
FLAGS = REG + 4 * REGW
LDS = FLAGS + 64
assert LDS <= 163840
KBYTES = 16 * 32 * 512 * 128 * 2
CSCALE = struct.unpack("<I", struct.pack("<f", 1.4426950408889634 * 128 ** -0.5))[0]

sWV = 3
sQp, sOp = 4, 10
SRD_Q, SRD_KV, SRD_O, SRD_X = 16, 20, 24, 28
sC, sPoff = 32, 33
sR, sW, sD, sT = 35, 36, 37, 38
sWpart, sIt, sCur = 39, 40, 41
sXoff, sXm = 42, 43
sNextSz, sReg, sKVoffN, sKVoff = 44, 45, 46, 48
sBad = 50
sFlag, sPend = 52, 54
sHA, sHB = 56, 57
sT2, sLo, sHi, sCm = 59, 60, 61, 62
SRD_W, sSt = 64, 68
vDMA, vK, vV, vQ, vOw, vOr, vKl, vVl, vX = 1, 2, 3, 4, 5, 6, 7, 8, 9
vT = 10
vM = 16
vStamp = 22
vS = 24
vE = 48
vO = 64
aQ, aK, aV, aL, aONE = 0, 96, 160, 224, 248

def vr(b, n): return f"v[{b}:{b+n-1}]"
def ar(b, n): return f"a[{b}:{b+n-1}]"
def sreg(b, n): return f"s[{b}:{b+n-1}]"
def Sbuf(n): return vS + 8 * (n % 3)
def Oreg(qt, dt): return vO + 32 * qt + 4 * dt

code = []
trace = []
ctx = [None]
def E(i, tr=True):
    if isinstance(i, str): i = Ins(i)
    code.append(i)
    if tr: trace.append((i, ctx[0]))
    return i
def A(*xs):
    for x in xs: E(x)
def L(s): E(s + ":")
def C(s): E("; " + s)

MF = "v_mfma_f32_16x16x32_bf16"
class U:
    def __init__(s, x, q, n): s.x, s.q, s.n = x, q, n
def qk_mfmas(u):
    r = []
    for kt in range(2):
        d = vr(Sbuf(u.n) + 4 * kt, 4)
        for ks in range(4):
            r.append(f"{MF} {d}, {ar(aK + 32*(u.x%2) + 16*kt + 4*ks, 4)}, {ar(aQ + 16*u.q + 4*ks, 4)}, {'0' if ks == 0 else d}")
    return r
def pv_mfmas(u, first=False):
    r = []
    p = vr(Sbuf(u.n), 4)
    for dt in range(8):
        d = vr(Oreg(u.q, dt), 4)
        r.append(f"{MF} {d}, {ar(aV + 32*(u.x%2) + 4*dt, 4)}, {p}, {'0' if first else d}")
    d = ar(aL + 4 * u.q, 4)
    r.append(f"{MF} {d}, {ar(aONE, 4)}, {p}, {'0' if first else d}")
    return r
def sm_f(u, j): return f"v_mul_f32 v{Sbuf(u.n)+j}, s{sC}, v{Sbuf(u.n)+j}"
def sm_e(u, j): return f"v_exp_f32 v{Sbuf(u.n)+j}, v{Sbuf(u.n)+j}"
def sm_c(u, k): return f"v_cvt_pk_bf16_f32 v{Sbuf(u.n)+k}, v{Sbuf(u.n)+2*k}, v{Sbuf(u.n)+2*k+1}"
def k_read(x, n, dyn=False):
    kt, ks = n // 4, n % 4
    base, off = (vK, 0) if dyn else (vKl, (x % NS) * SLOT)
    return Ins(f"ds_read_b128 {ar(aK + 32*(x%2) + 16*kt + 4*ks, 4)}, v{base} offset:{off + kt*512 + ks*64}", "K" if dyn else f"K{x}")
def v_read(x, n, dyn=False):
    dt, kt = n // 2, n % 2
    base, off = (vV, 0) if dyn else (vVl, (x % NS) * SLOT)
    return Ins(f"ds_read_b64_tr_b16 {ar(aV + 32*(x%2) + 4*dt + 2*kt, 2)}, v{base} offset:{off + kt*512 + dt*32}", "V" if dyn else f"V{x}")
def q_read(qt, ks, hd):
    return Ins(f"ds_read_b128 {ar(aQ + 16*qt + 4*ks, 4)}, v{vQ} offset:{qt*4*QP + 64*ks}", f"Q{hd}_{qt}")
def dma(srd, soff, off, tag):
    return Ins(f"buffer_load_dwordx4 v{vDMA}, {sreg(srd,4)}, {soff} offen offset:{off} {LP} lds", tag)
def o_store(reg, soff, off, sp):
    return Ins(f"buffer_store_dwordx4 {reg}, v{vDMA}, {sreg(SRD_O,4)}, {soff} offen offset:{off} {sp}", "st")

nst = [0]
def stamp():
    nst[0] += 1
    if a.probe == nst[0] - 1:
        A(f"s_memrealtime s[{sSt+6}:{sSt+7}]", "s_waitcnt lgkmcnt(0)")
    if not a.stamps: return
    A(f"s_memtime s[{sSt}:{sSt+1}]", f"s_memrealtime s[{sSt+2}:{sSt+3}]", "s_waitcnt lgkmcnt(0)",
      f"s_mov_b32 s{sSt+4}, m0", f"s_mov_b32 m0, s{sSt+5}",
      f"v_writelane_b32 v{vStamp}, s{sSt}, m0", f"v_writelane_b32 v{vStamp+1}, s{sSt+2}, m0",
      f"s_add_u32 s{sSt+5}, s{sSt+5}, 1", f"s_mov_b32 m0, s{sSt+4}")

COST = {"valu": 4, "trans": 8, "ds": 4, "vmem": 12, "salu": 0, "wait": 0, "barrier": 24}
def cost(i):
    if i.text.startswith("ds_write2"): return 20
    if i.text.startswith("buffer_store"): return 40
    return COST[i.kind]
class Phase:
    def __init__(s): s.mf, s.front, s.back, s.steps, s.pre = [], [], [], [], {}
    def step(s, qk=None, sm=None, pv=None, first=False, reads=(), early=False, hole=False):
        g0 = len(s.mf)
        m = (qk_mfmas(qk) if qk else []) + (pv_mfmas(pv, first) if pv else [])
        s.mf += m; s.front += [[] for _ in m]; s.back += [[] for _ in m]
        s.steps.append(g0)
        if not qk: s.before(g0, "s_nop 1")
        reads = list(reads)
        if len(m) == 17 and sm:
            f = lambda j: sm_f(sm, j); c = lambda k: sm_c(sm, k)
            if early:
                pat = {0: [f(0)], 2: [f(1)], 4: [f(2)], 6: [f(3)], 8: [f(4), f(5)], 10: [c(0), f(6)], 12: [c(1), f(7)], 14: [c(2)], 16: [c(3)]}
                rg = [0, 2, 4, 6]
            else:
                pat = {0: [f(0), f(1)], 2: [f(2)], 4: [c(0), f(3)], 6: [f(4)], 8: [c(1), f(5)], 10: [f(6)], 12: [c(2), f(7)], 16: [c(3)]}
                rg = [2, 6, 10, 16 if hole else 14]
            for j in range(8): pat[2 * j + 1] = [sm_e(sm, j)]
            for g, v in pat.items(): s.back[g0 + g] += [Ins(t) for t in v]
            for g in rg:
                if reads: s.front[g0 + g].append(reads.pop(0))
        elif sm:
            f = lambda j: sm_f(sm, j); c = lambda k: sm_c(sm, k); e = lambda j: sm_e(sm, j)
            pat = [[f(0), f(1), f(2), f(3)], [e(0), e(1)], [e(2), e(3)], [f(4), f(5), f(6), f(7)], [e(4), e(5)], [e(6), e(7)], [c(0), c(1)], [c(2), c(3)]]
            for g, v in enumerate(pat): s.back[g0 + g] += [Ins(t) for t in v]
        if reads: s.spread(reads, g0, len(s.mf) - 1)
        return g0
    def g(s, step, k=0): return s.steps[step] + k
    def load(s, g):
        sc = [k for k, i in enumerate(s.front[g]) if i.kind in ("salu", "wait")]
        return sum(cost(i) for i in s.front[g] + s.back[g]) + 4 * len([k for k in sc if k > 0])
    def put(s, g, *ins):
        for i in ins:
            if isinstance(i, str): i = Ins(i)
            (s.back if i.kind in ("valu", "trans") else s.front)[g].append(i)
    def shadow(s, g, *ins):
        s.front[g][0:0] = [Ins(i) if isinstance(i, str) else i for i in ins]
    def before(s, g, *ins):
        s.pre.setdefault(g, []).extend(Ins(i) if isinstance(i, str) else i for i in ins)
    def spread(s, ops, g0, g1):
        ops = [Ins(i) if isinstance(i, str) else i for i in ops]
        tot = sum(max(cost(i), 1) for i in ops); cum = 0
        ptr = g0; lastback = -1
        for i in ops:
            tg = min(g1, g0 + int(cum / tot * (g1 - g0 + 1))); cum += max(cost(i), 1)
            if i.kind in ("valu", "trans"):
                cand = [g for g in range(max(ptr, tg - 1), min(g1, tg + 1) + 1) if s.load(g) + COST[i.kind] <= 8]
                g = cand[0] if cand else max(ptr, tg)
                s.back[g].append(i); lastback = g
            else:
                lo = max(ptr, tg, lastback + 1)
                if lo > g1:
                    g = g1; s.back[g].append(i); lastback = g
                else:
                    rng = range(lo, min(g1, lo + 2) + 1)
                    if i.kind in ("salu", "wait"): cand = [g for g in rng if not s.front[g]]
                    else: cand = [g for g in rng if s.load(g) <= 4]
                    g = cand[0] if cand else lo
                    s.front[g].append(i)
            ptr = g
    def emit(s, name=None):
        n0 = len(code)
        for g, m in enumerate(s.mf):
            for i in s.pre.get(g, []): E(i)
            E(m)
            for i in s.front[g] + s.back[g]: E(i)
        if name: est.append((name, n0, len(code), len(s.mf)))
est = []

def sync(kv, lg="all"):
    return [W(vm=kv, lg=lg), Ins("s_barrier")]

def kv_dma(ph, gs, x, dyn=False):
    for p, g in enumerate(gs):
        if dyn:
            ph.shadow(g - 1, f"s_add_u32 m0, s{sW}, {32*p}")
            ph.put(g, dma(SRD_KV, f"s{sPoff}", 1024 * p, lambda y: f"KV{y+3}"))
        else:
            ph.shadow(g - 1, f"s_add_u32 m0, s{sWpart}, {(x % NS) * SLOT + 32*p}")
            ph.put(g, dma(SRD_KV, f"s{sPoff}", 1024 * p, f"KV{x}"))
    ph.shadow(gs[-1] + 1, f"s_add_u32 s{sPoff}, s{sPoff}, 8192")

def period(x, hd, dyn, ph=None, first=False, last=False):
    if ph is None: ph = Phase()
    s0 = len(ph.steps)
    un = lambda t, q: U(t, q, 6 * t + q)
    for j in range(6):
        qk = un(x, j + 2) if j < 4 else un(x + 1, j - 4)
        sm = un(x, j + 1) if j < 5 else un(x + 1, 0)
        reads = [k_read(x + 1, 4 * j + i, dyn) for i in range(4)] if j < 2 else [v_read(x + 1, 4 * (j - 2) + i, dyn) for i in range(4)]
        ph.step(qk, sm, un(x, j), first, reads, early=(j == 5), hole=(j < 4))
    G = lambda j, k: ph.g(s0 + j, k)
    ph.shadow(G(3, 15), W(lg="K" if dyn else f"K{x+1}"))
    kv_dma(ph, [G(0, 5), G(0, 14), G(1, 5), G(1, 14)], x + 3, dyn)
    if dyn:
        ph.shadow(G(4, 1), f"s_add_u32 s{sW}, s{sR}, s{sWpart}")
        ph.shadow(G(4, 2), f"s_add_u32 s{sT}, s{sR}, {SLOT}")
        ph.shadow(G(4, 3), f"s_cmp_eq_u32 s{sT}, {RING}")
        ph.shadow(G(4, 4), f"s_cselect_b32 s{sT}, 0, s{sT}")
        ph.shadow(G(4, 5), f"s_sub_u32 s{sD}, s{sT}, s{sR}")
        ph.shadow(G(4, 6), f"s_mov_b32 s{sR}, s{sT}")
        ph.put(G(4, 14), f"v_add_u32 v{vK}, s{sD}, v{vK}")
        ph.put(G(5, 14), f"v_add_u32 v{vV}, s{sD}, v{vV}")
        if not last:
            ph.shadow(G(5, 1), f"s_add_u32 s{sIt}, s{sIt}, 1")
            if hd == 0:
                ph.shadow(G(5, 2), f"s_cmp_eq_u32 s{sIt}, 6")
                ph.shadow(G(5, 3), f"s_cselect_b32 s{sPoff}, s{sKVoffN}, s{sPoff}")
        if hd == 0:
            for p in range(2):
                ph.shadow(G(2 + p, 13), f"s_add_u32 m0, s{sXm}, {(QP-1024)*p}")
                ph.put(G(2 + p, 14), dma(SRD_X, f"s{sXoff}", 1024 * p, lambda y: f"QD1_{(y-2)//2}"))
            ph.shadow(G(5, 9), f"s_add_u32 s{sXm}, s{sXm}, {2*QP}")
        else:
            for p in range(2):
                ph.put(G(2 + p, 14), o_store(vr(vE + 4*p, 4), f"s{sXoff}", 1024 * p, SPA))
        ph.shadow(G(5, 11), f"s_add_u32 s{sXoff}, s{sXoff}, 2048")
        if last: ph.shadow(G(5, 15), f"s_cmp_lt_u32 s{sIt}, 6")
    if hd == 1:
        ph.put(G(4, 16), Ins(f"ds_read_b128 {vr(vE, 4)}, v{vX}", "T"))
        ph.put(G(4, 9), Ins(f"ds_read_b128 {vr(vE + 4, 4)}, v{vX} offset:{QP}", "T"))
        ph.put(G(5, 16), f"v_add_u32 v{vX}, {2*QP}, v{vX}")
    ph.shadow(G(5, 16), *sync((lambda y: f"KV{y+2}") if dyn else f"KV{x+2}", "all" if dyn else [f"V{x+1}", "T"]))
    return ph

def main_loop(hd, x0):
    E(".p2align 3")
    t0 = len(trace)
    L(f"L_loop{hd}")
    halves = []
    for h in range(2):
        b = len(code)
        if a.stamps == 2: stamp()
        period(x0 + h, hd, True, last=(h == 1)).emit(f"period{hd}{h}")
        if h: A(f"s_cbranch_scc1 L_loop{hd}")
        halves.append(code[b:])
    del trace[t0:]
    for x in range(x0, x0 + 12):
        trace.extend((i, x) for i in halves[(x - x0) % 2])

def window(srd, ptr, hreg):
    A(f"s_mul_i32 s{sT}, s{hreg}, 98304", f"s_mul_i32 s{sT2}, s{sWV}, 24576", f"s_add_u32 s{sT}, s{sT}, s{sT2}",
      f"s_add_u32 s{srd}, s{ptr}, s{sT}", f"s_addc_u32 s{srd+1}, s{ptr+1}, 0", f"s_mov_b32 s{srd+2}, 24576")
def kv_offset(hreg, kv):
    A(f"s_lshl_b32 s{kv}, s{hreg}, 17", f"s_and_b32 s{sT}, s{sWV}, 1", f"s_lshl_b32 s{sT}, s{sT}, 12", f"s_add_u32 s{kv}, s{kv}, s{sT}")
def kv_issue(x):
    r = []
    for p in range(4):
        r += [f"s_add_u32 m0, s{sWpart}, {(x % NS)*SLOT + 32*p}", "s_nop 0", dma(SRD_KV, f"s{sPoff}", 1024*p, f"KV{x}")]
    return r + [f"s_add_u32 s{sPoff}, s{sPoff}, 8192"]
def q_issue(k):
    r = [f"s_mov_b32 s{sT2}, {4096*k}"]
    for p in range(4):
        r += [f"s_add_u32 m0, s{sReg}, {4*k*QP + (QP-1024)*p}", "s_nop 0", dma(SRD_Q, f"s{sT2}", 1024*p, f"QD0_{k}")]
    return r

def norm_a(qt):
    r = [f"v_accvgpr_read_b32 v{vT+1}, a{aL + 4*qt}", f"v_rcp_f32 v{vT}, v{vT+1}", f"v_cmp_nle_f32 vcc, s{sLo}, v{vT+1}"]
    for o in range(Oreg(qt, 0), Oreg(qt, 8), 2):
        r.append(f"v_pk_mul_f32 {vr(o,2)}, {vr(o,2)}, {vr(vT,2)} op_sel_hi:[1,0]")
    return r
def norm_b(qt):
    r = [f"s_or_b64 {sreg(sBad,2)}, {sreg(sBad,2)}, vcc", f"v_cmp_nge_f32 vcc, s{sHi}, v{vT+1}", f"v_add_u32 v{vT+2}, {qt*4*QP}, v{vOw}"]
    for dt in range(0, 8, 2):
        for d in (dt, dt + 1):
            o = Oreg(qt, d)
            r += [f"v_cvt_pk_bf16_f32 v{o}, v{o}, v{o+1}", f"v_cvt_pk_bf16_f32 v{o+1}, v{o+2}, v{o+3}"]
        if dt == 0: r.append(f"s_or_b64 {sreg(sBad,2)}, {sreg(sBad,2)}, vcc")
        r.append(Ins(f"ds_write2_b64 v{vT+2}, {vr(Oreg(qt, dt),2)}, {vr(Oreg(qt, dt+1),2)} offset0:{4*dt} offset1:{4*dt+4}", f"W{qt}"))
    return r
def back_ops(qt):
    return [Ins(f"ds_read_b128 {vr(Oreg(qt, j), 4)}, v{vOr} offset:{qt*4*QP + QP*j}", f"B{qt}_{j}") for j in range(4)]
def store_ops(qt, sp):
    r = [f"s_mov_b32 s{sT2}, {4096*qt}"]
    for j in range(4): r += [W(lg=f"B{qt}_{j}"), o_store(vr(Oreg(qt, j), 4), f"s{sT2}", 1024*j, sp)]
    return r
def flag_ops(bit):
    return [f"s_cmp_lg_u64 {sreg(sBad,2)}, 0", f"s_cselect_b32 s{sT2}, {bit}, 0", f"s_or_b32 s{sFlag}, s{sFlag}, s{sT2}", f"s_mov_b64 {sreg(sBad,2)}, 0"]

def boundary():
    order = [(14, 0), (14, 1), (14, 2), (15, 0), (15, 1), (15, 2), (14, 3), (15, 3), (14, 4), (15, 4), (14, 5), (15, 5), (16, 0), (16, 1)]
    us = [U(t, q, 84 + i) for i, (t, q) in enumerate(order)]
    ph = Phase()
    for j in range(12):
        reads = []
        if j in (1, 2): reads = [v_read(15, 8 * (j - 1) + n) for n in range(8)]
        if j == 0:
            reads = [k_read(15, n) for n in range(8)]
            g0 = ph.step(us[j + 2], us[j + 1], us[j], reads=reads[:4], early=True)
            for n in range(4): ph.put(g0 + 1 + 2 * n, reads[4 + n])
        else:
            ph.step(us[j + 2], us[j + 1], us[j], reads=reads)
    G = ph.g
    ph.shadow(G(0, 16), W(lg="K15"))
    ph.shadow(G(3, 7), W(lg="V15"))
    kv_dma(ph, [G(0, 11), G(0, 15), G(1, 11), G(1, 15)], 17)
    pre = {k: [W(vm=f"QD1_{k}")] + [q_read(k, ks, 1) for ks in range(4)] for k in range(6)}
    ph.spread(pre[0] + pre[1], G(3, 0), G(3, 16))
    ph.spread(pre[2], G(4, 0), G(4, 16)); ph.spread(pre[3], G(6, 0), G(6, 16)); ph.spread(pre[4], G(8, 0), G(8, 6))
    ph.spread(pre[5], G(10, 0), G(10, 7))
    ph.shadow(G(8, 7), *sync("KV16", "V15"))
    ph.spread([k_read(16, n) for n in range(8)], G(8, 8), G(9, 8))
    ph.shadow(G(9, 16), W(lg=["K16", "Q1_0", "Q1_1"]))
    kv_dma(ph, [G(9, 9), G(9, 11), G(9, 13), G(9, 15)], 18)
    ph.spread([v_read(16, n) for n in range(16)], G(10, 10), G(11, 8))
    ph.shadow(G(11, 16), *sync("KV17", ["V16", "Q1_5"]))
    period(16, 1, False, ph, first=True)
    for k, (ga, gb) in enumerate([(G(4, 5), G(5, 16)), (G(6, 1), G(7, 16)), (G(8, 1), G(9, 16)), (G(11, 9), G(13, 0)), (G(13, 1), G(14, 16)), (G(15, 1), G(16, 16))]):
        ph.put(ga, *norm_a(k))
        ph.spread(norm_b(k), ga + 1, gb)
    for k, i in enumerate(flag_ops(1) + [f"s_mov_b32 s{sIt}, 0", f"s_mov_b32 s{sXoff}, 0", f"s_mov_b32 s{sR}, {(18 % NS) * SLOT}", f"s_add_u32 s{sW}, s{sWpart}, {(17 % NS) * SLOT}"]):
        ph.shadow(G(17, 1 + k), i)
    ph.put(G(17, 14), f"v_add_u32 v{vK}, {(18 % NS) * SLOT}, v{vKl}")
    ph.put(G(16, 14), f"v_add_u32 v{vV}, {(18 % NS) * SLOT}, v{vVl}")
    ph.emit("boundary")

def finish():
    order = [(29, q) for q in range(6)] + [(t, q) for q in range(6) for t in (30, 31)]
    us = [U(t, q, 174 + i) for i, (t, q) in enumerate(order)] + [None, None]
    ph = Phase()
    vr30 = [v_read(30, n) for n in range(16)]
    rd = {0: [k_read(30, n) for n in range(6)], 1: [k_read(30, n) for n in range(6, 8)] + vr30[:4], 2: vr30[4:10], 5: vr30[12:]}
    for j in range(18):
        ph.step(us[j + 2], us[j + 1], us[j], reads=rd.get(j, []), early=(j == 5))
    G = ph.g
    for k, i in enumerate([f"s_mul_i32 s{sT}, s{sHB}, 98304", f"s_mul_i32 s{sT2}, s{sWV}, 24576", f"s_add_u32 s{sT}, s{sT}, s{sT2}",
                           f"s_add_u32 s{SRD_O}, s{sOp}, s{sT}", f"s_addc_u32 s{SRD_O+1}, s{sOp+1}, 0"]):
        ph.shadow(G(0, 1 + k), i)
    ph.spread(vr30[10:12], G(3, 0), G(3, 6))
    ph.shadow(G(3, 7), *sync("KV31", "K30"))
    ph.spread([k_read(31, n) for n in range(8)], G(3, 8), G(4, 10))
    ph.shadow(G(4, 16), W(lg="K31"))
    ph.spread([v_read(31, n) for n in range(16)], G(5, 10), G(6, 16))
    ph.shadow(G(6, 7), W(lg="V30"))
    ph.shadow(G(7, 7), W(lg="V31"))
    for k in range(4):
        j = 8 + 2 * k
        ph.put(G(j, 3), *norm_a(k))
        ph.spread(norm_b(k) + back_ops(k), G(j, 4), G(j, 16))
        ph.spread(store_ops(k, SP), G(j + 1, 4), G(j + 1, 16))
    ph.put(G(16, 2), *norm_a(4))
    ph.spread(norm_b(4) + back_ops(4), G(16, 3), G(17, 4))
    ph.emit("finish")
    n0 = len(code)
    st4 = store_ops(4, SP)
    A(*st4[:5]); A("s_nop 2")
    A(*norm_a(5)); nb = norm_b(5)
    A(*(nb[:9] + st4[5:7] + nb[9:14] + st4[7:] + nb[14:] + back_ops(5) + flag_ops(2) + store_ops(5, SP)))
    est.append(("tail", n0, len(code), 0))

L(NAME)
A("s_load_dwordx8 s[4:11], s[0:1], 0", "s_cmp_ge_u32 s2, 256", "s_cbranch_scc1 L_exit")
if a.cpf:
    C("touch eight 128-byte lines of this kernel's code per workgroup so that later instruction fetches hit in L2")
    A("s_getpc_b64 s[12:13]", f"s_lshr_b32 s{sT}, s2, 3", f"s_lshl_b32 s{sT}, s{sT}, 10", f"v_lshrrev_b32 v{vT}, 5, v0",
      f"v_lshl_add_u32 v{vT}, v{vT}, 7, s{sT}", f"v_min_u32 v{vT}, L_exit-{NAME}-64, v{vT}",
      Ins(f"global_load_dword v{vT+5}, v{vT}, s[12:13]", "code"))
if a.stamps: A(f"s_load_dwordx2 s[{SRD_W}:{SRD_W+1}], s[0:1], 40", f"s_mov_b32 s{sSt+5}, 0")
A(f"v_lshrrev_b32 v{vT}, 6, v0", "v_and_b32 v0, 63, v0", f"v_readfirstlane_b32 s{sWV}, v{vT}", f"v_lshlrev_b32 v{vDMA}, 4, v0")
if a.hmap == 0: A(f"s_lshl_b32 s{sHA}, s2, 1")
else: A(f"s_mov_b32 s{sHA}, s2")
A(f"s_mov_b32 s{SRD_KV+3}, 0x20000", f"s_mov_b32 s{SRD_KV+2}, {KBYTES}", f"s_mul_i32 s{sWpart}, s{sWV}, {4*PIECE}")
kv_offset(sHA, sPoff)
A(f"s_cmp_lt_u32 s{sWV}, 2", "s_waitcnt lgkmcnt(0)", f"s_cselect_b64 {sreg(SRD_KV,2)}, s[6:7], s[8:9]")
if a.stamps: A(f"s_mov_b32 s{SRD_W+2}, 268435456", f"s_mov_b32 s{SRD_W+3}, 0x20000")
stamp()
def fill(seq, filler):
    for i in seq:
        if i == "s_nop 0" and filler: A(filler.pop(0))
        else: A(i)
fl = [f"s_mul_i32 s{sReg}, s{sWV}, {REGW}", f"s_add_u32 s{sReg}, s{sReg}, {REG}", f"s_mov_b32 s{SRD_Q+3}, 0x20000", f"s_add_u32 s{sHB}, s{sHA}, {256 if a.hmap else 1}"]
fill(kv_issue(0), fl)
window(SRD_Q, sQp, sHA)
fl = [f"s_mov_b32 s{SRD_O+3}, 0x20000", f"s_mov_b32 s{SRD_X+3}, 0x20000", f"s_mov_b32 s{sFlag}, {a.force_redo}", f"s_mov_b64 {sreg(sBad,2)}, 0",
      f"s_mov_b32 s{sC}, 0x{CSCALE:08x}", f"s_mov_b32 s{sLo}, 0x30800000", f"s_mov_b32 s{sHi}, 0x4e800000", f"s_mov_b32 s{sIt}, 0"]
fill(q_issue(0), fl)
k1 = kv_issue(1)
fill(k1[:6], fl)
C("---- per-lane LDS addresses (i = lane%16, g = lane/16)")
A(f"v_and_b32 v{vT}, 15, v0", f"v_lshrrev_b32 v{vT+1}, 4, v0")
A(f"v_and_b32 v{vT+2}, 7, v{vT}", f"v_mul_u32_u24 v{vKl}, {PIECE}, v{vT+2}", f"v_lshrrev_b32 v{vT+2}, 3, v{vT}",
  f"v_lshl_add_u32 v{vKl}, v{vT+2}, 8, v{vKl}", f"v_lshl_add_u32 v{vKl}, v{vT+1}, 4, v{vKl}")
A(f"v_bfe_u32 v{vT+2}, v0, 2, 3", f"v_mul_u32_u24 v{vVl}, {PIECE}, v{vT+2}", f"v_lshrrev_b32 v{vT+2}, 5, v0",
  f"v_lshl_add_u32 v{vVl}, v{vT+2}, 8, v{vVl}", f"v_and_b32 v{vT+2}, 3, v0", f"v_lshl_add_u32 v{vVl}, v{vT+2}, 3, v{vVl}",
  f"v_add_u32 v{vVl}, {8*PIECE}, v{vVl}")
A(f"v_cmp_eq_u32 vcc, 0, v{vT+2}", f"v_mov_b32 v{vT+4}, 0x3f803f80")
A(f"v_mul_u32_u24 v{vQ}, {QP}, v{vT+2}", f"v_cndmask_b32 v{vT+4}, 0, v{vT+4}, vcc", f"v_lshrrev_b32 v{vT+3}, 2, v{vT}",
  f"v_lshl_add_u32 v{vQ}, v{vT+3}, 8, v{vQ}", f"v_lshl_add_u32 v{vQ}, v{vT+1}, 4, v{vQ}", f"v_add_u32 v{vQ}, s{sReg}, v{vQ}")
A(f"v_lshl_add_u32 v{vT+2}, v{vT+2}, 2, v{vT+3}", f"v_mul_u32_u24 v{vOw}, 272, v{vT+2}", f"v_lshl_add_u32 v{vOw}, v{vT+1}, 3, v{vOw}",
  f"v_add_u32 v{vOw}, s{sReg}, v{vOw}", f"v_mul_u32_u24 v{vOr}, 272, v{vT+1}", f"v_lshl_add_u32 v{vOr}, v{vT}, 4, v{vOr}",
  f"v_add_u32 v{vOr}, s{sReg}, v{vOr}", f"v_mov_b32 v{vX}, v{vOr}")
for j in range(4): A(f"v_accvgpr_write_b32 a{aONE+j}, v{vT+4}")
A(f"v_add_u32 v{vK}, {(3 % NS) * SLOT}, v{vKl}", f"v_add_u32 v{vV}, {(3 % NS) * SLOT}, v{vVl}")
window(SRD_O, sOp, sHA)
window(SRD_X, sQp, sHB)
kv_offset(sHB, sKVoffN)
A(f"s_mov_b32 s{sXoff}, 0", f"s_mov_b32 s{sXm}, s{sReg}", f"s_mov_b32 s{sR}, {(3 % NS) * SLOT}", f"s_add_u32 s{sW}, s{sWpart}, {(2 % NS) * SLOT}")
fill(k1[6:], fl)
assert not fl
C("---- start-up: tiles 0 and 1 are processed q-major while Q arrives")
def st3():
    if a.stamps == 3: stamp()
st3()
A(*sync("KV0", None)); st3()
A(*[k_read(0, n) for n in range(8)]); A(*q_issue(1))
A(W(vm="QD0_0")); st3(); A(*[q_read(0, ks, 0) for ks in range(4)]); A(*q_issue(2)); A(W(lg="all"))
us = [U(t, q, 2 * q + t) for q in range(6) for t in range(2)] + [U(2, 0, 12), U(2, 1, 13)]
ph = Phase()
ph.step(us[0], reads=[v_read(0, n) for n in range(16)])
ph.emit()
A(*sync("KV1")); st3()
A(*[k_read(1, n) for n in range(8)]); A(*q_issue(3)); A(W(lg="all"))
def q_dma(ph, gs, k):
    ph.shadow(gs[0] - 2, f"s_mov_b32 s{sT2}, {4096*k}")
    for p, g in enumerate(gs):
        ph.shadow(g - 1, f"s_add_u32 m0, s{sReg}, {4*k*QP + (QP-1024)*p}")
        ph.put(g, dma(SRD_Q, f"s{sT2}", 1024*p, f"QD0_{k}"))
ph = Phase()
for n in range(1, 14):
    ph.step(us[n], us[n - 1], us[n - 2] if n >= 2 else None, first=(n % 2 == 0))
G = lambda n, k: ph.g(n - 1, k)
ph.spread([W(vm="QD0_1")] + [q_read(1, ks, 0) for ks in range(4)], G(1, 0), G(1, 4))
ph.shadow(G(1, 7), W(lg="Q0_1"))
ph.spread([v_read(1, n) for n in range(16)], G(2, 0), G(2, 16))
ph.shadow(G(3, 7), W(lg="V1"))
q_dma(ph, [G(2, 3), G(2, 7), G(2, 11), G(2, 15)], 4)
for q in range(2, 6):
    n = 2 * q - 1
    ph.shadow(G(n, 1), W(vm=f"QD0_{q}"))
    for ks in range(4): ph.put(G(n, [2, 6, 10, 10][ks]), q_read(q, ks, 0))
    ph.shadow(G(n, 16), W(lg=f"Q0_{q}"))
    gs = [G(n, 5), G(n, 9), G(n, 14), G(n + 1, 2)]
    if q == 2: q_dma(ph, gs, 5)
    else: kv_dma(ph, gs, q - 1)
ph.shadow(G(6, 8), "s_barrier")
ph.shadow(G(10, 8), *sync("KV2", None))
ph.spread([k_read(2, n) for n in range(8)], G(10, 9), G(11, 10))
ph.shadow(G(11, 16), W(lg="K2"))
ph.spread([v_read(2, n) for n in range(16)], G(12, 10), G(13, 8))
ph.shadow(G(13, 16), *sync("KV3"))
ph.emit("start")
stamp()
main_loop(0, 2)
stamp()
boundary()
stamp()
main_loop(1, 17)
stamp()
finish()
stamp()
C("---- combine the per-wave 'row sum left the safe range' flags of the workgroup")
A(f"s_lshl_b32 s{sT}, s{sWV}, 2", f"s_add_u32 s{sT}, s{sT}, {FLAGS}", f"v_mov_b32 v{vT}, s{sT}", f"v_mov_b32 v{vT+1}, s{sFlag}",
  f"ds_write_b32 v{vT}, v{vT+1}", f"v_mov_b32 v{vT}, {FLAGS}", "s_waitcnt lgkmcnt(0)", "s_barrier",
  f"ds_read_b128 {vr(vT+2,4)}, v{vT}", "s_waitcnt lgkmcnt(0)",
  f"v_or_b32 v{vT+2}, v{vT+2}, v{vT+3}", f"v_or3_b32 v{vT+2}, v{vT+2}, v{vT+4}, v{vT+5}", "s_nop 0",
  f"v_readfirstlane_b32 s{sPend}, v{vT+2}", "s_nop 3")
L("L_pend")
A(f"s_cmp_eq_u32 s{sPend}, 0", "s_cbranch_scc1 L_done")
C("==== rare path: redo a head, subtracting the true row maximum (plain, unpipelined code)")
A(f"s_bitcmp1_b32 s{sPend}, 0", f"s_cselect_b32 s{sCur}, s{sHA}, s{sHB}", f"s_cselect_b32 s{sT}, 2, 0", f"s_and_b32 s{sPend}, s{sPend}, s{sT}",
  "s_waitcnt vmcnt(0) lgkmcnt(0)", "s_barrier", f"s_mov_b32 s{SRD_KV+2}, {KBYTES}")
window(SRD_Q, sQp, sCur); window(SRD_O, sOp, sCur)
for k in range(6): A(*q_issue(k))
for j in range(6): A(f"v_mov_b32 v{vM+j}, 0xff800000")
A("s_waitcnt vmcnt(0)")
for k in range(6):
    A(*[q_read(k, ks, 0) for ks in range(4)]); A("s_waitcnt lgkmcnt(0)")
kv_offset(sCur, sPoff)
A(f"s_mov_b32 s{sIt}, 0")
L("L_maxloop")
A(*kv_issue(0)); A("s_waitcnt vmcnt(0)", "s_barrier")
A(*[k_read(0, n) for n in range(8)]); A("s_waitcnt lgkmcnt(0)", "s_barrier")
for qt in range(6):
    A(*qk_mfmas(U(0, qt, 0))); A("s_nop 7")
    for j in range(4): A(f"v_max3_f32 v{vM+qt}, v{vM+qt}, v{vS+2*j}, v{vS+2*j+1}")
A(f"s_add_u32 s{sIt}, s{sIt}, 1", f"s_cmp_lt_u32 s{sIt}, 16", "s_cbranch_scc1 L_maxloop")
for qt in range(6):
    m = vM + qt
    A(f"v_mov_b32 v{vT}, v{m}", "s_nop 1", f"v_permlane32_swap_b32 v{vT}, v{m}", "s_nop 1", f"v_max_f32 v{m}, v{m}, v{vT}",
      f"v_mov_b32 v{vT}, v{m}", "s_nop 1", f"v_permlane16_swap_b32 v{vT}, v{m}", "s_nop 1", f"v_max_f32 v{m}, v{m}, v{vT}",
      f"v_mul_f32 v{m}, s{sC}, v{m}", f"v_sub_f32 v{m}, 0, v{m}")
for r in range(vO, 256, 2): A(f"v_mov_b64 {vr(r,2)}, 0")
for r in range(24): A(f"v_accvgpr_write_b32 a{aL+r}, 0")
kv_offset(sCur, sPoff)
A(f"s_mov_b32 s{sIt}, 0")
L("L_slowloop")
A(*kv_issue(0)); A("s_waitcnt vmcnt(0)", "s_barrier")
A(*[k_read(0, n) for n in range(8)]); A("s_waitcnt lgkmcnt(0)")
A(*[v_read(0, n) for n in range(16)]); A("s_waitcnt lgkmcnt(0)", "s_barrier")
for qt in range(6):
    u = U(0, qt, 0)
    A(*qk_mfmas(u)); A("s_nop 7")
    for j in range(8): A(f"v_fma_f32 v{vS+j}, v{vS+j}, s{sC}, v{vM+qt}")
    for j in range(8): A(sm_e(u, j))
    A("s_nop 0")
    for k in range(4): A(sm_c(u, k))
    A("s_nop 1"); A(*pv_mfmas(u))
A(f"s_add_u32 s{sIt}, s{sIt}, 1", f"s_cmp_lt_u32 s{sIt}, 16", "s_cbranch_scc1 L_slowloop")
A("s_nop 7")
for qt in range(6): A(*(norm_a(qt) + norm_b(qt) + back_ops(qt) + store_ops(qt, SP)))
A("s_branch L_pend")
L("L_done")
if a.probe >= 0:
    A("s_waitcnt vmcnt(0)"); stamp()
    L("L_spin")
    A(f"s_memrealtime s[{sSt}:{sSt+1}]", "s_waitcnt lgkmcnt(0)", f"s_sub_u32 s{sSt}, s{sSt}, s{sSt+6}", f"s_cmp_lt_u32 s{sSt}, 10000", "s_cbranch_scc1 L_spin")
if a.stamps:
    A("s_waitcnt vmcnt(0)"); stamp()
    A(f"v_lshlrev_b32 v{vT}, 3, v0", f"s_lshl_b32 s{sT}, s2, 2", f"s_add_u32 s{sT}, s{sT}, s{sWV}", f"s_lshl_b32 s{sT}, s{sT}, 9",
      f"buffer_store_dwordx2 {vr(vStamp,2)}, v{vT}, {sreg(SRD_W,4)}, s{sT} offen")
L("L_exit")
A("s_endpgm")

resolve(trace)
errs = verify(trace)
for e in errs[:40]: print("VERIFY:", e, file=sys.stderr)
if a.est:
    for (name, n0, n1, nm) in est: print(f"est {name}: {estimate(code[n0:n1])} cycles, {nm} mfma", file=sys.stderr)
hdr = open("standalone__mha_softmax__near_ridge.s.ref").read().split("; Override launch")[0]
o = [hdr.rstrip(), f"; @launch grid=(256,1,1) block=(256,1,1) lds={LDS}", '.amdgcn_target "amdgcn-amd-amdhsa--gfx950"',
     ".text", f".globl {NAME}", ".p2align 8", f".type {NAME},@function"]
for i in code:
    t = i.render()
    if t is None: continue
    o.append(t if i.kind == "label" or t.startswith(".") else "    " + t.rstrip())
o += ['.section .rodata,"a"', ".p2align 6", f".amdhsa_kernel {NAME}", """  .amdhsa_next_free_vgpr 512
  .amdhsa_next_free_sgpr 102
  .amdhsa_accum_offset 256
  .amdhsa_group_segment_fixed_size 0
  .amdhsa_kernarg_size 48
  .amdhsa_user_sgpr_count 2
  .amdhsa_user_sgpr_kernarg_segment_ptr 1
  .amdhsa_system_sgpr_workgroup_id_x 1
  .amdhsa_float_denorm_mode_32 3""", ".end_amdhsa_kernel"]
print("\n".join(o))
sys.exit(1 if errs else 0)
```

```python
import sys, argparse, struct
from asmlib import *
ap = argparse.ArgumentParser()
ap.add_argument("--lp", default="nt")
ap.add_argument("--sp", default="sc1")
ap.add_argument("--spa", default="sc1")
ap.add_argument("--hmap", type=int, default=1)
ap.add_argument("--stamps", type=int, default=0)
ap.add_argument("--probe", type=int, default=-1)
ap.add_argument("--force_redo", type=int, default=0)
ap.add_argument("--cpf", type=int, default=1)
ap.add_argument("--dmapos", default="0,0,1,1")
ap.add_argument("--est", type=int, default=0)
ap.add_argument("--qdelay", type=int, default=2)
ap.add_argument("--oper", type=int, default=1)
ap.add_argument("--soft", default="")
ap.add_argument("--probec", default="")
ap.add_argument("--abl", default="")
ap.add_argument("--pad", type=int, default=0)
a = ap.parse_args()
pol = lambda s: s.replace("+", " ").replace("-", "")
LP, SP, SPA = pol(a.lp), pol(a.sp), pol(a.spa)

NAME = "standalone__mha_softmax__near_ridge_kernel"
PIECE = 1056
SLOT = 16 * PIECE
NS = 3
RING = NS * SLOT
QP = 1088
REGW = 24 * QP
REG = RING
FLAGS = REG + 4 * REGW
LDS = FLAGS + 64
assert LDS <= 163840
KBYTES = 16 * 32 * 512 * 128 * 2
CSCALE = struct.unpack("<I", struct.pack("<f", 1.4426950408889634 * 128 ** -0.5))[0]

sWV = 3
sQp, sOp = 4, 10
SRD_Q, SRD_KV, SRD_O, SRD_X = 16, 20, 24, 28
sC, sPoff = 32, 33
sR, sW, sD, sT = 35, 36, 37, 38
sWpart, sIt, sCur = 39, 40, 41
sXoff, sXm = 42, 43
sX0, sReg, sKVoffN, sKVoff = 44, 45, 46, 48
sBad = 50
sFlag, sPend = 52, 54
sHA, sHB = 56, 57
sT2, sLo, sHi, sCm = 59, 60, 61, 62
SRD_W, sSt = 64, 68
vDMA, vK, vV, vQ, vOw, vOr, vKl, vVl, vX = 1, 2, 3, 4, 5, 6, 7, 8, 9
vT = 10
vM = 16
vStamp = 22
vS = 24
vE = 48
vO = 64
aQ, aK, aV, aL, aONE = 0, 96, 160, 224, 248

def vr(b, n): return f"v[{b}:{b+n-1}]"
def ar(b, n): return f"a[{b}:{b+n-1}]"
def sreg(b, n): return f"s[{b}:{b+n-1}]"
def Sbuf(n): return vS + 8 * (n % 3)
def Oreg(qt, dt): return vO + 32 * qt + 4 * dt

code = []
trace = []
ctx = [None]
def E(i, tr=True):
    if isinstance(i, str): i = Ins(i)
    code.append(i)
    if tr: trace.append((i, ctx[0]))
    return i
def A(*xs):
    for x in xs: E(x)
def L(s): E(s + ":")
def C(s): E("; " + s)

MF = "v_mfma_f32_16x16x32_bf16"
class U:
    def __init__(s, x, q, n): s.x, s.q, s.n = x, q, n
def qk_mfmas(u):
    r = []
    for kt in range(2):
        d = vr(Sbuf(u.n) + 4 * kt, 4)
        for ks in range(4):
            r.append(f"{MF} {d}, {ar(aK + 32*(u.x%2) + 16*kt + 4*ks, 4)}, {ar(aQ + 16*u.q + 4*ks, 4)}, {'0' if ks == 0 else d}")
    return r
def pv_mfmas(u, first=False):
    r = []
    p = vr(Sbuf(u.n), 4)
    for dt in range(8):
        d = vr(Oreg(u.q, dt), 4)
        r.append(f"{MF} {d}, {ar(aV + 32*(u.x%2) + 4*dt, 4)}, {p}, {'0' if first else d}")
    d = ar(aL + 4 * u.q, 4)
    r.append(f"{MF} {d}, {ar(aONE, 4)}, {p}, {'0' if first else d}")
    return r
def sm_f(u, j): return f"v_mul_f32 v{Sbuf(u.n)+j}, s{sC}, v{Sbuf(u.n)+j}"
def sm_e(u, j): return f"v_exp_f32 v{Sbuf(u.n)+j}, v{Sbuf(u.n)+j}"
def sm_c(u, k): return f"v_cvt_pk_bf16_f32 v{Sbuf(u.n)+k}, v{Sbuf(u.n)+2*k}, v{Sbuf(u.n)+2*k+1}"
def k_read(x, n, dyn=False):
    kt, ks = n // 4, n % 4
    base, off = (vK, 0) if dyn else (vKl, (x % NS) * SLOT)
    return Ins(f"ds_read_b128 {ar(aK + 32*(x%2) + 16*kt + 4*ks, 4)}, v{base} offset:{off + kt*512 + ks*64}", "K" if dyn else f"K{x}")
def v_read(x, n, dyn=False):
    dt, kt = n // 2, n % 2
    base, off = (vV, 0) if dyn else (vVl, (x % NS) * SLOT)
    return Ins(f"ds_read_b64_tr_b16 {ar(aV + 32*(x%2) + 4*dt + 2*kt, 2)}, v{base} offset:{off + kt*512 + dt*32}", "V" if dyn else f"V{x}")
def q_read(qt, ks, hd):
    return Ins(f"ds_read_b128 {ar(aQ + 16*qt + 4*ks, 4)}, v{vQ} offset:{qt*4*QP + 64*ks}", f"Q{hd}_{qt}")
def dma(srd, soff, off, tag):
    return Ins(f"buffer_load_dwordx4 v{vDMA}, {sreg(srd,4)}, {soff} offen offset:{off} {LP} lds", tag)
def o_store(reg, soff, off, sp):
    return Ins(f"buffer_store_dwordx4 {reg}, v{vDMA}, {sreg(SRD_O,4)}, {soff} offen offset:{off} {sp}", "st")

nst = [0]
def stamp():
    nst[0] += 1
    if a.probe == nst[0] - 1:
        A(f"s_memrealtime s[{sSt+6}:{sSt+7}]", "s_waitcnt lgkmcnt(0)")
    if a.probec:
        pa, pb = map(int, a.probec.split(","))
        if nst[0] - 1 == 0: A(f"s_memrealtime s[{sSt+6}:{sSt+7}]", "s_waitcnt lgkmcnt(0)")
        if nst[0] - 1 == pa: A(f"s_memtime s[{sSt+8}:{sSt+9}]", "s_waitcnt lgkmcnt(0)")
        if nst[0] - 1 == pb: A(f"s_memtime s[{sSt+10}:{sSt+11}]", "s_waitcnt lgkmcnt(0)")
    if not a.stamps: return
    A(f"s_memtime s[{sSt}:{sSt+1}]", f"s_memrealtime s[{sSt+2}:{sSt+3}]", "s_waitcnt lgkmcnt(0)",
      f"s_mov_b32 s{sSt+4}, m0", f"s_mov_b32 m0, s{sSt+5}",
      f"v_writelane_b32 v{vStamp}, s{sSt}, m0", f"v_writelane_b32 v{vStamp+1}, s{sSt+2}, m0",
      f"s_add_u32 s{sSt+5}, s{sSt+5}, 1", f"s_mov_b32 m0, s{sSt+4}")

COST = {"valu": 4, "trans": 8, "ds": 4, "vmem": 12, "salu": 0, "wait": 0, "barrier": 24}
def cost(i):
    if i.text.startswith("ds_write2"): return 20
    if i.text.startswith("buffer_store"): return 40
    return COST[i.kind]
class Phase:
    def __init__(s): s.mf, s.front, s.back, s.steps, s.pre = [], [], [], [], {}
    def step(s, qk=None, sm=None, pv=None, first=False, reads=(), early=False, hole=False):
        g0 = len(s.mf)
        m = (qk_mfmas(qk) if qk else []) + (pv_mfmas(pv, first) if pv else [])
        s.mf += m; s.front += [[] for _ in m]; s.back += [[] for _ in m]
        s.steps.append(g0)
        if not qk: s.before(g0, "s_nop 1")
        reads = list(reads)
        if len(m) == 17 and sm:
            f = lambda j: sm_f(sm, j); c = lambda k: sm_c(sm, k)
            if early:
                pat = {0: [f(0)], 2: [f(1)], 4: [f(2)], 6: [f(3)], 8: [f(4), f(5)], 10: [c(0), f(6)], 12: [c(1), f(7)], 14: [c(2)], 16: [c(3)]}
                rg = [0, 2, 4, 6]
            else:
                pat = {0: [f(0), f(1)], 2: [f(2)], 4: [c(0), f(3)], 6: [f(4)], 8: [c(1), f(5)], 10: [f(6)], 12: [c(2), f(7)], 16: [c(3)]}
                rg = [2, 6, 10, 16 if hole else 14]
            for j in range(8): pat[2 * j + 1] = [sm_e(sm, j)]
            for g, v in pat.items(): s.back[g0 + g] += [Ins(t) for t in v]
            for g in rg:
                if reads: s.front[g0 + g].append(reads.pop(0))
        elif sm:
            f = lambda j: sm_f(sm, j); c = lambda k: sm_c(sm, k); e = lambda j: sm_e(sm, j)
            pat = [[f(0), f(1), f(2), f(3)], [e(0), e(1)], [e(2), e(3)], [f(4), f(5), f(6), f(7)], [e(4), e(5)], [e(6), e(7)], [c(0), c(1)], [c(2), c(3)]]
            for g, v in enumerate(pat): s.back[g0 + g] += [Ins(t) for t in v]
        if reads: s.spread(reads, g0, len(s.mf) - 1)
        return g0
    def g(s, step, k=0): return s.steps[step] + k
    def load(s, g):
        sc = [k for k, i in enumerate(s.front[g]) if i.kind in ("salu", "wait")]
        return sum(cost(i) for i in s.front[g] + s.back[g]) + 4 * len([k for k in sc if k > 0])
    def put(s, g, *ins):
        for i in ins:
            if isinstance(i, str): i = Ins(i)
            (s.back if i.kind in ("valu", "trans") else s.front)[g].append(i)
    def shadow(s, g, *ins):
        s.front[g][0:0] = [Ins(i) if isinstance(i, str) else i for i in ins]
    def before(s, g, *ins):
        s.pre.setdefault(g, []).extend(Ins(i) if isinstance(i, str) else i for i in ins)
    def spread(s, ops, g0, g1):
        ops = [Ins(i) if isinstance(i, str) else i for i in ops]
        tot = sum(max(cost(i), 1) for i in ops); cum = 0
        ptr = g0; lastback = -1
        for i in ops:
            tg = min(g1, g0 + int(cum / tot * (g1 - g0 + 1))); cum += max(cost(i), 1)
            if i.kind in ("valu", "trans"):
                cand = [g for g in range(max(ptr, tg - 1), min(g1, tg + 1) + 1) if s.load(g) + COST[i.kind] <= 8]
                g = cand[0] if cand else max(ptr, tg)
                s.back[g].append(i); lastback = g
            else:
                lo = max(ptr, tg, lastback + 1)
                if lo > g1:
                    g = g1; s.back[g].append(i); lastback = g
                else:
                    rng = range(lo, min(g1, lo + 2) + 1)
                    if i.kind in ("salu", "wait"): cand = [g for g in rng if not s.front[g]]
                    else: cand = [g for g in rng if s.load(g) <= 4]
                    g = cand[0] if cand else lo
                    s.front[g].append(i)
            ptr = g
    def emit(s, name=None):
        n0 = len(code)
        for g, m in enumerate(s.mf):
            for i in s.pre.get(g, []): E(i)
            E(m)
            for i in s.front[g] + s.back[g]: E(i)
        if name: est.append((name, n0, len(code), len(s.mf)))
est = []

def sync(kv, lg="all"):
    return [W(vm=kv, lg=lg), Ins("s_barrier")]

def kv_dma(ph, gs, x, dyn=False):
    for p, g in enumerate(gs):
        if dyn:
            ph.shadow(g - 1, f"s_add_u32 m0, s{sW}, {32*p}")
            ph.put(g, dma(SRD_KV, f"s{sPoff}", 1024 * p, lambda y: f"KV{y+3}"))
        else:
            ph.shadow(g - 1, f"s_add_u32 m0, s{sWpart}, {(x % NS) * SLOT + 32*p}")
            ph.put(g, dma(SRD_KV, f"s{sPoff}", 1024 * p, f"KV{x}"))
    ph.shadow(gs[-1] + 1, f"s_add_u32 s{sPoff}, s{sPoff}, 8192")

def period(x, hd, dyn, ph=None, first=False, last=False):
    if ph is None: ph = Phase()
    s0 = len(ph.steps)
    un = lambda t, q: U(t, q, 6 * t + q)
    for j in range(6):
        qk = un(x, j + 2) if j < 4 else un(x + 1, j - 4)
        sm = un(x, j + 1) if j < 5 else un(x + 1, 0)
        reads = [k_read(x + 1, 4 * j + i, dyn) for i in range(4)] if j < 2 else [v_read(x + 1, 4 * (j - 2) + i, dyn) for i in range(4)]
        ph.step(qk, sm, un(x, j), first, reads, early=(j == 5), hole=(j < (4 if (hd == 0 or a.oper == 2) else 3)))
    G = lambda j, k: ph.g(s0 + j, k)
    if a.pad:
        for j in range(6): ph.back[G(j, 7)].append(Ins(f"s_nop {a.pad-1}"))
    ph.shadow(G(3, 15), W(lg="K" if dyn else f"K{x+1}"))
    kv_dma(ph, [G(0, 5), G(0, 14), G(1, 5), G(1, 14)], x + 3, dyn)
    if dyn:
        ph.shadow(G(4, 1), f"s_add_u32 s{sW}, s{sR}, s{sWpart}")
        ph.shadow(G(4, 2), f"s_add_u32 s{sT}, s{sR}, {SLOT}")
        ph.shadow(G(4, 3), f"s_cmp_eq_u32 s{sT}, {RING}")
        ph.shadow(G(4, 4), f"s_cselect_b32 s{sT}, 0, s{sT}")
        ph.shadow(G(4, 5), f"s_sub_u32 s{sD}, s{sT}, s{sR}")
        ph.shadow(G(4, 6), f"s_mov_b32 s{sR}, s{sT}")
        ph.put(G(4, 14), f"v_add_u32 v{vK}, s{sD}, v{vK}")
        ph.put(G(5, 14), f"v_add_u32 v{vV}, s{sD}, v{vV}")
        if not last:
            ph.shadow(G(5, 1), f"s_add_u32 s{sIt}, s{sIt}, 1")
            if hd == 0:
                ph.shadow(G(5, 2), f"s_cmp_eq_u32 s{sIt}, 6")
                ph.shadow(G(5, 3), f"s_cselect_b32 s{sPoff}, s{sKVoffN}, s{sPoff}")
        if hd == 0:
            for p in range(2):
                ph.shadow(G(2 + p, 13), f"s_add_u32 m0, s{sXm}, {(QP-1024)*p}")
                ph.put(G(2 + p, 14), dma(SRD_X, f"s{sXoff}", 1024 * p, lambda y: f"QD1_{(y-2)//2 - a.qdelay}"))
            ph.shadow(G(5, 9), f"s_add_u32 s{sXm}, s{sXm}, {2*QP}")
        else:
            for p in range(a.oper):
                ph.put(G(2 + p, 14), o_store(vr(vE + 4*p, 4), f"s{sXoff}", 1024 * p, SPA.split("/")[p % len(SPA.split("/"))]))
        ph.shadow(G(5, 11), f"s_add_u32 s{sXoff}, s{sXoff}, {2048 if hd == 0 else 1024 * a.oper}")
        if last and hd == 0 and a.qdelay:
            ph.shadow(G(5, 12), f"s_cmp_eq_u32 s{sIt}, {a.qdelay}")
            ph.shadow(G(5, 13), f"s_cselect_b32 s{SRD_X+2}, 24576, s{SRD_X+2}")
            ph.shadow(G(5, 14), f"s_cselect_b64 {sreg(sXoff,2)}, {sreg(sX0,2)}, {sreg(sXoff,2)}")
        if last: ph.shadow(G(5, 15), f"s_cmp_lt_u32 s{sIt}, 6")
    if hd == 1:
        ph.put(G(4, 16), Ins(f"ds_read_b128 {vr(vE, 4)}, v{vX}", "T"))
        if a.oper == 2: ph.put(G(4, 9), Ins(f"ds_read_b128 {vr(vE + 4, 4)}, v{vX} offset:{QP}", "T"))
        ph.put(G(5, 16), f"v_add_u32 v{vX}, {a.oper*QP}, v{vX}")
    ph.shadow(G(5, 16), *sync((lambda y: f"KV{y+2}") if dyn else f"KV{x+2}", "all" if dyn else [f"V{x+1}", "T"]))
    return ph

def main_loop(hd, x0):
    E(".p2align 3")
    t0 = len(trace)
    L(f"L_loop{hd}")
    halves = []
    for h in range(2):
        b = len(code)
        if a.stamps == 2: stamp()
        if a.soft:
            it, sl = a.soft.split(",")
            A(f"s_cmp_lt_u32 s{sIt}, {int(it)+h}", f"s_cbranch_scc0 L_soft{hd}{h}", f"s_sleep {sl}"); L(f"L_soft{hd}{h}")
        period(x0 + h, hd, True, last=(h == 1)).emit(f"period{hd}{h}")
        if h: A(f"s_cbranch_scc1 L_loop{hd}")
        halves.append(code[b:])
    del trace[t0:]
    for x in range(x0, x0 + 12):
        trace.extend((i, x) for i in halves[(x - x0) % 2])

def window(srd, ptr, hreg):
    A(f"s_mul_i32 s{sT}, s{hreg}, 98304", f"s_mul_i32 s{sT2}, s{sWV}, 24576", f"s_add_u32 s{sT}, s{sT}, s{sT2}",
      f"s_add_u32 s{srd}, s{ptr}, s{sT}", f"s_addc_u32 s{srd+1}, s{ptr+1}, 0", f"s_mov_b32 s{srd+2}, 24576")
def kv_offset(hreg, kv):
    A(f"s_lshl_b32 s{kv}, s{hreg}, 17", f"s_and_b32 s{sT}, s{sWV}, 1", f"s_lshl_b32 s{sT}, s{sT}, 12", f"s_add_u32 s{kv}, s{kv}, s{sT}")
def kv_issue(x):
    r = []
    for p in range(4):
        r += [f"s_add_u32 m0, s{sWpart}, {(x % NS)*SLOT + 32*p}", "s_nop 0", dma(SRD_KV, f"s{sPoff}", 1024*p, f"KV{x}")]
    return r + [f"s_add_u32 s{sPoff}, s{sPoff}, 8192"]
def q_issue(k):
    r = [f"s_mov_b32 s{sT2}, {4096*k}"]
    for p in range(4):
        r += [f"s_add_u32 m0, s{sReg}, {4*k*QP + (QP-1024)*p}", "s_nop 0", dma(SRD_Q, f"s{sT2}", 1024*p, f"QD0_{k}")]
    return r

def norm_a(qt):
    r = [f"v_accvgpr_read_b32 v{vT+1}, a{aL + 4*qt}", f"v_rcp_f32 v{vT}, v{vT+1}", f"v_cmp_nle_f32 vcc, s{sLo}, v{vT+1}"]
    for o in range(Oreg(qt, 0), Oreg(qt, 8), 2):
        r.append(f"v_pk_mul_f32 {vr(o,2)}, {vr(o,2)}, {vr(vT,2)} op_sel_hi:[1,0]")
    return r
def norm_b(qt):
    r = [f"s_or_b64 {sreg(sBad,2)}, {sreg(sBad,2)}, vcc", f"v_cmp_nge_f32 vcc, s{sHi}, v{vT+1}", f"v_add_u32 v{vT+2}, {qt*4*QP}, v{vOw}"]
    for dt in range(0, 8, 2):
        for d in (dt, dt + 1):
            o = Oreg(qt, d)
            r += [f"v_cvt_pk_bf16_f32 v{o}, v{o}, v{o+1}", f"v_cvt_pk_bf16_f32 v{o+1}, v{o+2}, v{o+3}"]
        if dt == 0: r.append(f"s_or_b64 {sreg(sBad,2)}, {sreg(sBad,2)}, vcc")
        r.append(Ins(f"ds_write2_b64 v{vT+2}, {vr(Oreg(qt, dt),2)}, {vr(Oreg(qt, dt+1),2)} offset0:{4*dt} offset1:{4*dt+4}", f"W{qt}"))
    return r
def back_ops(qt):
    return [Ins(f"ds_read_b128 {vr(Oreg(qt, j), 4)}, v{vOr} offset:{qt*4*QP + QP*j}", f"B{qt}_{j}") for j in range(4)]
def store_ops(qt, sp):
    r = [f"s_mov_b32 s{sT2}, {4096*qt}"]
    for j in range(4): r += [W(lg=f"B{qt}_{j}"), o_store(vr(Oreg(qt, j), 4), f"s{sT2}", 1024*j, sp)]
    return r
def park_ops(c, t):
    r = vr(vE + 4 + 4 * t, 4)
    return [Ins(f"ds_read_b128 {r}, v{vOr} offset:{c*QP}", f"P{c}")], [f"s_mov_b32 s{sT}, {1024*c}", W(lg=f"P{c}"), o_store(r, f"s{sT}", 0, SPA.split("/")[0])]
def q_dma(ph, gs, k, srd=SRD_Q, hd=0):
    ph.shadow(gs[0] - 2, f"s_mov_b32 s{sT2}, {4096*k}")
    for p, g in enumerate(gs):
        ph.shadow(g - 1, f"s_add_u32 m0, s{sReg}, {4*k*QP + (QP-1024)*p}")
        ph.put(g, dma(srd, f"s{sT2}", 1024*p, f"QD{hd}_{k}"))
NPRE = 6 if a.oper == 1 else 0
def park(ph, c, t, gr, gs):
    rd, st = park_ops(c, t)
    ph.put(gr, *rd)
    ph.shadow(gs - 1, st[0]); ph.shadow(gs, st[1]); ph.put(gs, st[2])
def flag_ops(bit):
    return [f"s_cmp_lg_u64 {sreg(sBad,2)}, 0", f"s_cselect_b32 s{sT2}, {0 if a.abl else bit}, 0", f"s_or_b32 s{sFlag}, s{sFlag}, s{sT2}", f"s_mov_b64 {sreg(sBad,2)}, 0"]

def boundary():
    order = [(14, 0), (14, 1), (14, 2), (15, 0), (15, 1), (15, 2), (14, 3), (15, 3), (14, 4), (15, 4), (14, 5), (15, 5), (16, 0), (16, 1)]
    us = [U(t, q, 84 + i) for i, (t, q) in enumerate(order)]
    ph = Phase()
    for j in range(12):
        reads = []
        if j in (1, 2): reads = [v_read(15, 8 * (j - 1) + n) for n in range(8)]
        if j == 0:
            reads = [k_read(15, n) for n in range(8)]
            g0 = ph.step(us[j + 2], us[j + 1], us[j], reads=reads[:4], early=True)
            for n in range(4): ph.put(g0 + 1 + 2 * n, reads[4 + n])
        else:
            ph.step(us[j + 2], us[j + 1], us[j], reads=reads)
    G = ph.g
    ph.shadow(G(0, 16), W(lg="K15"))
    ph.shadow(G(3, 7), W(lg="V15"))
    kv_dma(ph, [G(0, 11), G(0, 15), G(1, 11), G(1, 15)], 17)
    pre = {k: [W(vm=f"QD1_{k}")] + [q_read(k, ks, 1) for ks in range(4)] for k in range(6)}
    ph.spread(pre[0] + pre[1], G(3, 0), G(3, 16))
    ph.spread(pre[2], G(4, 0), G(4, 16)); ph.spread(pre[3], G(6, 0), G(6, 16))
    for k in range(6 - a.qdelay, 6):
        j = 2 + 2 * (k - (6 - a.qdelay))
        q_dma(ph, [G(j, 5), G(j, 13), G(j + 1, 5), G(j + 1, 13)], k, SRD_X, 1)
    ph.spread(pre[4], G(10, 0), G(10, 7))
    ph.shadow(G(8, 7), *sync("KV16", "V15"))
    ph.spread([k_read(16, n) for n in range(8)], G(8, 8), G(9, 8))
    ph.shadow(G(9, 16), W(lg=["K16", "Q1_0", "Q1_1"]))
    kv_dma(ph, [G(9, 9), G(9, 11), G(9, 13), G(9, 15)], 18)
    ph.spread([v_read(16, n) for n in range(16)], G(10, 10), G(11, 8))
    ph.shadow(G(11, 16), *sync("KV17", ["V16", "Q1_4"]))
    period(16, 1, False, ph, first=True)
    ph.spread(pre[5], G(12, 7), G(12, 13))
    ph.shadow(G(14, 15), W(lg="Q1_5"))
    for c in range(NPRE):
        j = [6, 7, 9, 11, 14, 15][c]
        park(ph, c, c % 2, G(j, 3), G(j + (0 if j in (6, 7, 11) else 1), 11))
    for k, (ga, gb) in enumerate([(G(4, 5), G(5, 16)), (G(6, 1), G(7, 16)), (G(8, 1), G(9, 16)), (G(11, 9), G(13, 0)), (G(13, 1), G(14, 16)), (G(15, 1), G(16, 16))]):
        ph.put(ga, *norm_a(k))
        ph.spread(norm_b(k), ga + 1, gb)
    for k, i in enumerate(flag_ops(1) + [f"s_mov_b32 s{sIt}, 0", f"s_mov_b32 s{sXoff}, {1024*NPRE}", f"s_mov_b32 s{sR}, {(18 % NS) * SLOT}", f"s_add_u32 s{sW}, s{sWpart}, {(17 % NS) * SLOT}"]):
        ph.shadow(G(17, 1 + k), i)
    ph.put(G(17, 14), f"v_add_u32 v{vK}, {(18 % NS) * SLOT}, v{vKl}")
    ph.put(G(16, 14), f"v_add_u32 v{vV}, {(18 % NS) * SLOT}, v{vVl}")
    ph.emit("boundary")

def finish():
    order = [(29, q) for q in range(6)] + [(t, q) for q in range(6) for t in (30, 31)]
    us = [U(t, q, 174 + i) for i, (t, q) in enumerate(order)] + [None, None]
    ph = Phase()
    vr30 = [v_read(30, n) for n in range(16)]
    rd = {0: [k_read(30, n) for n in range(6)], 1: [k_read(30, n) for n in range(6, 8)] + vr30[:4], 2: vr30[4:10], 5: vr30[12:]}
    for j in range(18):
        ph.step(us[j + 2], us[j + 1], us[j], reads=rd.get(j, []), early=(j == 5))
    G = ph.g
    for k, i in enumerate([f"s_mul_i32 s{sT}, s{sHB}, 98304", f"s_mul_i32 s{sT2}, s{sWV}, 24576", f"s_add_u32 s{sT}, s{sT}, s{sT2}",
                           f"s_add_u32 s{SRD_O}, s{sOp}, s{sT}", f"s_addc_u32 s{SRD_O+1}, s{sOp+1}, 0"]):
        ph.shadow(G(7, 9 + k), i)
    for c in range(NPRE):
        park(ph, 24 - NPRE + c, c % 2, G(c, 1), G(c + 1, 3))
    ph.spread(vr30[10:12], G(3, 0), G(3, 6))
    ph.shadow(G(3, 7), *sync("KV31", "K30"))
    ph.spread([k_read(31, n) for n in range(8)], G(3, 8), G(4, 10))
    ph.shadow(G(4, 16), W(lg="K31"))
    ph.spread([v_read(31, n) for n in range(16)], G(5, 10), G(6, 16))
    ph.shadow(G(6, 7), W(lg="V30"))
    ph.shadow(G(7, 7), W(lg="V31"))
    for k in range(4):
        j = 8 + 2 * k
        ph.put(G(j, 3), *norm_a(k))
        ph.spread(norm_b(k) + back_ops(k), G(j, 4), G(j, 16))
        ph.spread(store_ops(k, SP), G(j + 1, 4), G(j + 1, 16))
    ph.put(G(16, 2), *norm_a(4))
    ph.spread(norm_b(4) + back_ops(4), G(16, 3), G(17, 4))
    ph.emit("finish")
    n0 = len(code)
    st4 = store_ops(4, SP)
    A(*st4[:5]); A("s_nop 2")
    A(*norm_a(5)); nb = norm_b(5)
    A(*(nb[:9] + st4[5:7] + nb[9:14] + st4[7:] + nb[14:] + back_ops(5) + flag_ops(2) + store_ops(5, SP)))
    est.append(("tail", n0, len(code), 0))

L(NAME)
A("s_load_dwordx8 s[4:11], s[0:1], 0", "s_cmp_ge_u32 s2, 256", "s_cbranch_scc1 L_exit")
if a.cpf:
    C("touch eight 128-byte lines of this kernel's code per workgroup so that later instruction fetches hit in L2")
    A("s_getpc_b64 s[12:13]", f"s_lshr_b32 s{sT}, s2, 3", f"s_lshl_b32 s{sT}, s{sT}, 10", f"v_lshrrev_b32 v{vT}, 5, v0",
      f"v_lshl_add_u32 v{vT}, v{vT}, 7, s{sT}", f"v_min_u32 v{vT}, L_exit-{NAME}-64, v{vT}",
      Ins(f"global_load_dword v{vT+5}, v{vT}, s[12:13]", "code"))
if a.stamps: A(f"s_load_dwordx2 s[{SRD_W}:{SRD_W+1}], s[0:1], 40", f"s_mov_b32 s{sSt+5}, 0")
A(f"v_lshrrev_b32 v{vT}, 6, v0", "v_and_b32 v0, 63, v0", f"v_readfirstlane_b32 s{sWV}, v{vT}", f"v_lshlrev_b32 v{vDMA}, 4, v0")
if a.hmap == 0: A(f"s_lshl_b32 s{sHA}, s2, 1")
else: A(f"s_mov_b32 s{sHA}, s2")
A(f"s_mov_b32 s{SRD_KV+3}, 0x20000", f"s_mov_b32 s{SRD_KV+2}, {KBYTES}", f"s_mul_i32 s{sWpart}, s{sWV}, {4*PIECE}")
kv_offset(sHA, sPoff)
A(f"s_cmp_lt_u32 s{sWV}, 2", "s_waitcnt lgkmcnt(0)", f"s_cselect_b64 {sreg(SRD_KV,2)}, s[6:7], s[8:9]")
if a.stamps: A(f"s_mov_b32 s{SRD_W+2}, 268435456", f"s_mov_b32 s{SRD_W+3}, 0x20000")
stamp()
def fill(seq, filler):
    for i in seq:
        if i == "s_nop 0" and filler: A(filler.pop(0))
        else: A(i)
fl = [f"s_mul_i32 s{sReg}, s{sWV}, {REGW}", f"s_add_u32 s{sReg}, s{sReg}, {REG}", f"s_mov_b32 s{SRD_Q+3}, 0x20000", f"s_add_u32 s{sHB}, s{sHA}, {256 if a.hmap else 1}"]
fill(kv_issue(0), fl)
window(SRD_Q, sQp, sHA)
fl = [f"s_mov_b32 s{SRD_O+3}, 0x20000", f"s_mov_b32 s{SRD_X+3}, 0x20000", f"s_mov_b32 s{sFlag}, {a.force_redo}", f"s_mov_b64 {sreg(sBad,2)}, 0",
      f"s_mov_b32 s{sC}, 0x{CSCALE:08x}", f"s_mov_b32 s{sLo}, 0x30800000", f"s_mov_b32 s{sHi}, 0x4e800000", f"s_mov_b32 s{sIt}, 0"]
fill(q_issue(0), fl)
k1 = kv_issue(1)
fill(k1[:6], fl)
C("---- per-lane LDS addresses (i = lane%16, g = lane/16)")
A(f"v_and_b32 v{vT}, 15, v0", f"v_lshrrev_b32 v{vT+1}, 4, v0")
A(f"v_and_b32 v{vT+2}, 7, v{vT}", f"v_mul_u32_u24 v{vKl}, {PIECE}, v{vT+2}", f"v_lshrrev_b32 v{vT+2}, 3, v{vT}",
  f"v_lshl_add_u32 v{vKl}, v{vT+2}, 8, v{vKl}", f"v_lshl_add_u32 v{vKl}, v{vT+1}, 4, v{vKl}")
A(f"v_bfe_u32 v{vT+2}, v0, 2, 3", f"v_mul_u32_u24 v{vVl}, {PIECE}, v{vT+2}", f"v_lshrrev_b32 v{vT+2}, 5, v0",
  f"v_lshl_add_u32 v{vVl}, v{vT+2}, 8, v{vVl}", f"v_and_b32 v{vT+2}, 3, v0", f"v_lshl_add_u32 v{vVl}, v{vT+2}, 3, v{vVl}",
  f"v_add_u32 v{vVl}, {8*PIECE}, v{vVl}")
A(f"v_cmp_eq_u32 vcc, 0, v{vT+2}", f"v_mov_b32 v{vT+4}, 0x3f803f80")
A(f"v_mul_u32_u24 v{vQ}, {QP}, v{vT+2}", f"v_cndmask_b32 v{vT+4}, 0, v{vT+4}, vcc", f"v_lshrrev_b32 v{vT+3}, 2, v{vT}",
  f"v_lshl_add_u32 v{vQ}, v{vT+3}, 8, v{vQ}", f"v_lshl_add_u32 v{vQ}, v{vT+1}, 4, v{vQ}", f"v_add_u32 v{vQ}, s{sReg}, v{vQ}")
A(f"v_lshl_add_u32 v{vT+2}, v{vT+2}, 2, v{vT+3}", f"v_mul_u32_u24 v{vOw}, 272, v{vT+2}", f"v_lshl_add_u32 v{vOw}, v{vT+1}, 3, v{vOw}",
  f"v_add_u32 v{vOw}, s{sReg}, v{vOw}", f"v_mul_u32_u24 v{vOr}, 272, v{vT+1}", f"v_lshl_add_u32 v{vOr}, v{vT}, 4, v{vOr}",
  f"v_add_u32 v{vOr}, s{sReg}, v{vOr}", f"v_add_u32 v{vX}, {NPRE*QP}, v{vOr}")
for j in range(4): A(f"v_accvgpr_write_b32 a{aONE+j}, v{vT+4}")
A(f"v_add_u32 v{vK}, {(3 % NS) * SLOT}, v{vKl}", f"v_add_u32 v{vV}, {(3 % NS) * SLOT}, v{vVl}")
window(SRD_O, sOp, sHA)
if "nost" in a.abl: A(f"s_mov_b32 s{SRD_O+2}, 0")
window(SRD_X, sQp, sHB)
kv_offset(sHB, sKVoffN)
if a.qdelay: A(f"s_mov_b32 s{SRD_X+2}, 0")
A(f"s_mov_b32 s{sX0}, 0", f"s_mov_b32 s{sXoff}, 0", f"s_mov_b32 s{sXm}, s{sReg}", f"s_mov_b32 s{sR}, {(3 % NS) * SLOT}", f"s_add_u32 s{sW}, s{sWpart}, {(2 % NS) * SLOT}")
fill(k1[6:], fl)
assert not fl
C("---- start-up: tiles 0 and 1 are processed q-major while Q arrives")
def st3():
    if a.stamps == 3: stamp()
st3()
A(*sync("KV0", None)); st3()
A(*[k_read(0, n) for n in range(8)]); A(*q_issue(1))
A(W(vm="QD0_0")); st3(); A(*[q_read(0, ks, 0) for ks in range(4)]); A(*q_issue(2)); A(W(lg="all"))
us = [U(t, q, 2 * q + t) for q in range(6) for t in range(2)] + [U(2, 0, 12), U(2, 1, 13)]
ph = Phase()
ph.step(us[0], reads=[v_read(0, n) for n in range(16)])
ph.emit()
A(*sync("KV1")); st3()
A(*[k_read(1, n) for n in range(8)]); A(*q_issue(3)); A(W(lg="all"))
ph = Phase()
for n in range(1, 14):
    ph.step(us[n], us[n - 1], us[n - 2] if n >= 2 else None, first=(n % 2 == 0))
G = lambda n, k: ph.g(n - 1, k)
ph.spread([W(vm="QD0_1")] + [q_read(1, ks, 0) for ks in range(4)], G(1, 0), G(1, 4))
ph.shadow(G(1, 7), W(lg="Q0_1"))
ph.spread([v_read(1, n) for n in range(16)], G(2, 0), G(2, 16))
ph.shadow(G(3, 7), W(lg="V1"))
q_dma(ph, [G(2, 3), G(2, 7), G(2, 11), G(2, 15)], 4)
for q in range(2, 6):
    n = 2 * q - 1
    ph.shadow(G(n, 1), W(vm=f"QD0_{q}"))
    for ks in range(4): ph.put(G(n, [2, 6, 10, 10][ks]), q_read(q, ks, 0))
    ph.shadow(G(n, 16), W(lg=f"Q0_{q}"))
    gs = [G(n, 5), G(n, 9), G(n, 14), G(n + 1, 2)]
    if q == 2: q_dma(ph, gs, 5)
    else: kv_dma(ph, gs, q - 1)
ph.shadow(G(6, 8), "s_barrier")
ph.shadow(G(10, 8), *sync("KV2", None))
ph.spread([k_read(2, n) for n in range(8)], G(10, 9), G(11, 10))
ph.shadow(G(11, 16), W(lg="K2"))
ph.spread([v_read(2, n) for n in range(16)], G(12, 10), G(13, 8))
ph.shadow(G(13, 16), *sync("KV3"))
ph.emit("start")
stamp()
main_loop(0, 2)
stamp()
boundary()
stamp()
main_loop(1, 17)
stamp()
finish()
stamp()
C("---- combine the per-wave 'row sum left the safe range' flags of the workgroup")
A(f"s_lshl_b32 s{sT}, s{sWV}, 2", f"s_add_u32 s{sT}, s{sT}, {FLAGS}", f"v_mov_b32 v{vT}, s{sT}", f"v_mov_b32 v{vT+1}, s{sFlag}",
  f"ds_write_b32 v{vT}, v{vT+1}", f"v_mov_b32 v{vT}, {FLAGS}", "s_waitcnt lgkmcnt(0)", "s_barrier",
  f"ds_read_b128 {vr(vT+2,4)}, v{vT}", "s_waitcnt lgkmcnt(0)",
  f"v_or_b32 v{vT+2}, v{vT+2}, v{vT+3}", f"v_or3_b32 v{vT+2}, v{vT+2}, v{vT+4}, v{vT+5}", "s_nop 0",
  f"v_readfirstlane_b32 s{sPend}, v{vT+2}", "s_nop 3")
L("L_pend")
A(f"s_cmp_eq_u32 s{sPend}, 0", "s_cbranch_scc1 L_done")
C("==== rare path: redo a head, subtracting the true row maximum (plain, unpipelined code)")
A(f"s_bitcmp1_b32 s{sPend}, 0", f"s_cselect_b32 s{sCur}, s{sHA}, s{sHB}", f"s_cselect_b32 s{sT}, 2, 0", f"s_and_b32 s{sPend}, s{sPend}, s{sT}",
  "s_waitcnt vmcnt(0) lgkmcnt(0)", "s_barrier", f"s_mov_b32 s{SRD_KV+2}, {KBYTES}")
window(SRD_Q, sQp, sCur); window(SRD_O, sOp, sCur)
for k in range(6): A(*q_issue(k))
for j in range(6): A(f"v_mov_b32 v{vM+j}, 0xff800000")
A("s_waitcnt vmcnt(0)")
for k in range(6):
    A(*[q_read(k, ks, 0) for ks in range(4)]); A("s_waitcnt lgkmcnt(0)")
kv_offset(sCur, sPoff)
A(f"s_mov_b32 s{sIt}, 0")
L("L_maxloop")
A(*kv_issue(0)); A("s_waitcnt vmcnt(0)", "s_barrier")
A(*[k_read(0, n) for n in range(8)]); A("s_waitcnt lgkmcnt(0)", "s_barrier")
for qt in range(6):
    A(*qk_mfmas(U(0, qt, 0))); A("s_nop 7")
    for j in range(4): A(f"v_max3_f32 v{vM+qt}, v{vM+qt}, v{vS+2*j}, v{vS+2*j+1}")
A(f"s_add_u32 s{sIt}, s{sIt}, 1", f"s_cmp_lt_u32 s{sIt}, 16", "s_cbranch_scc1 L_maxloop")
for qt in range(6):
    m = vM + qt
    A(f"v_mov_b32 v{vT}, v{m}", "s_nop 1", f"v_permlane32_swap_b32 v{vT}, v{m}", "s_nop 1", f"v_max_f32 v{m}, v{m}, v{vT}",
      f"v_mov_b32 v{vT}, v{m}", "s_nop 1", f"v_permlane16_swap_b32 v{vT}, v{m}", "s_nop 1", f"v_max_f32 v{m}, v{m}, v{vT}",
      f"v_mul_f32 v{m}, s{sC}, v{m}", f"v_sub_f32 v{m}, 0, v{m}")
for r in range(vO, 256, 2): A(f"v_mov_b64 {vr(r,2)}, 0")
for r in range(24): A(f"v_accvgpr_write_b32 a{aL+r}, 0")
kv_offset(sCur, sPoff)
A(f"s_mov_b32 s{sIt}, 0")
L("L_slowloop")
A(*kv_issue(0)); A("s_waitcnt vmcnt(0)", "s_barrier")
A(*[k_read(0, n) for n in range(8)]); A("s_waitcnt lgkmcnt(0)")
A(*[v_read(0, n) for n in range(16)]); A("s_waitcnt lgkmcnt(0)", "s_barrier")
for qt in range(6):
    u = U(0, qt, 0)
    A(*qk_mfmas(u)); A("s_nop 7")
    for j in range(8): A(f"v_fma_f32 v{vS+j}, v{vS+j}, s{sC}, v{vM+qt}")
    for j in range(8): A(sm_e(u, j))
    A("s_nop 0")
    for k in range(4): A(sm_c(u, k))
    A("s_nop 1"); A(*pv_mfmas(u))
A(f"s_add_u32 s{sIt}, s{sIt}, 1", f"s_cmp_lt_u32 s{sIt}, 16", "s_cbranch_scc1 L_slowloop")
A("s_nop 7")
for qt in range(6): A(*(norm_a(qt) + norm_b(qt) + back_ops(qt) + store_ops(qt, SP)))
A("s_branch L_pend")
L("L_done")
if a.probe >= 0 or a.probec:
    A("s_waitcnt vmcnt(0)"); stamp()
    if a.probec: A(f"s_sub_u32 s{sSt+8}, s{sSt+10}, s{sSt+8}", f"s_lshr_b32 s{sSt+8}, s{sSt+8}, 3", f"s_add_u32 s{sSt+6}, s{sSt+6}, s{sSt+8}")
    L("L_spin")
    A(f"s_memrealtime s[{sSt}:{sSt+1}]", "s_waitcnt lgkmcnt(0)", f"s_sub_u32 s{sSt}, s{sSt}, s{sSt+6}", f"s_cmp_lt_i32 s{sSt}, 10000", "s_cbranch_scc1 L_spin")
if a.stamps:
    A("s_waitcnt vmcnt(0)"); stamp()
    A(f"v_lshlrev_b32 v{vT}, 3, v0", f"s_lshl_b32 s{sT}, s2, 2", f"s_add_u32 s{sT}, s{sT}, s{sWV}", f"s_lshl_b32 s{sT}, s{sT}, 9",
      f"buffer_store_dwordx2 {vr(vStamp,2)}, v{vT}, {sreg(SRD_W,4)}, s{sT} offen")
L("L_exit")
A("s_endpgm")

resolve(trace)
errs = verify(trace)
for e in errs[:40]: print("VERIFY:", e, file=sys.stderr)
if a.est:
    for (name, n0, n1, nm) in est: print(f"est {name}: {estimate(code[n0:n1])} cycles, {nm} mfma", file=sys.stderr)
hdr = open("standalone__mha_softmax__near_ridge.s.ref").read().split("; Override launch")[0]
o = [hdr.rstrip(), f"; @launch grid=(256,1,1) block=(256,1,1) lds={LDS}", '.amdgcn_target "amdgcn-amd-amdhsa--gfx950"',
     ".text", f".globl {NAME}", ".p2align 8", f".type {NAME},@function"]
for i in code:
    t = i.render()
    if t is None: continue
    o.append(t if i.kind == "label" or t.startswith(".") else "    " + t.rstrip())
o += ['.section .rodata,"a"', ".p2align 6", f".amdhsa_kernel {NAME}", """  .amdhsa_next_free_vgpr 512
  .amdhsa_next_free_sgpr 102
  .amdhsa_accum_offset 256
  .amdhsa_group_segment_fixed_size 0
  .amdhsa_kernarg_size 48
  .amdhsa_user_sgpr_count 2
  .amdhsa_user_sgpr_kernarg_segment_ptr 1
  .amdhsa_system_sgpr_workgroup_id_x 1
  .amdhsa_float_denorm_mode_32 3""", ".end_amdhsa_kernel"]
print("\n".join(o))
sys.exit(1 if errs else 0)
```

```python
import sys, argparse, struct
from asmlib import *
ap = argparse.ArgumentParser()
ap.add_argument("--lp", default="nt")
ap.add_argument("--sp", default="sc1")
ap.add_argument("--spa", default="sc1")
ap.add_argument("--hmap", type=int, default=1)
ap.add_argument("--stamps", type=int, default=0)
ap.add_argument("--probe", type=int, default=-1)
ap.add_argument("--force_redo", type=int, default=0)
ap.add_argument("--cpf", type=int, default=1)
ap.add_argument("--dmapos", default="0,0,1,1")
ap.add_argument("--est", type=int, default=0)
ap.add_argument("--pre", type=int, default=1)
ap.add_argument("--fin2", type=int, default=1)
ap.add_argument("--dma0", type=int, default=0)
ap.add_argument("--ndef", type=int, default=0)
ap.add_argument("--qdelay", type=int, default=2)
ap.add_argument("--oper", type=int, default=1)
ap.add_argument("--soft", default="")
ap.add_argument("--probec", default="")
ap.add_argument("--abl", default="")
ap.add_argument("--pad", type=int, default=0)
a = ap.parse_args()
pol = lambda s: s.replace("+", " ").replace("-", "")
LP, SP, SPA = pol(a.lp), pol(a.sp), pol(a.spa)

NAME = "standalone__mha_softmax__near_ridge_kernel"
PIECE = 1056
SLOT = 16 * PIECE
NS = 3
RING = NS * SLOT
QP = 1088
REGW = 24 * QP
REG = RING
FLAGS = REG + 4 * REGW
LDS = FLAGS + 64
assert LDS <= 163840
KBYTES = 16 * 32 * 512 * 128 * 2
CSCALE = struct.unpack("<I", struct.pack("<f", 1.4426950408889634 * 128 ** -0.5))[0]

if "cone" in a.abl or "nomul" in a.abl: CSCALE = 0x3f800000
sWV = 3
sQp, sOp = 4, 10
SRD_Q, SRD_KV, SRD_O, SRD_X = 16, 20, 24, 28
sC, sPoff = 32, 33
sR, sW, sD, sT = 35, 36, 37, 38
sWpart, sIt, sCur = 39, 40, 41
sXoff, sXm = 42, 43
sX0, sReg, sKVoffN, sKVoff = 44, 45, 46, 48
sBad = 50
sFlag, sPend = 52, 54
sHA, sHB = 56, 57
sT2, sLo, sHi, sCm = 59, 60, 61, 62
SRD_W, sSt = 64, 68
vDMA, vK, vV, vQ, vOw, vOr, vKl, vVl, vX = 1, 2, 3, 4, 5, 6, 7, 8, 9
vT = 10
vM = 16
vStamp = 22
vS = 24
vE = 48
vO = 64
aQ, aK, aV, aL, aONE = 0, 96, 160, 224, 248

def vr(b, n): return f"v[{b}:{b+n-1}]"
def ar(b, n): return f"a[{b}:{b+n-1}]"
def sreg(b, n): return f"s[{b}:{b+n-1}]"
def Sbuf(n): return vS + 8 * (n % 3)
def Oreg(qt, dt): return vO + 32 * qt + 4 * dt

code = []
trace = []
ctx = [None]
def E(i, tr=True):
    if isinstance(i, str): i = Ins(i)
    code.append(i)
    if tr: trace.append((i, ctx[0]))
    return i
def A(*xs):
    for x in xs: E(x)
def L(s): E(s + ":")
def C(s): E("; " + s)

MF = "v_mfma_f32_16x16x32_bf16"
class U:
    def __init__(s, x, q, n): s.x, s.q, s.n = x, q, n
def qk_mfmas(u):
    r = []
    for kt in range(2):
        d = vr(Sbuf(u.n) + 4 * kt, 4)
        for ks in range(4):
            r.append(f"{MF} {d}, {ar(aK + 32*(u.x%2) + 16*kt + 4*ks, 4)}, {ar(aQ + 16*u.q + 4*ks, 4)}, {'0' if ks == 0 else d}")
    return r
def pv_mfmas(u, first=False):
    r = []
    p = vr(Sbuf(u.n), 4)
    for dt in range(8):
        d = vr(Oreg(u.q, dt), 4)
        r.append(f"{MF} {d}, {ar(aV + 32*(u.x%2) + 4*dt, 4)}, {p}, {'0' if first else d}")
    d = ar(aL + 4 * u.q, 4)
    r.append(f"{MF} {d}, {ar(aONE, 4)}, {p}, {'0' if first else d}")
    return r
def nomul(u): return "nomul" in a.abl or (a.pre and u.x < 16)
def sm_f(u, j): return f"v_mul_f32 v{Sbuf(u.n)+j}, s{sC}, v{Sbuf(u.n)+j}"
def sm_e(u, j): return f"v_exp_f32 v{Sbuf(u.n)+j}, v{Sbuf(u.n)+j}"
def sm_c(u, k): return f"v_cvt_pk_bf16_f32 v{Sbuf(u.n)+k}, v{Sbuf(u.n)+2*k}, v{Sbuf(u.n)+2*k+1}"
def k_read(x, n, dyn=False):
    kt, ks = n // 4, n % 4
    base, off = (vK, 0) if dyn else (vKl, (x % NS) * SLOT)
    return Ins(f"ds_read_b128 {ar(aK + 32*(x%2) + 16*kt + 4*ks, 4)}, v{base} offset:{off + kt*512 + ks*64}", "K" if dyn else f"K{x}")
def v_read(x, n, dyn=False):
    dt, kt = n // 2, n % 2
    base, off = (vV, 0) if dyn else (vVl, (x % NS) * SLOT)
    return Ins(f"ds_read_b64_tr_b16 {ar(aV + 32*(x%2) + 4*dt + 2*kt, 2)}, v{base} offset:{off + kt*512 + dt*32}", "V" if dyn else f"V{x}")
vQt, vPp, sMask = 48, 14, 34
def pre_ops(qt, ks):
    r = []
    for j in range(4):
        r += [f"v_lshlrev_b32 v{vPp+2*j}, 16, v{vQt+4*ks+j}", f"v_and_b32 v{vPp+2*j+1}, s{sMask}, v{vQt+4*ks+j}"]
    r += [f"v_pk_mul_f32 {vr(vPp+2*j,2)}, {vr(vPp+2*j,2)}, {sreg(sC,2)} op_sel_hi:[1,0]" for j in range(4)]
    r += [f"v_cvt_pk_bf16_f32 v{vPp+2*j}, v{vPp+2*j}, v{vPp+2*j+1}" for j in range(4)]
    r += [f"v_accvgpr_write_b32 a{aQ+16*qt+4*ks+j}, v{vPp+2*j}" for j in range(4)]
    return r
def q_read(qt, ks, hd, raw=False):
    if raw: return Ins(f"ds_read_b128 {vr(vQt + 4*ks, 4)}, v{vQ} offset:{qt*4*QP + 64*ks}", f"Q{hd}_{qt}_{ks}")
    return Ins(f"ds_read_b128 {ar(aQ + 16*qt + 4*ks, 4)}, v{vQ} offset:{qt*4*QP + 64*ks}", f"Q{hd}_{qt}")
def dma(srd, soff, off, tag):
    return Ins(f"buffer_load_dwordx4 v{vDMA}, {sreg(srd,4)}, {soff} offen offset:{off} {LP} lds", tag)
def o_store(reg, soff, off, sp):
    return Ins(f"buffer_store_dwordx4 {reg}, v{vDMA}, {sreg(SRD_O,4)}, {soff} offen offset:{off} {sp}", "st")

nst = [0]
def stamp():
    nst[0] += 1
    if a.probe == nst[0] - 1:
        A(f"s_memrealtime s[{sSt+6}:{sSt+7}]", "s_waitcnt lgkmcnt(0)")
    if a.probec:
        pa, pb = map(int, a.probec.split(","))
        if nst[0] - 1 == 0: A(f"s_memrealtime s[{sSt+6}:{sSt+7}]", "s_waitcnt lgkmcnt(0)")
        if nst[0] - 1 == pa: A(f"s_memtime s[{sSt+8}:{sSt+9}]", "s_waitcnt lgkmcnt(0)")
        if nst[0] - 1 == pb: A(f"s_memtime s[{sSt+10}:{sSt+11}]", "s_waitcnt lgkmcnt(0)")
    if not a.stamps: return
    A(f"s_memtime s[{sSt}:{sSt+1}]", f"s_memrealtime s[{sSt+2}:{sSt+3}]", "s_waitcnt lgkmcnt(0)",
      f"s_mov_b32 s{sSt+4}, m0", f"s_mov_b32 m0, s{sSt+5}",
      f"v_writelane_b32 v{vStamp}, s{sSt}, m0", f"v_writelane_b32 v{vStamp+1}, s{sSt+2}, m0",
      f"s_add_u32 s{sSt+5}, s{sSt+5}, 1", f"s_mov_b32 m0, s{sSt+4}")

lst = [0]
def light_stamp():
    k = lst[0]; lst[0] += 1
    A(f"s_getreg_b32 s{sSt+8}, hwreg(HW_REG_SHADER_CYCLES)") if False else None
    stamp()
COST = {"valu": 4, "trans": 8, "ds": 4, "vmem": 12, "salu": 0, "wait": 0, "barrier": 24}
def cost(i):
    if i.text.startswith("ds_write2"): return 20
    if i.text.startswith("buffer_store"): return 40
    return COST[i.kind]
class Phase:
    def __init__(s): s.mf, s.front, s.back, s.steps, s.pre = [], [], [], [], {}
    def step(s, qk=None, sm=None, pv=None, first=False, reads=(), early=False, hole=False):
        g0 = len(s.mf)
        m = (qk_mfmas(qk) if qk else []) + (pv_mfmas(pv, first) if pv else [])
        s.mf += m; s.front += [[] for _ in m]; s.back += [[] for _ in m]
        s.steps.append(g0)
        if not qk: s.before(g0, "s_nop 1")
        reads = list(reads)
        if len(m) == 17 and sm:
            f = lambda j: sm_f(sm, j); c = lambda k: sm_c(sm, k)
            if early:
                pat = {0: [f(0)], 2: [f(1)], 4: [f(2)], 6: [f(3)], 8: [f(4), f(5)], 10: [c(0), f(6)], 12: [c(1), f(7)], 14: [c(2)], 16: [c(3)]}
                rg = [0, 2, 4, 6]
            else:
                pat = {0: [f(0), f(1)], 2: [f(2)], 4: [c(0), f(3)], 6: [f(4)], 8: [c(1), f(5)], 10: [f(6)], 12: [c(2), f(7)], 16: [c(3)]}
                rg = [2, 6, 10, 16 if hole else 14]
            if nomul(sm):
                pat = {6: [c(0)], 10: [c(1)], 12: [c(2)], 16: [c(3)]}; rg = [0, 2, 4, 6]
            for j in range(8): pat[2 * j + 1] = [sm_e(sm, j)]
            for g, v in pat.items(): s.back[g0 + g] += [Ins(t) for t in v]
            for g in rg:
                if reads: s.front[g0 + g].append(reads.pop(0))
        elif sm:
            f = lambda j: sm_f(sm, j); c = lambda k: sm_c(sm, k); e = lambda j: sm_e(sm, j)
            pat = [[f(0), f(1), f(2), f(3)], [e(0), e(1)], [e(2), e(3)], [f(4), f(5), f(6), f(7)], [e(4), e(5)], [e(6), e(7)], [c(0), c(1)], [c(2), c(3)]]
            if nomul(sm): pat = [[e(0)], [e(1)], [e(2), c(0)], [e(3)], [e(4), c(1)], [e(5)], [e(6), c(2)], [e(7), "s_nop 0", c(3)]]
            for g, v in enumerate(pat): s.back[g0 + g] += [Ins(t) for t in v]
        if reads: s.spread(reads, g0, len(s.mf) - 1)
        return g0
    def g(s, step, k=0): return s.steps[step] + k
    def load(s, g):
        sc = [k for k, i in enumerate(s.front[g]) if i.kind in ("salu", "wait")]
        return sum(cost(i) for i in s.front[g] + s.back[g]) + 4 * len([k for k in sc if k > 0])
    def put(s, g, *ins):
        for i in ins:
            if isinstance(i, str): i = Ins(i)
            (s.back if i.kind in ("valu", "trans") else s.front)[g].append(i)
    def shadow(s, g, *ins):
        s.front[g][0:0] = [Ins(i) if isinstance(i, str) else i for i in ins]
    def before(s, g, *ins):
        s.pre.setdefault(g, []).extend(Ins(i) if isinstance(i, str) else i for i in ins)
    def spread(s, ops, g0, g1):
        ops = [Ins(i) if isinstance(i, str) else i for i in ops]
        tot = sum(max(cost(i), 1) for i in ops); cum = 0
        ptr = g0; lastback = -1
        for i in ops:
            tg = min(g1, g0 + int(cum / tot * (g1 - g0 + 1))); cum += max(cost(i), 1)
            if i.kind in ("valu", "trans"):
                cand = [g for g in range(max(ptr, tg - 1), min(g1, tg + 1) + 1) if s.load(g) + COST[i.kind] <= 8]
                g = cand[0] if cand else max(ptr, tg)
                s.back[g].append(i); lastback = g
            else:
                lo = max(ptr, tg, lastback + 1)
                if lo > g1:
                    g = g1; s.back[g].append(i); lastback = g
                else:
                    rng = range(lo, min(g1, lo + 2) + 1)
                    if i.kind in ("salu", "wait"): cand = [g for g in rng if not s.front[g]]
                    else: cand = [g for g in rng if s.load(g) <= 4]
                    g = cand[0] if cand else lo
                    s.front[g].append(i)
            ptr = g
    def emit(s, name=None):
        n0 = len(code)
        for g, m in enumerate(s.mf):
            if a.stamps == 4 and name in ("boundary", "finish") and g in s.steps and g > 0:
                est.append((name + str(s.steps.index(g) - 1), nb if g != s.steps[1] else n0, len(code), 0))
                light_stamp(); nb = len(code)
            for i in s.pre.get(g, []): E(i)
            if "halfsum" in a.abl and name and name.startswith("period") and (m.startswith(f"{MF} a[224:") or m.startswith(f"{MF} a[232:") or m.startswith(f"{MF} a[240:")):
                s.back[g + 1][0:0] = s.back[g]; s.back[g] = []; s.front[g + 1][0:0] = s.front[g]; s.front[g] = []
                continue
            E(m)
            for i in s.front[g] + s.back[g]: E(i)
        if name: est.append((name, n0, len(code), len(s.mf)))
est = []

def sync(kv, lg="all"):
    return [W(vm=kv, lg=lg), Ins("s_barrier")]

def kv_dma(ph, gs, x, dyn=False):
    for p, g in enumerate(gs):
        if dyn:
            ph.shadow(g - 1, f"s_add_u32 m0, s{sW}, {32*p}")
            ph.put(g, dma(SRD_KV, f"s{sPoff}", 1024 * p, lambda y: f"KV{y+3}"))
        else:
            ph.shadow(g - 1, f"s_add_u32 m0, s{sWpart}, {(x % NS) * SLOT + 32*p}")
            ph.put(g, dma(SRD_KV, f"s{sPoff}", 1024 * p, f"KV{x}"))
    ph.shadow(gs[-1] + 1, f"s_add_u32 s{sPoff}, s{sPoff}, 8192")

def period(x, hd, dyn, ph=None, first=False, last=False):
    if ph is None: ph = Phase()
    s0 = len(ph.steps)
    un = lambda t, q: U(t, q, 6 * t + q)
    for j in range(6):
        qk = un(x, j + 2) if j < 4 else un(x + 1, j - 4)
        sm = un(x, j + 1) if j < 5 else un(x + 1, 0)
        reads = [k_read(x + 1, 4 * j + i, dyn) for i in range(4)] if j < 2 else [v_read(x + 1, 4 * (j - 2) + i, dyn) for i in range(4)]
        ph.step(qk, sm, un(x, j), first, reads, early=(j == 5), hole=(j < (4 if (hd == 0 or a.oper == 2) else 3)))
    G = lambda j, k: ph.g(s0 + j, k)
    if a.pad:
        for j in range(6): ph.back[G(j, 7)].append(Ins(f"s_nop {a.pad-1}"))
    ph.shadow(G(3, 15), W(lg="K" if dyn else f"K{x+1}"))
    if nomul(un(x, 0)): kv_dma(ph, [G(0, 8), G(0, 14), G(1, 8), G(1, 14)], x + 3, dyn)
    elif a.dma0: kv_dma(ph, [G(0, 1), G(0, 5), G(0, 9), G(0, 14)], x + 3, dyn)
    else: kv_dma(ph, [G(0, 5), G(0, 14), G(1, 5), G(1, 14)], x + 3, dyn)
    if dyn:
        ph.shadow(G(4, 1), f"s_add_u32 s{sW}, s{sR}, s{sWpart}")
        ph.shadow(G(4, 2), f"s_add_u32 s{sT}, s{sR}, {SLOT}")
        ph.shadow(G(4, 3), f"s_cmp_eq_u32 s{sT}, {RING}")
        ph.shadow(G(4, 4), f"s_cselect_b32 s{sT}, 0, s{sT}")
        ph.shadow(G(4, 5), f"s_sub_u32 s{sD}, s{sT}, s{sR}")
        ph.shadow(G(4, 6), f"s_mov_b32 s{sR}, s{sT}")
        ph.put(G(4, 14), f"v_add_u32 v{vK}, s{sD}, v{vK}")
        ph.put(G(5, 14), f"v_add_u32 v{vV}, s{sD}, v{vV}")
        if not last:
            ph.shadow(G(5, 1), f"s_add_u32 s{sIt}, s{sIt}, 1")
            if hd == 0:
                ph.shadow(G(5, 2), f"s_cmp_eq_u32 s{sIt}, 6")
                ph.shadow(G(5, 3), f"s_cselect_b32 s{sPoff}, s{sKVoffN}, s{sPoff}")
        if hd == 0:
            for p in range(2):
                ph.shadow(G(2 + p, 13), f"s_add_u32 m0, s{sXm}, {(QP-1024)*p}")
                ph.put(G(2 + p, 14), dma(SRD_X, f"s{sXoff}", 1024 * p, lambda y: f"QD1_{(y-2)//2 - a.qdelay}"))
            ph.shadow(G(5, 9), f"s_add_u32 s{sXm}, s{sXm}, {2*QP}")
        else:
            for p in range(a.oper):
                ph.put(G(2 + p, 14), o_store(vr(vE + 4*p, 4), f"s{sXoff}", 1024 * p, SPA.split("/")[p % len(SPA.split("/"))]))
        ph.shadow(G(5, 11), f"s_add_u32 s{sXoff}, s{sXoff}, {2048 if hd == 0 else 1024 * a.oper}")
        if last and hd == 0 and a.qdelay:
            ph.shadow(G(5, 12), f"s_cmp_eq_u32 s{sIt}, {a.qdelay}")
            ph.shadow(G(5, 13), f"s_cselect_b32 s{SRD_X+2}, 24576, s{SRD_X+2}")
            ph.shadow(G(5, 14), f"s_cselect_b64 {sreg(sXoff,2)}, {sreg(sX0,2)}, {sreg(sXoff,2)}")
        if last: ph.shadow(G(5, 15), f"s_cmp_lt_u32 s{sIt}, 6")
    if hd == 1:
        ph.put(G(4, 16), Ins(f"ds_read_b128 {vr(vE, 4)}, v{vX}", "T"))
        if a.oper == 2: ph.put(G(4, 9), Ins(f"ds_read_b128 {vr(vE + 4, 4)}, v{vX} offset:{QP}", "T"))
        ph.put(G(5, 16), f"v_add_u32 v{vX}, {a.oper*QP}, v{vX}")
    ph.shadow(G(5, 16), *sync((lambda y: f"KV{y+2}") if dyn else f"KV{x+2}", "all" if dyn else [f"V{x+1}", "T"]))
    return ph

def main_loop(hd, x0):
    E(".p2align 3")
    t0 = len(trace)
    L(f"L_loop{hd}")
    halves = []
    for h in range(2):
        b = len(code)
        if a.stamps == 2: stamp()
        if a.soft and hd == 0:
            it, sl = a.soft.split(",")
            A(f"s_cmp_lt_u32 s{sIt}, {int(it)+h}", f"s_cbranch_scc0 L_soft{hd}{h}", f"s_sleep {sl}"); L(f"L_soft{hd}{h}")
        period(x0 + h, hd, True, last=(h == 1)).emit(f"period{hd}{h}")
        if h: A(f"s_cbranch_scc1 L_loop{hd}")
        halves.append(code[b:])
    del trace[t0:]
    for x in range(x0, x0 + 12):
        trace.extend((i, x) for i in halves[(x - x0) % 2])

def window(srd, ptr, hreg):
    A(f"s_mul_i32 s{sT}, s{hreg}, 98304", f"s_mul_i32 s{sT2}, s{sWV}, 24576", f"s_add_u32 s{sT}, s{sT}, s{sT2}",
      f"s_add_u32 s{srd}, s{ptr}, s{sT}", f"s_addc_u32 s{srd+1}, s{ptr+1}, 0", f"s_mov_b32 s{srd+2}, 24576")
def kv_offset(hreg, kv):
    A(f"s_lshl_b32 s{kv}, s{hreg}, 17", f"s_and_b32 s{sT}, s{sWV}, 1", f"s_lshl_b32 s{sT}, s{sT}, 12", f"s_add_u32 s{kv}, s{kv}, s{sT}")
def kv_issue(x):
    r = []
    for p in range(4):
        r += [f"s_add_u32 m0, s{sWpart}, {(x % NS)*SLOT + 32*p}", "s_nop 0", dma(SRD_KV, f"s{sPoff}", 1024*p, f"KV{x}")]
    return r + [f"s_add_u32 s{sPoff}, s{sPoff}, 8192"]
def q_issue(k):
    r = [f"s_mov_b32 s{sT2}, {4096*k}"]
    for p in range(4):
        r += [f"s_add_u32 m0, s{sReg}, {4*k*QP + (QP-1024)*p}", "s_nop 0", dma(SRD_Q, f"s{sT2}", 1024*p, f"QD0_{k}")]
    return r

def norm_a(qt):
    r = [f"v_accvgpr_read_b32 v{vT+1}, a{aL + 4*qt}", f"v_rcp_f32 v{vT}, v{vT+1}", f"v_cmp_nle_f32 vcc, s{sLo}, v{vT+1}"]
    for o in range(Oreg(qt, 0), Oreg(qt, 8), 2):
        r.append(f"v_pk_mul_f32 {vr(o,2)}, {vr(o,2)}, {vr(vT,2)} op_sel_hi:[1,0]")
    return r
def norm_b(qt):
    r = [f"s_or_b64 {sreg(sBad,2)}, {sreg(sBad,2)}, vcc", f"v_cmp_nge_f32 vcc, s{sHi}, v{vT+1}", f"v_add_u32 v{vT+2}, {qt*4*QP}, v{vOw}"]
    for dt in range(0, 8, 2):
        for d in (dt, dt + 1):
            o = Oreg(qt, d)
            r += [f"v_cvt_pk_bf16_f32 v{o}, v{o}, v{o+1}", f"v_cvt_pk_bf16_f32 v{o+1}, v{o+2}, v{o+3}"]
        if dt == 0: r.append(f"s_or_b64 {sreg(sBad,2)}, {sreg(sBad,2)}, vcc")
        r.append(Ins(f"ds_write2_b64 v{vT+2}, {vr(Oreg(qt, dt),2)}, {vr(Oreg(qt, dt+1),2)} offset0:{4*dt} offset1:{4*dt+4}", f"W{qt}"))
    return r
def back_ops(qt):
    return [Ins(f"ds_read_b128 {vr(Oreg(qt, j), 4)}, v{vOr} offset:{qt*4*QP + QP*j}", f"B{qt}_{j}") for j in range(4)]
def store_ops(qt, sp):
    if qt >= 6 - a.ndef: sp = ""
    r = [f"s_mov_b32 s{sT2}, {4096*qt}"]
    for j in range(4): r += [W(lg=f"B{qt}_{j}"), o_store(vr(Oreg(qt, j), 4), f"s{sT2}", 1024*j, sp)]
    return r
def park_ops(c, t):
    r = vr(vE + 4 + 4 * t, 4)
    return [Ins(f"ds_read_b128 {r}, v{vOr} offset:{c*QP}", f"P{c}")], [f"s_mov_b32 s{sT}, {1024*c}", W(lg=f"P{c}"), o_store(r, f"s{sT}", 0, SPA.split("/")[0])]
def q_dma(ph, gs, k, srd=SRD_Q, hd=0):
    ph.shadow(gs[0] - 2, f"s_mov_b32 s{sT2}, {4096*k}")
    for p, g in enumerate(gs):
        (ph.put if g - 1 in gs else ph.shadow)(g - 1, f"s_add_u32 m0, s{sReg}, {4*k*QP + (QP-1024)*p}")
        ph.put(g, dma(srd, f"s{sT2}", 1024*p, f"QD{hd}_{k}"))
NPRE = 6 if a.oper == 1 else 0
def park(ph, c, t, gr, gs):
    rd, st = park_ops(c, t)
    ph.put(gr, *rd)
    ph.shadow(gs - 1, st[0]); ph.shadow(gs, st[1]); ph.put(gs, st[2])
def flag_ops(bit):
    return [f"s_cmp_lg_u64 {sreg(sBad,2)}, 0", f"s_cselect_b32 s{sT2}, {0 if a.abl else bit}, 0", f"s_or_b32 s{sFlag}, s{sFlag}, s{sT2}", f"s_mov_b64 {sreg(sBad,2)}, 0"]

def boundary():
    order = [(14, 0), (14, 1), (14, 2), (15, 0), (15, 1), (15, 2), (14, 3), (15, 3), (14, 4), (15, 4), (14, 5), (15, 5), (16, 0), (16, 1)]
    us = [U(t, q, 84 + i) for i, (t, q) in enumerate(order)]
    ph = Phase()
    for j in range(12):
        reads = []
        if j in (1, 2): reads = [v_read(15, 8 * (j - 1) + n) for n in range(8)]
        if j == 0:
            reads = [k_read(15, n) for n in range(8)]
            g0 = ph.step(us[j + 2], us[j + 1], us[j], reads=reads[:4], early=True)
            for n in range(4): ph.put(g0 + 1 + 2 * n, reads[4 + n])
        else:
            ph.step(us[j + 2], us[j + 1], us[j], reads=reads)
    G = ph.g
    ph.shadow(G(0, 16), W(lg="K15"))
    ph.shadow(G(3, 7), W(lg="V15"))
    kv_dma(ph, [G(0, 11), G(0, 15), G(1, 11), G(1, 15)], 17)
    pre = {k: [W(vm=f"QD1_{k}")] + [q_read(k, ks, 1) for ks in range(4)] for k in range(6)}
    ph.spread(pre[0] + pre[1], G(3, 0), G(3, 16))
    ph.spread(pre[2], G(4, 0), G(4, 16)); ph.spread(pre[3], G(6, 0), G(6, 16))
    for k in range(6 - a.qdelay, 6):
        j = 2 + 2 * (k - (6 - a.qdelay))
        q_dma(ph, [G(j, 5), G(j, 13), G(j + 1, 5), G(j + 1, 13)], k, SRD_X, 1)
    ph.spread(pre[4], G(10, 0), G(10, 7))
    ph.shadow(G(8, 7), *sync("KV16", "V15"))
    ph.spread([k_read(16, n) for n in range(8)], G(8, 8), G(9, 8))
    ph.shadow(G(9, 16), W(lg=["K16", "Q1_0", "Q1_1"]))
    kv_dma(ph, [G(9, 9), G(9, 11), G(9, 13), G(9, 15)], 18)
    ph.spread([v_read(16, n) for n in range(16)], G(10, 10), G(11, 8))
    ph.shadow(G(11, 16), *sync("KV17", ["V16", "Q1_4"]))
    period(16, 1, False, ph, first=True)
    ph.spread(pre[5], G(12, 7), G(12, 13))
    ph.shadow(G(14, 15), W(lg="Q1_5"))
    for c in range(NPRE):
        j = [6, 7, 9, 11, 14, 15][c]
        park(ph, c, c % 2, G(j, 3), G(j + (0 if j in (6, 7, 11) else 1), 11))
    for k, (ga, gb) in enumerate([(G(4, 5), G(5, 16)), (G(6, 1), G(7, 16)), (G(8, 1), G(9, 16)), (G(11, 9), G(13, 0)), (G(13, 1), G(14, 16)), (G(15, 1), G(16, 16))]):
        ph.put(ga, *norm_a(k))
        ph.spread(norm_b(k), ga + 1, gb)
    for k, i in enumerate(flag_ops(1) + [f"s_mov_b32 s{sIt}, 0", f"s_mov_b32 s{sXoff}, {1024*NPRE}", f"s_mov_b32 s{sR}, {(18 % NS) * SLOT}", f"s_add_u32 s{sW}, s{sWpart}, {(17 % NS) * SLOT}"]):
        ph.shadow(G(17, 1 + k), i)
    ph.put(G(17, 14), f"v_add_u32 v{vK}, {(18 % NS) * SLOT}, v{vKl}")
    ph.put(G(16, 14), f"v_add_u32 v{vV}, {(18 % NS) * SLOT}, v{vVl}")
    ph.emit("boundary")

def finish():
    order = [(29, q) for q in range(6)] + [(t, q) for q in range(6) for t in (30, 31)]
    if a.fin2: order[7], order[8] = order[8], order[7]
    us = [U(t, q, 174 + i) for i, (t, q) in enumerate(order)] + [None, None]
    ph = Phase()
    vr30 = [v_read(30, n) for n in range(16)]
    rd = {0: [k_read(30, n) for n in range(6)], 1: [k_read(30, n) for n in range(6, 8)] + vr30[:4], 2: vr30[4:10], 5: vr30[12:]}
    if a.fin2: rd = {0: [k_read(30, n) for n in range(5)], 1: [k_read(30, n) for n in range(5, 8)] + vr30[:2], 2: vr30[2:7], 3: vr30[7:12], 4: vr30[12:]}
    for j in range(18):
        ph.step(us[j + 2], us[j + 1], us[j], reads=rd.get(j, []), early=(j == (4 if a.fin2 else 5)))
    G = ph.g
    for k, i in enumerate([f"s_mul_i32 s{sT}, s{sHB}, 98304", f"s_mul_i32 s{sT2}, s{sWV}, 24576", f"s_add_u32 s{sT}, s{sT}, s{sT2}",
                           f"s_add_u32 s{SRD_O}, s{sOp}, s{sT}", f"s_addc_u32 s{SRD_O+1}, s{sOp+1}, 0"]):
        ph.shadow(G(7, 9 + k), i)
    for c in range(NPRE):
        park(ph, 24 - NPRE + c, c % 2, G(c, 1), G(c + 1, 3))
    if not a.fin2:
        ph.spread(vr30[10:12], G(3, 0), G(3, 6))
        ph.shadow(G(3, 7), *sync("KV31", "K30"))
        ph.spread([k_read(31, n) for n in range(8)], G(3, 8), G(4, 10))
        ph.shadow(G(4, 16), W(lg="K31"))
        ph.spread([v_read(31, n) for n in range(16)], G(5, 10), G(6, 16))
        ph.shadow(G(6, 7), W(lg="V30"))
        ph.shadow(G(7, 7), W(lg="V31"))
    else:
        ph.shadow(G(3, 15), W(lg="K30"))
        ph.shadow(G(4, 12), *sync("KV31", None))
        ph.spread([k_read(31, n) for n in range(8)], G(4, 13), G(5, 10))
        ph.shadow(G(5, 16), W(lg="K31"))
        ph.spread([v_read(31, n) for n in range(16)], G(6, 0), G(7, 16))
        ph.shadow(G(8, 7), W(lg="V31"))
    for k in range(4):
        j = 8 + 2 * k
        if a.fin2 and k == 0:
            ph.put(G(9, 3), *norm_a(0))
            ph.spread(norm_b(0) + back_ops(0), G(9, 4), G(9, 16))
            continue
        ph.put(G(j, 3), *norm_a(k))
        if a.fin2 and k == 1:
            nb = norm_b(1); st = store_ops(0, SP)
            ph.spread(st[:5] + nb[:9] + st[5:7] + nb[9:14] + st[7:] + nb[14:] + back_ops(1), G(j, 4), G(j + 1, 2))
            ph.spread(store_ops(k, SP), G(j + 1, 7), G(j + 1, 16))
            continue
        ph.spread(norm_b(k) + back_ops(k), G(j, 4), G(j, 16))
        ph.spread(store_ops(k, SP), G(j + 1, 4), G(j + 1, 16))
    ph.put(G(16, 2), *norm_a(4))
    ph.spread(norm_b(4) + back_ops(4), G(16, 3), G(17, 4))
    ph.emit("finish")
    n0 = len(code)
    st4 = store_ops(4, SP)
    A(*st4[:5]); A("s_nop 2")
    A(*norm_a(5)); nb = norm_b(5)
    A(*(nb[:9] + st4[5:7] + nb[9:14] + st4[7:] + nb[14:] + back_ops(5) + flag_ops(2) + store_ops(5, SP)))
    est.append(("tail", n0, len(code), 0))

L(NAME)
A("s_load_dwordx8 s[4:11], s[0:1], 0", "s_cmp_ge_u32 s2, 256", "s_cbranch_scc1 L_exit")
if a.cpf:
    C("touch eight 128-byte lines of this kernel's code per workgroup so that later instruction fetches hit in L2")
    A("s_getpc_b64 s[12:13]", f"s_lshr_b32 s{sT}, s2, 3", f"s_lshl_b32 s{sT}, s{sT}, 10", f"v_lshrrev_b32 v{vT}, 5, v0",
      f"v_lshl_add_u32 v{vT}, v{vT}, 7, s{sT}", f"v_min_u32 v{vT}, L_exit-{NAME}-64, v{vT}",
      Ins(f"global_load_dword v{vT+5}, v{vT}, s[12:13]", "code"))
if a.stamps: A(f"s_load_dwordx2 s[{SRD_W}:{SRD_W+1}], s[0:1], 40", f"s_mov_b32 s{sSt+5}, 0")
A(f"v_lshrrev_b32 v{vT}, 6, v0", "v_and_b32 v0, 63, v0", f"v_readfirstlane_b32 s{sWV}, v{vT}", f"v_lshlrev_b32 v{vDMA}, 4, v0")
if a.hmap == 0: A(f"s_lshl_b32 s{sHA}, s2, 1")
else: A(f"s_mov_b32 s{sHA}, s2")
A(f"s_mov_b32 s{SRD_KV+3}, 0x20000", f"s_mov_b32 s{SRD_KV+2}, {KBYTES}", f"s_mul_i32 s{sWpart}, s{sWV}, {4*PIECE}")
kv_offset(sHA, sPoff)
A(f"s_cmp_lt_u32 s{sWV}, 2", "s_waitcnt lgkmcnt(0)", f"s_cselect_b64 {sreg(SRD_KV,2)}, s[6:7], s[8:9]")
if a.stamps: A(f"s_mov_b32 s{SRD_W+2}, 268435456", f"s_mov_b32 s{SRD_W+3}, 0x20000")
stamp()
def fill(seq, filler):
    for i in seq:
        if i == "s_nop 0" and filler: A(filler.pop(0))
        else: A(i)
fl = [f"s_mul_i32 s{sReg}, s{sWV}, {REGW}", f"s_add_u32 s{sReg}, s{sReg}, {REG}", f"s_mov_b32 s{SRD_Q+3}, 0x20000", f"s_add_u32 s{sHB}, s{sHA}, {256 if a.hmap else 1}"]
fill(kv_issue(0), fl)
window(SRD_Q, sQp, sHA)
fl = [f"s_mov_b32 s{SRD_O+3}, 0x20000", f"s_mov_b32 s{SRD_X+3}, 0x20000", f"s_mov_b32 s{sFlag}, {a.force_redo}", f"s_mov_b64 {sreg(sBad,2)}, 0",
      f"s_mov_b32 s{sC}, 0x{CSCALE:08x}", f"s_mov_b32 s{sLo}, 0x30800000", f"s_mov_b32 s{sHi}, 0x4e800000", f"s_mov_b32 s{sIt}, 0"]
fill(q_issue(0), fl)
k1 = kv_issue(1)
fill(k1[:6], fl)
C("---- per-lane LDS addresses (i = lane%16, g = lane/16)")
A(f"v_and_b32 v{vT}, 15, v0", f"v_lshrrev_b32 v{vT+1}, 4, v0")
A(f"v_and_b32 v{vT+2}, 7, v{vT}", f"v_mul_u32_u24 v{vKl}, {PIECE}, v{vT+2}", f"v_lshrrev_b32 v{vT+2}, 3, v{vT}",
  f"v_lshl_add_u32 v{vKl}, v{vT+2}, 8, v{vKl}", f"v_lshl_add_u32 v{vKl}, v{vT+1}, 4, v{vKl}")
A(f"v_bfe_u32 v{vT+2}, v0, 2, 3", f"v_mul_u32_u24 v{vVl}, {PIECE}, v{vT+2}", f"v_lshrrev_b32 v{vT+2}, 5, v0",
  f"v_lshl_add_u32 v{vVl}, v{vT+2}, 8, v{vVl}", f"v_and_b32 v{vT+2}, 3, v0", f"v_lshl_add_u32 v{vVl}, v{vT+2}, 3, v{vVl}",
  f"v_add_u32 v{vVl}, {8*PIECE}, v{vVl}")
A(f"v_cmp_eq_u32 vcc, 0, v{vT+2}", f"v_mov_b32 v{vT+4}, 0x3f803f80")
A(f"v_mul_u32_u24 v{vQ}, {QP}, v{vT+2}", f"v_cndmask_b32 v{vT+4}, 0, v{vT+4}, vcc", f"v_lshrrev_b32 v{vT+3}, 2, v{vT}",
  f"v_lshl_add_u32 v{vQ}, v{vT+3}, 8, v{vQ}", f"v_lshl_add_u32 v{vQ}, v{vT+1}, 4, v{vQ}", f"v_add_u32 v{vQ}, s{sReg}, v{vQ}")
A(f"v_lshl_add_u32 v{vT+2}, v{vT+2}, 2, v{vT+3}", f"v_mul_u32_u24 v{vOw}, 272, v{vT+2}", f"v_lshl_add_u32 v{vOw}, v{vT+1}, 3, v{vOw}",
  f"v_add_u32 v{vOw}, s{sReg}, v{vOw}", f"v_mul_u32_u24 v{vOr}, 272, v{vT+1}", f"v_lshl_add_u32 v{vOr}, v{vT}, 4, v{vOr}",
  f"v_add_u32 v{vOr}, s{sReg}, v{vOr}", f"v_add_u32 v{vX}, {NPRE*QP}, v{vOr}")
for j in range(4): A(f"v_accvgpr_write_b32 a{aONE+j}, v{vT+4}")
A(f"v_add_u32 v{vK}, {(3 % NS) * SLOT}, v{vKl}", f"v_add_u32 v{vV}, {(3 % NS) * SLOT}, v{vVl}")
window(SRD_O, sOp, sHA)
if "nost" in a.abl: A(f"s_mov_b32 s{SRD_O+2}, 0")
window(SRD_X, sQp, sHB)
kv_offset(sHB, sKVoffN)
if a.qdelay: A(f"s_mov_b32 s{SRD_X+2}, 0")
A(f"s_mov_b32 s{sMask}, 0xffff0000")
A(f"s_mov_b32 s{sX0}, 0", f"s_mov_b32 s{sXoff}, 0", f"s_mov_b32 s{sXm}, s{sReg}", f"s_mov_b32 s{sR}, {(3 % NS) * SLOT}", f"s_add_u32 s{sW}, s{sWpart}, {(2 % NS) * SLOT}")
fill(k1[6:], fl)
assert not fl
C("---- start-up: tiles 0 and 1 are processed q-major while Q arrives")
def st3():
    if a.stamps == 3: stamp()
st3()
A(*sync("KV0", None)); st3()
A(*[k_read(0, n) for n in range(8)]); A(*q_issue(1))
A(W(vm="QD0_0")); st3(); A(*[q_read(0, ks, 0, a.pre) for ks in range(4)]); A(*q_issue(2)); A(W(lg="all"))
if a.pre:
    for ks in range(4): A(*pre_ops(0, ks))
    A("s_nop 1")
us = [U(t, q, 2 * q + t) for q in range(6) for t in range(2)] + [U(2, 0, 12), U(2, 1, 13)]
ph = Phase()
ph.step(us[0], reads=[v_read(0, n) for n in range(16)])
ph.emit()
A(*sync("KV1")); st3()
A(*[k_read(1, n) for n in range(8)]); A(*q_issue(3)); A(W(lg="all"))
ph = Phase()
for n in range(1, 14):
    ph.step(us[n], us[n - 1], us[n - 2] if n >= 2 else None, first=(n % 2 == 0))
G = lambda n, k: ph.g(n - 1, k)
if a.pre:
    ph.put(G(1, 0), W(vm="QD0_1"), *[q_read(1, ks, 0, True) for ks in range(4)])
    for ks in range(4):
        g = G(1, [5, 6, 6, 7][ks])
        if ks != 2: ph.shadow(g, W(lg=f"Q0_1_{ks + (ks == 1)}"))
        ph.put(g, *pre_ops(1, ks))
else:
    ph.spread([W(vm="QD0_1")] + [q_read(1, ks, 0) for ks in range(4)], G(1, 0), G(1, 4))
    ph.shadow(G(1, 7), W(lg="Q0_1"))
ph.spread([v_read(1, n) for n in range(16)], G(2, 0), G(2, 16))
ph.shadow(G(3, 7), W(lg="V1"))
q_dma(ph, [G(1, 2), G(1, 3), G(1, 4), G(1, 5)] if a.pre else [G(2, 3), G(2, 7), G(2, 11), G(2, 15)], 4)
for q in range(2, 6):
    n = 2 * q - 1
    ph.shadow(G(n, 1), W(vm=f"QD0_{q}"))
    if a.pre:
        for ks in range(4):
            ph.put(G(n, [2, 2, 4, 4][ks]), q_read(q, ks, 0, True))
            ph.shadow(G(n, 10 + ks), W(lg=f"Q0_{q}_{ks}"))
            ph.put(G(n, 10 + ks), *pre_ops(q, ks))
        gs = [G(n, 3), G(n, 5), G(n, 7), G(n, 9)]
    else:
        for ks in range(4): ph.put(G(n, [2, 6, 10, 10][ks]), q_read(q, ks, 0))
        ph.shadow(G(n, 16), W(lg=f"Q0_{q}"))
        gs = [G(n, 5), G(n, 9), G(n, 14), G(n + 1, 2)]
    if q == 2: q_dma(ph, gs, 5)
    else: kv_dma(ph, gs, q - 1)
ph.shadow(G(6, 8), "s_barrier")
ph.shadow(G(10, 8), *sync("KV2", None))
ph.spread([k_read(2, n) for n in range(8)], G(10, 9), G(11, 10))
ph.shadow(G(11, 16), W(lg="K2"))
ph.spread([v_read(2, n) for n in range(16)], G(12, 10), G(13, 8))
ph.shadow(G(13, 16), *sync("KV3"))
ph.emit("start")
stamp()
main_loop(0, 2)
stamp()
boundary()
stamp()
main_loop(1, 17)
stamp()
finish()
stamp()
C("---- combine the per-wave 'row sum left the safe range' flags of the workgroup")
A(f"s_lshl_b32 s{sT}, s{sWV}, 2", f"s_add_u32 s{sT}, s{sT}, {FLAGS}", f"v_mov_b32 v{vT}, s{sT}", f"v_mov_b32 v{vT+1}, s{sFlag}",
  f"ds_write_b32 v{vT}, v{vT+1}", f"v_mov_b32 v{vT}, {FLAGS}", "s_waitcnt lgkmcnt(0)", "s_barrier",
  f"ds_read_b128 {vr(vT+2,4)}, v{vT}", "s_waitcnt lgkmcnt(0)",
  f"v_or_b32 v{vT+2}, v{vT+2}, v{vT+3}", f"v_or3_b32 v{vT+2}, v{vT+2}, v{vT+4}, v{vT+5}", "s_nop 0",
  f"v_readfirstlane_b32 s{sPend}, v{vT+2}", "s_nop 3")
L("L_pend")
A(f"s_cmp_eq_u32 s{sPend}, 0", "s_cbranch_scc1 L_done")
C("==== rare path: redo a head, subtracting the true row maximum (plain, unpipelined code)")
A(f"s_bitcmp1_b32 s{sPend}, 0", f"s_cselect_b32 s{sCur}, s{sHA}, s{sHB}", f"s_cselect_b32 s{sT}, 2, 0", f"s_and_b32 s{sPend}, s{sPend}, s{sT}",
  "s_waitcnt vmcnt(0) lgkmcnt(0)", "s_barrier", f"s_mov_b32 s{SRD_KV+2}, {KBYTES}")
window(SRD_Q, sQp, sCur); window(SRD_O, sOp, sCur)
for k in range(6): A(*q_issue(k))
for j in range(6): A(f"v_mov_b32 v{vM+j}, 0xff800000")
A("s_waitcnt vmcnt(0)")
for k in range(6):
    A(*[q_read(k, ks, 0) for ks in range(4)]); A("s_waitcnt lgkmcnt(0)")
kv_offset(sCur, sPoff)
A(f"s_mov_b32 s{sIt}, 0")
L("L_maxloop")
A(*kv_issue(0)); A("s_waitcnt vmcnt(0)", "s_barrier")
A(*[k_read(0, n) for n in range(8)]); A("s_waitcnt lgkmcnt(0)", "s_barrier")
for qt in range(6):
    A(*qk_mfmas(U(0, qt, 0))); A("s_nop 7")
    for j in range(4): A(f"v_max3_f32 v{vM+qt}, v{vM+qt}, v{vS+2*j}, v{vS+2*j+1}")
A(f"s_add_u32 s{sIt}, s{sIt}, 1", f"s_cmp_lt_u32 s{sIt}, 16", "s_cbranch_scc1 L_maxloop")
for qt in range(6):
    m = vM + qt
    A(f"v_mov_b32 v{vT}, v{m}", "s_nop 1", f"v_permlane32_swap_b32 v{vT}, v{m}", "s_nop 1", f"v_max_f32 v{m}, v{m}, v{vT}",
      f"v_mov_b32 v{vT}, v{m}", "s_nop 1", f"v_permlane16_swap_b32 v{vT}, v{m}", "s_nop 1", f"v_max_f32 v{m}, v{m}, v{vT}",
      f"v_mul_f32 v{m}, s{sC}, v{m}", f"v_sub_f32 v{m}, 0, v{m}")
for r in range(vO, 256, 2): A(f"v_mov_b64 {vr(r,2)}, 0")
for r in range(24): A(f"v_accvgpr_write_b32 a{aL+r}, 0")
kv_offset(sCur, sPoff)
A(f"s_mov_b32 s{sIt}, 0")
L("L_slowloop")
A(*kv_issue(0)); A("s_waitcnt vmcnt(0)", "s_barrier")
A(*[k_read(0, n) for n in range(8)]); A("s_waitcnt lgkmcnt(0)")
A(*[v_read(0, n) for n in range(16)]); A("s_waitcnt lgkmcnt(0)", "s_barrier")
for qt in range(6):
    u = U(0, qt, 0)
    A(*qk_mfmas(u)); A("s_nop 7")
    for j in range(8): A(f"v_fma_f32 v{vS+j}, v{vS+j}, s{sC}, v{vM+qt}")
    for j in range(8): A(sm_e(u, j))
    A("s_nop 0")
    for k in range(4): A(sm_c(u, k))
    A("s_nop 1"); A(*pv_mfmas(u))
A(f"s_add_u32 s{sIt}, s{sIt}, 1", f"s_cmp_lt_u32 s{sIt}, 16", "s_cbranch_scc1 L_slowloop")
A("s_nop 7")
for qt in range(6): A(*(norm_a(qt) + norm_b(qt) + back_ops(qt) + store_ops(qt, SP)))
A("s_branch L_pend")
L("L_done")
if a.probe >= 0 or a.probec:
    A("s_waitcnt vmcnt(0)"); stamp()
    if a.probec: A(f"s_sub_u32 s{sSt+8}, s{sSt+10}, s{sSt+8}", f"s_lshr_b32 s{sSt+8}, s{sSt+8}, 3", f"s_add_u32 s{sSt+6}, s{sSt+6}, s{sSt+8}")
    L("L_spin")
    A(f"s_memrealtime s[{sSt}:{sSt+1}]", "s_waitcnt lgkmcnt(0)", f"s_sub_u32 s{sSt}, s{sSt}, s{sSt+6}", f"s_cmp_lt_i32 s{sSt}, 10000", "s_cbranch_scc1 L_spin")
if a.stamps:
    A("s_waitcnt vmcnt(0)"); stamp()
    A(f"v_lshlrev_b32 v{vT}, 3, v0", f"s_lshl_b32 s{sT}, s2, 2", f"s_add_u32 s{sT}, s{sT}, s{sWV}", f"s_lshl_b32 s{sT}, s{sT}, 9",
      f"buffer_store_dwordx2 {vr(vStamp,2)}, v{vT}, {sreg(SRD_W,4)}, s{sT} offen")
L("L_exit")
A("s_endpgm")

resolve(trace)
errs = verify(trace)
for e in errs[:40]: print("VERIFY:", e, file=sys.stderr)
if a.est:
    for (name, n0, n1, nm) in est: print(f"est {name}: {estimate(code[n0:n1])} cycles, {nm} mfma", file=sys.stderr)
hdr = open("standalone__mha_softmax__near_ridge.s.ref").read().split("; Override launch")[0]
o = [hdr.rstrip(), f"; @launch grid=(256,1,1) block=(256,1,1) lds={LDS}", '.amdgcn_target "amdgcn-amd-amdhsa--gfx950"',
     ".text", f".globl {NAME}", ".p2align 8", f".type {NAME},@function"]
for i in code:
    t = i.render()
    if t is None: continue
    o.append(t if i.kind == "label" or t.startswith(".") else "    " + t.rstrip())
o += ['.section .rodata,"a"', ".p2align 6", f".amdhsa_kernel {NAME}", """  .amdhsa_next_free_vgpr 512
  .amdhsa_next_free_sgpr 102
  .amdhsa_accum_offset 256
  .amdhsa_group_segment_fixed_size 0
  .amdhsa_kernarg_size 48
  .amdhsa_user_sgpr_count 2
  .amdhsa_user_sgpr_kernarg_segment_ptr 1
  .amdhsa_system_sgpr_workgroup_id_x 1
  .amdhsa_float_denorm_mode_32 3""", ".end_amdhsa_kernel"]
print("\n".join(o))
sys.exit(1 if errs else 0)
```

```python
import re

class Ins:
    __slots__ = ("text", "kind", "tag", "need_vm", "need_lg", "vm", "lg", "force")
    def __init__(self, text, tag=None):
        self.text = text
        self.tag = tag
        self.need_vm = None
        self.need_lg = None
        self.vm = None
        self.lg = None
        self.force = False
        self.kind = classify(text)
    def render(self):
        if self.kind == "wait" and (self.need_vm is not None or self.need_lg is not None):
            p = []
            if self.need_vm is not None and self.vm is not None: p.append(f"vmcnt({min(self.vm, 63)})")
            if self.need_lg is not None and self.lg is not None: p.append(f"lgkmcnt({min(self.lg, 15)})")
            if not p: return None
            return "s_waitcnt " + " ".join(p)
        return self.text

def classify(t):
    op = t.split()[0] if t.split() else ""
    if t.endswith(":"): return "label"
    if op.startswith(";") or op.startswith("."): return "meta"
    if "mfma" in op: return "mfma"
    if op in ("v_exp_f32", "v_rcp_f32", "v_log_f32"): return "trans"
    if op.startswith("v_"): return "valu"
    if op.startswith("ds_"): return "ds"
    if op.startswith("buffer_") or op.startswith("global_"): return "vmem"
    if op == "s_waitcnt": return "wait"
    if op == "s_barrier": return "barrier"
    if op.startswith("s_load") or op.startswith("s_mem"): return "smem"
    if op.startswith("s_"): return "salu"
    raise Exception("classify: " + t)

def W(vm=None, lg=None):
    i = Ins("s_waitcnt")
    i.need_vm, i.need_lg = vm, lg
    return i

def _ev(v, x): return v(x) if callable(v) else v

def resolve(trace):
    vm, lg = [], []
    for ins, x in trace:
        if ins.kind == "vmem": vm.append(_ev(ins.tag, x))
        elif ins.kind == "ds": lg.append(_ev(ins.tag, x))
        elif ins.kind == "wait":
            for need, hist, attr in ((ins.need_vm, vm, "vm"), (ins.need_lg, lg, "lg")):
                if need is None: continue
                need = _ev(need, x)
                if need == "all": n = 0
                else:
                    if isinstance(need, str): need = [need]
                    idx = [k for k, t in enumerate(hist) if t in need]
                    missing = [t for t in need if t not in hist]
                    assert not missing, f"wait for tags never issued: {missing} (x={x})"
                    if not idx: continue
                    n = len(hist) - 1 - max(idx)
                cur = getattr(ins, attr)
                setattr(ins, attr, n if cur is None else min(cur, n))

_R = re.compile(r"\b([vas])(?:\[(\d+):(\d+)\]|(\d+))")
def regs(op):
    r = set()
    for m in _R.finditer(op):
        if m.group(2) is not None: r.update((m.group(1), k) for k in range(int(m.group(2)), int(m.group(3)) + 1))
        else: r.add((m.group(1), int(m.group(4))))
    if re.search(r"\bvcc\b", op): r.add(("s", "vcc"))
    if re.search(r"\bm0\b", op): r.add(("s", "m0"))
    return r

def rw(text):
    parts = text.split(None, 1)
    op = parts[0]
    ops = [o.strip() for o in parts[1].split(",")] if len(parts) > 1 else []
    k = classify(text)
    if k in ("label", "meta", "wait", "barrier"): return set(), set(), set()
    if k == "mfma":
        if "smfmac" in op: return regs(ops[0]), regs(ops[1]) | regs(ops[2]) | regs(ops[3]), regs(ops[0])
        return regs(ops[0]), regs(ops[1]) | regs(ops[2]), regs(ops[3])
    if k == "ds":
        if op.startswith("ds_write"): return set(), set().union(*map(regs, ops)), set()
        return regs(ops[0]), set().union(*map(regs, ops[1:])), set()
    if k == "vmem":
        if "store" in op: return set(), set().union(*map(regs, ops)), set()
        if re.search(r"\blds\b", text): return set(), set().union(*map(regs, ops)) | {("s", "m0")}, set()
        return regs(ops[0]), set().union(*map(regs, ops[1:])), set()
    if op.startswith("s_cmp") or op.startswith("s_bitcmp") or op.startswith("s_cbranch") or op in ("s_branch", "s_nop", "s_endpgm", "s_sleep", "s_setprio"):
        return set(), set().union(set(), *map(regs, ops)), set()
    if "permlane" in op: return regs(ops[0]) | regs(ops[1]), regs(ops[0]) | regs(ops[1]), set()
    w = regs(ops[0]); r = set().union(set(), *map(regs, ops[1:]))
    if op.startswith("v_fmac") or op.startswith("v_writelane") or op.startswith("v_dot2c"): r |= w
    return w, r, set()

def verify(trace):
    errs = []
    pend_vm, pend_lg = [], []
    hist = []
    for ins, x in trace:
        t = ins.render()
        if t is None: continue
        k = classify(t)
        if k in ("label", "meta"): continue
        w, r, c = rw(t)
        touched = w | r | c
        for pend, nm in ((pend_vm, "vm"), (pend_lg, "lg")):
            for d, tt in pend:
                if d & touched and not (k == "ds" and nm == "lg" and not (d & (r | c))):
                    errs.append(f"[{nm} pending] x={x}: '{t}' touches dest of outstanding '{tt}'")
        dist = 0
        for (pk, pt, pw, pr, pc, st) in reversed(hist):
            need = 0
            if pk == "mfma":
                p8 = "32x32" in pt
                if k == "mfma":
                    if pw & r: need = 12 if p8 else 8
                    if pw & c and not (pw == c and (("32x32" in t) == p8)): need = max(need, 10 if p8 else 6)
                else:
                    if pw & touched: need = 12 if p8 else 8
                    if k in ("valu", "trans") and (pc & w): need = max(need, 7 if p8 else 3)
            elif pk in ("valu", "trans"):
                if k == "mfma" and pw & (r | c): need = 2
                if pk == "trans" and k == "valu" and pw & r: need = max(need, 1)
                if "permlane" in t and pw & r: need = max(need, 2)
                if ("readfirstlane" in t or "readlane" in t) and pw & r: need = max(need, 1)
                sw = {q for q in pw if q[0] == "s"}
                if sw & r and k == "vmem": need = max(need, 5)
                if sw & r and k in ("valu", "trans"): need = max(need, 2)
            elif pk == "salu":
                if ("s", "m0") in pw and k == "vmem" and ("s", "m0") in r: need = 1
            elif pk == "vmem" and "store_dwordx4" in pt:
                if k in ("valu", "trans") and (regs(pt.split(None, 1)[1].split(",")[0]) & w): need = 2
            if dist < need: errs.append(f"[hazard {need}] x={x}: '{pt}' -> '{t}' only {dist} states")
            dist += st
            if dist >= 12: break
        if k == "vmem": pend_vm.append((w, t))
        elif k == "ds": pend_lg.append((w, t))
        elif k == "wait":
            m = re.search(r"vmcnt\((\d+)\)", t)
            if m: n = int(m.group(1)); pend_vm = pend_vm[len(pend_vm) - n:] if n < len(pend_vm) else pend_vm
            m = re.search(r"lgkmcnt\((\d+)\)", t)
            if m: n = int(m.group(1)); pend_lg = pend_lg[len(pend_lg) - n:] if n < len(pend_lg) else pend_lg
        st = 1
        if t.startswith("s_nop"): st = int(t.split()[1]) + 1
        hist.append((k, t, w, r, c, st))
        if len(hist) > 16: hist.pop(0)
    return errs

def estimate(seq):
    cyc = 0; pipe_free = 0; vec_free = 0; mf_done = 0; last = None
    for ins in seq:
        t = ins.render()
        if t is None: continue
        k = classify(t)
        if k in ("label", "meta"): continue
        if k == "mfma":
            s = max(cyc, pipe_free, vec_free)
            n = 32 if "32x32" in t else 16
            pipe_free = s + n; mf_done = s + n + 12; vec_free = s + 8; cyc = s + 4
        elif k == "valu":
            s = max(cyc, vec_free)
            if t.startswith("v_pk_") or t.startswith("v_dot2"): s = max(s, mf_done)
            vec_free = cyc = s + 4
        elif k == "trans":
            s = max(cyc, vec_free); vec_free = cyc = s + 8
        elif k in ("ds", "vmem"):
            s = max(cyc, vec_free) + (8 if last in ("valu", "trans") else 0)
            c = 4
            if t.startswith("ds_write_b64"): c = 12
            if t.startswith("ds_write2_b64"): c = 20
            if k == "vmem": c = 40 if "store" in t else 13
            vec_free = cyc = s + c
        elif k == "barrier":
            cyc += 28
        elif t.startswith("s_nop"):
            cyc += 4 * (int(t.split()[1]) + 1)
        else:
            cyc += 4
        last = k
    return cyc

def simulate(seq, tau=300, lat=1100, cap=11, ldslat=128):
    cyc = 0; pipe_free = 0; vec_free = 0; mf_done = 0; last = None
    vm = []; lg = []; lastdone = 0; marks = []; nm = 0
    for ins in seq:
        t = ins.render()
        if t is None: continue
        k = classify(t)
        if k in ("label", "meta"):
            if t.startswith("; MARK") or k == "label": marks.append((t, cyc, nm))
            continue
        if k == "mfma":
            s = max(cyc, pipe_free, vec_free); nm += 1
            n = 32 if "32x32" in t else 16
            pipe_free = s + n; mf_done = s + n + 12; vec_free = s + 8; cyc = s + 4
        elif k == "valu":
            s = max(cyc, vec_free)
            if t.startswith("v_pk_") or t.startswith("v_dot2"): s = max(s, mf_done)
            vec_free = cyc = s + 4
        elif k == "trans":
            s = max(cyc, vec_free); vec_free = cyc = s + 8
        elif k in ("ds", "vmem"):
            s = max(cyc, vec_free) + (8 if last in ("valu", "trans") else 0)
            c = 4
            if t.startswith("ds_write_b64"): c = 12
            if t.startswith("ds_write2_b64"): c = 20
            if k == "vmem":
                c = 40 if "store" in t else 13
                out = [d for d in vm if d > s]
                if len(out) >= cap: s = sorted(out)[len(out) - cap]
                cheap = t.startswith("global_load") or "s[28:31]" in t
                d = max(s + lat, lastdone + (0 if cheap else tau)); lastdone = d; vm.append(d)
            else:
                lg.append(max(s + ldslat, (lg[-1] + (16 if "b128" in t else 8)) if lg else 0))
            vec_free = cyc = s + c
        elif k == "barrier":
            cyc += 28
        elif k == "wait":
            m = re.search(r"vmcnt\((\d+)\)", t)
            if m and len(vm) > int(m.group(1)): cyc = max(cyc, vm[len(vm) - 1 - int(m.group(1))])
            m = re.search(r"lgkmcnt\((\d+)\)", t)
            if m and len(lg) > int(m.group(1)): cyc = max(cyc, lg[len(lg) - 1 - int(m.group(1))])
            cyc += 4
        elif t.startswith("s_nop"):
            cyc += 4 * (int(t.split()[1]) + 1)
        else:
            cyc += 4
        last = k
    return marks, cyc
```

```python
import sys, argparse, struct
from asmlib import *
ap = argparse.ArgumentParser()
ap.add_argument("--lp", default="nt")
ap.add_argument("--sp", default="sc1+nt")
ap.add_argument("--spa", default="sc1+nt")
ap.add_argument("--hmap", type=int, default=1)
ap.add_argument("--stamps", type=int, default=0)
ap.add_argument("--probe", type=int, default=-1)
ap.add_argument("--force_redo", type=int, default=0)
ap.add_argument("--cpf", type=int, default=1)
ap.add_argument("--rot", type=int, default=0)
ap.add_argument("--dmapos", default="0,0,1,1")
ap.add_argument("--est", type=int, default=0)
ap.add_argument("--jit", type=int, default=0)
ap.add_argument("--var", type=int, default=0)
ap.add_argument("--qw", type=int, default=1)
ap.add_argument("--jstep", type=int, default=2)
ap.add_argument("--start", type=int, default=2)
ap.add_argument("--spl", default="")
ap.add_argument("--qkrev", type=int, default=1)
ap.add_argument("--softb", default="")
ap.add_argument("--pre", type=int, default=1)
ap.add_argument("--fin2", type=int, default=1)
ap.add_argument("--dma0", type=int, default=0)
ap.add_argument("--ndef", type=int, default=0)
ap.add_argument("--qdelay", type=int, default=2)
ap.add_argument("--oper", type=int, default=2)
ap.add_argument("--nb", type=int, default=6)
ap.add_argument("--soft", default="")
ap.add_argument("--probec", default="")
ap.add_argument("--abl", default="")
ap.add_argument("--pad", type=int, default=0)
a = ap.parse_args()
pol = lambda s: s.replace("+", " ").replace("-", "")
LP, SP, SPA = pol(a.lp), pol(a.sp), pol(a.spa)

NAME = "standalone__mha_softmax__near_ridge_kernel"
PIECE = 1056
SLOT = 16 * PIECE
NS = 3
RING = NS * SLOT
QP = 1088
REGW = 24 * QP
REG = RING
FLAGS = REG + 4 * REGW
LDS = FLAGS + 64
assert LDS <= 163840
KBYTES = 16 * 32 * 512 * 128 * 2
CSCALE = struct.unpack("<I", struct.pack("<f", 1.4426950408889634 * 128 ** -0.5))[0]

if "cone" in a.abl or "nomul" in a.abl: CSCALE = 0x3f800000
sWV = 3
sQp, sOp = 4, 10
SRD_Q, SRD_KV, SRD_O, SRD_X = 16, 20, 24, 28
sC, sPoff = 32, 33
sR, sW, sD, sT = 35, 36, 37, 38
sWpart, sIt, sCur = 39, 40, 41
sXoff, sXm = 42, 43
sX0, sReg, sKVoffN, sKVoff = 44, 45, 46, 48
sBad = 50
sRot, sBase = 47, 49
sFlag, sPend = 52, 54
sHA, sHB = 56, 57
sT2, sLo, sHi, sCm = 59, 60, 61, 62
SRD_W, sSt = 64, 68
vDMA, vK, vV, vQ, vOw, vOr, vKl, vVl, vX = 1, 2, 3, 4, 5, 6, 7, 8, 9
vT = 10
vM = 16
vStamp = 22
vS = 24
vE = 48
vO = 64
aQ, aK, aV, aL, aONE = 0, 96, 160, 224, 248

SH = 1 if a.start == 3 else 0
X0 = a.start + a.jit
def vi(x): return 3 if x == -1 else (x + SH if x >= 3 else x)
def SL(x): return (vi(x) % NS) * SLOT
def BF(x): return vi(x) % 2
def vr(b, n): return f"v[{b}:{b+n-1}]"
def ar(b, n): return f"a[{b}:{b+n-1}]"
def sreg(b, n): return f"s[{b}:{b+n-1}]"
def Sbuf(n): return vS + 8 * (n % 3)
def Oreg(qt, dt): return vO + 32 * qt + 4 * dt

code = []
trace = []
ctx = [None]
def E(i, tr=True):
    if isinstance(i, str): i = Ins(i)
    code.append(i)
    if tr: trace.append((i, ctx[0]))
    return i
def A(*xs):
    for x in xs: E(x)
def L(s): E(s + ":")
def C(s): E("; " + s)

MF = "v_mfma_f32_16x16x32_bf16"
class U:
    def __init__(s, x, q, n): s.x, s.q, s.n = x, q, n
def qk_mfmas(u):
    r = []
    for kt in range(2):
        d = vr(Sbuf(u.n) + 4 * kt, 4)
        for i, ks in enumerate([3, 2, 1, 0] if (kt == 1 and a.qkrev) else range(4)):
            r.append(f"{MF} {d}, {ar(aK + 32*BF(u.x) + 16*kt + 4*ks, 4)}, {ar(aQ + 16*u.q + 4*ks, 4)}, {'0' if i == 0 else d}")
    return r
def pv_mfmas(u, first=False):
    r = []
    p = vr(Sbuf(u.n), 4)
    for dt in range(8):
        d = vr(Oreg(u.q, dt), 4)
        r.append(f"{MF} {d}, {ar(aV + 32*BF(u.x) + 4*dt, 4)}, {p}, {'0' if first else d}")
    d = ar(aL + 4 * u.q, 4)
    r.append(f"{MF} {d}, {ar(aONE, 4)}, {p}, {'0' if first else d}")
    return r
def nomul(u): return "nomul" in a.abl or (a.pre and u.x < 16)
def sm_f(u, j): return f"v_mul_f32 v{Sbuf(u.n)+j}, s{sC}, v{Sbuf(u.n)+j}"
def sm_e(u, j): return f"v_exp_f32 v{Sbuf(u.n)+j}, v{Sbuf(u.n)+j}"
def sm_c(u, k): return f"v_cvt_pk_bf16_f32 v{Sbuf(u.n)+k}, v{Sbuf(u.n)+2*k}, v{Sbuf(u.n)+2*k+1}"
def k_read(x, n, dyn=False):
    kt, ks = n // 4, n % 4
    base, off = (vK, 0) if dyn else (vKl, SL(x))
    return Ins(f"ds_read_b128 {ar(aK + 32*BF(x) + 16*kt + 4*ks, 4)}, v{base} offset:{off + kt*512 + ks*64}", "K" if dyn else f"K{x}")
def v_read(x, n, dyn=False):
    dt, kt = n // 2, n % 2
    base, off = (vV, 0) if dyn else (vVl, SL(x))
    return Ins(f"ds_read_b64_tr_b16 {ar(aV + 32*BF(x) + 4*dt + 2*kt, 2)}, v{base} offset:{off + kt*512 + dt*32}", "V" if dyn else f"V{x}")
vQt, vPp, sMask = 48, 14, 34
def pre_ops(qt, ks):
    r = []
    for j in range(4):
        r += [f"v_lshlrev_b32 v{vPp+2*j}, 16, v{vQt+4*ks+j}", f"v_and_b32 v{vPp+2*j+1}, s{sMask}, v{vQt+4*ks+j}"]
    r += [f"v_pk_mul_f32 {vr(vPp+2*j,2)}, {vr(vPp+2*j,2)}, {sreg(sC,2)} op_sel_hi:[1,0]" for j in range(4)]
    r += [f"v_cvt_pk_bf16_f32 v{vPp+2*j}, v{vPp+2*j}, v{vPp+2*j+1}" for j in range(4)]
    r += [f"v_accvgpr_write_b32 a{aQ+16*qt+4*ks+j}, v{vPp+2*j}" for j in range(4)]
    return r
def q_read(qt, ks, hd, raw=False):
    if raw: return Ins(f"ds_read_b128 {vr(vQt + 4*ks, 4)}, v{vQ} offset:{qt*4*QP + 64*ks}", f"Q{hd}_{qt}_{ks}")
    return Ins(f"ds_read_b128 {ar(aQ + 16*qt + 4*ks, 4)}, v{vQ} offset:{qt*4*QP + 64*ks}", f"Q{hd}_{qt}")
def dma(srd, soff, off, tag):
    return Ins(f"buffer_load_dwordx4 v{vDMA}, {sreg(srd,4)}, {soff} offen offset:{off} {LP} lds", tag)
def o_store(reg, soff, off, sp):
    return Ins(f"buffer_store_dwordx4 {reg}, v{vDMA}, {sreg(SRD_O,4)}, {soff} offen offset:{off} {sp}", "st")

nst = [0]
def stamp():
    nst[0] += 1
    if a.probe == nst[0] - 1:
        A(f"s_memrealtime s[{sSt+6}:{sSt+7}]", "s_waitcnt lgkmcnt(0)")
    if a.probec:
        pa, pb = map(int, a.probec.split(","))
        if nst[0] - 1 == 0: A(f"s_memrealtime s[{sSt+6}:{sSt+7}]", "s_waitcnt lgkmcnt(0)")
        if nst[0] - 1 == pa: A(f"s_memtime s[{sSt+8}:{sSt+9}]", "s_waitcnt lgkmcnt(0)")
        if nst[0] - 1 == pb: A(f"s_memtime s[{sSt+10}:{sSt+11}]", "s_waitcnt lgkmcnt(0)")
    if not a.stamps: return
    A(f"s_memtime s[{sSt}:{sSt+1}]", f"s_memrealtime s[{sSt+2}:{sSt+3}]", "s_waitcnt lgkmcnt(0)",
      f"s_mov_b32 s{sSt+4}, m0", f"s_mov_b32 m0, s{sSt+5}",
      f"v_writelane_b32 v{vStamp}, s{sSt}, m0", f"v_writelane_b32 v{vStamp+1}, s{sSt+2}, m0",
      f"s_add_u32 s{sSt+5}, s{sSt+5}, 1", f"s_mov_b32 m0, s{sSt+4}")

lst = [0]
def light_stamp():
    k = lst[0]; lst[0] += 1
    A(f"s_getreg_b32 s{sSt+8}, hwreg(HW_REG_SHADER_CYCLES)") if False else None
    stamp()
COST = {"valu": 4, "trans": 8, "ds": 4, "vmem": 12, "salu": 0, "wait": 0, "barrier": 24}
def cost(i):
    if i.text.startswith("ds_write2"): return 20
    if i.text.startswith("buffer_store"): return 40
    return COST[i.kind]
class Phase:
    def __init__(s): s.mf, s.front, s.back, s.steps, s.pre = [], [], [], [], {}
    def step(s, qk=None, sm=None, pv=None, first=False, reads=(), early=False, hole=False):
        g0 = len(s.mf)
        m = (qk_mfmas(qk) if qk else []) + (pv_mfmas(pv, first) if pv else [])
        s.mf += m; s.front += [[] for _ in m]; s.back += [[] for _ in m]
        s.steps.append(g0)
        if not qk: s.before(g0, "s_nop 1")
        reads = list(reads)
        if len(m) == 17 and sm:
            f = lambda j: sm_f(sm, j); c = lambda k: sm_c(sm, k)
            if early:
                pat = {0: [f(0)], 2: [f(1)], 4: [f(2)], 6: [f(3)], 8: [f(4), f(5)], 10: [c(0), f(6)], 12: [c(1), f(7)], 14: [c(2)], 16: [c(3)]}
                rg = [0, 2, 4, 6]
            else:
                pat = {0: [f(0), f(1)], 2: [f(2)], 4: [c(0), f(3)], 6: [f(4)], 8: [c(1), f(5)], 10: [f(6)], 12: [c(2), f(7)], 16: [c(3)]}
                rg = [2, 6, 10, 16 if hole else 14]
            if nomul(sm):
                pat = {6: [c(0)], 10: [c(1)], 12: [c(2)], 16: [c(3)]}; rg = [0, 2, 4, 6]
            for j in range(8): pat[2 * j + 1] = [sm_e(sm, j)]
            for g, v in pat.items(): s.back[g0 + g] += [Ins(t) for t in v]
            for g in rg:
                if reads: s.front[g0 + g].append(reads.pop(0))
        elif sm:
            f = lambda j: sm_f(sm, j); c = lambda k: sm_c(sm, k); e = lambda j: sm_e(sm, j)
            pat = [[f(0), f(1), f(2), f(3)], [e(0), e(1)], [e(2), e(3)], [f(4), f(5), f(6), f(7)], [e(4), e(5)], [e(6), e(7)], [c(0), c(1)], [c(2), c(3)]]
            if nomul(sm): pat = [[e(0)], [e(1)], [e(2), c(0)], [e(3)], [e(4), c(1)], [e(5)], [e(6), c(2)], [e(7), "s_nop 0", c(3)]]
            for g, v in enumerate(pat): s.back[g0 + g] += [Ins(t) for t in v]
        if reads: s.spread(reads, g0, len(s.mf) - 1)
        return g0
    def g(s, step, k=0): return s.steps[step] + k
    def load(s, g):
        sc = [k for k, i in enumerate(s.front[g]) if i.kind in ("salu", "wait")]
        return sum(cost(i) for i in s.front[g] + s.back[g]) + 4 * len([k for k in sc if k > 0])
    def put(s, g, *ins):
        for i in ins:
            if isinstance(i, str): i = Ins(i)
            (s.back if i.kind in ("valu", "trans") else s.front)[g].append(i)
    def shadow(s, g, *ins):
        s.front[g][0:0] = [Ins(i) if isinstance(i, str) else i for i in ins]
    def before(s, g, *ins):
        s.pre.setdefault(g, []).extend(Ins(i) if isinstance(i, str) else i for i in ins)
    def spread(s, ops, g0, g1):
        ops = [Ins(i) if isinstance(i, str) else i for i in ops]
        tot = sum(max(cost(i), 1) for i in ops); cum = 0
        ptr = g0; lastback = -1
        for i in ops:
            tg = min(g1, g0 + int(cum / tot * (g1 - g0 + 1))); cum += max(cost(i), 1)
            if i.kind in ("valu", "trans"):
                cand = [g for g in range(max(ptr, tg - 1), min(g1, tg + 1) + 1) if s.load(g) + COST[i.kind] <= 8]
                g = cand[0] if cand else max(ptr, tg)
                s.back[g].append(i); lastback = g
            else:
                lo = max(ptr, tg, lastback + 1)
                if lo > g1:
                    g = g1; s.back[g].append(i); lastback = g
                else:
                    rng = range(lo, min(g1, lo + 2) + 1)
                    if i.kind in ("salu", "wait"): cand = [g for g in rng if not s.front[g]]
                    else: cand = [g for g in rng if s.load(g) <= 4]
                    g = cand[0] if cand else lo
                    s.front[g].append(i)
            ptr = g
    def emit(s, name=None):
        n0 = len(code)
        for g, m in enumerate(s.mf):
            if a.stamps == 4 and name in ("boundary", "finish") and g in s.steps and g > 0:
                est.append((name + str(s.steps.index(g) - 1), nb if g != s.steps[1] else n0, len(code), 0))
                light_stamp(); nb = len(code)
            for i in s.pre.get(g, []): E(i)
            if "halfsum" in a.abl and name and name.startswith("period") and (m.startswith(f"{MF} a[224:") or m.startswith(f"{MF} a[232:") or m.startswith(f"{MF} a[240:")):
                s.back[g + 1][0:0] = s.back[g]; s.back[g] = []; s.front[g + 1][0:0] = s.front[g]; s.front[g] = []
                continue
            E(m)
            for i in s.front[g] + s.back[g]: E(i)
        if name: est.append((name, n0, len(code), len(s.mf)))
est = []

def sync(kv, lg="all"):
    return [W(vm=kv, lg=lg), Ins("s_barrier")]

def adv():
    if a.rot: return [f"s_add_u32 s{sRot}, s{sRot}, 8192", f"s_and_b32 s{sRot}, s{sRot}, 0x1ffff", f"s_add_u32 s{sPoff}, s{sBase}, s{sRot}"]
    return [f"s_add_u32 s{sPoff}, s{sPoff}, 8192"]
def kv_dma(ph, gs, x, dyn=False):
    for p, g in enumerate(gs):
        if dyn:
            ph.shadow(g - 1, f"s_add_u32 m0, s{sW}, {32*p}")
            ph.put(g, dma(SRD_KV, f"s{sPoff}", 1024 * p, lambda y: f"KV{y+3}"))
        else:
            (ph.put if g - 1 in gs else ph.shadow)(g - 1, f"s_add_u32 m0, s{sWpart}, {SL(x) + 32*p}")
            ph.put(g, dma(SRD_KV, f"s{sPoff}", 1024 * p, f"KV{x}"))
    for k, i in enumerate(adv()): ph.shadow(gs[-1] + 1 + k, i)

def period(x, hd, dyn, ph=None, first=False, last=False):
    if ph is None: ph = Phase()
    s0 = len(ph.steps)
    un = lambda t, q: U(t, q, 6 * t + q)
    rdT = hd == 1 and (a.oper == 2 or (a.oper == 1 and x % 2 == 0))
    stT = hd == 1 and dyn and (a.oper == 2 or (a.oper == 1 and x % 2 == 1))
    for j in range(6):
        qk = un(x, j + 2) if j < 4 else un(x + 1, j - 4)
        sm = un(x, j + 1) if j < 5 else un(x + 1, 0)
        reads = [k_read(x + 1, 4 * j + i, dyn) for i in range(4)] if j < 2 else [v_read(x + 1, 4 * (j - 2) + i, dyn) for i in range(4)]
        ph.step(qk, sm, un(x, j), first, reads, early=(j == 5), hole=(j < (4 if hd == 0 else 3 if stT else 2)))
    G = lambda j, k: ph.g(s0 + j, k)
    if a.pad:
        for j in range(6): ph.back[G(j, 7)].append(Ins(f"s_nop {a.pad-1}"))
    ph.shadow(G(3, 15), W(lg="K" if dyn else f"K{x+1}"))
    if nomul(un(x, 0)): kv_dma(ph, [G(0, 8), G(0, 14), G(1, 8), G(1, 14)], x + 3, dyn)
    elif a.dma0: kv_dma(ph, [G(0, 1), G(0, 5), G(0, 9), G(0, 14)], x + 3, dyn)
    else: kv_dma(ph, [G(0, 5), G(0, 14), G(1, 5), G(1, 14)], x + 3, dyn)
    if dyn:
        ph.shadow(G(4, 1), f"s_add_u32 s{sW}, s{sR}, s{sWpart}")
        ph.shadow(G(4, 2), f"s_add_u32 s{sT}, s{sR}, {SLOT}")
        ph.shadow(G(4, 3), f"s_cmp_eq_u32 s{sT}, {RING}")
        ph.shadow(G(4, 4), f"s_cselect_b32 s{sT}, 0, s{sT}")
        ph.shadow(G(4, 5), f"s_sub_u32 s{sD}, s{sT}, s{sR}")
        ph.shadow(G(4, 6), f"s_mov_b32 s{sR}, s{sT}")
        ph.put(G(4, 14), f"v_add_u32 v{vK}, s{sD}, v{vK}")
        ph.put(G(5, 14), f"v_add_u32 v{vV}, s{sD}, v{vV}")
        if not last:
            ph.shadow(G(5, 1), f"s_add_u32 s{sIt}, s{sIt}, 1")
            if hd == 0:
                ph.shadow(G(5, 2), f"s_cmp_eq_u32 s{sIt}, 6")
                if a.rot:
                    ph.shadow(G(5, 3), f"s_cselect_b32 s{sBase}, s{sKVoffN}, s{sBase}")
                    ph.shadow(G(5, 4), f"s_add_u32 s{sPoff}, s{sBase}, s{sRot}")
                else: ph.shadow(G(5, 3), f"s_cselect_b32 s{sPoff}, s{sKVoffN}, s{sPoff}")
        if hd == 0:
            for p in range(2):
                ph.shadow(G(2 + p, 13), f"s_add_u32 m0, s{sXm}, {(QP-1024)*p}")
                ph.put(G(2 + p, 14), dma(SRD_X, f"s{sXoff}", 1024 * p, lambda y: f"QD1_{(y-2)//2 - a.qdelay}"))
            ph.shadow(G(5, 9), f"s_add_u32 s{sXm}, s{sXm}, {2*QP}")
        else:
            if stT: ph.put(G(2, 14), o_store(vr(vE, 4), f"s{sXoff}", 0, SPA))
        if hd == 0 or stT: ph.shadow(G(5, 11), f"s_add_u32 s{sXoff}, s{sXoff}, {2048 if hd == 0 else 1024}")
        if last and hd == 0 and a.qdelay:
            ph.shadow(G(5, 12), f"s_cmp_eq_u32 s{sIt}, {a.qdelay}")
            ph.shadow(G(5, 13), f"s_cselect_b32 s{SRD_X+2}, 24576, s{SRD_X+2}")
            ph.shadow(G(5, 14), f"s_cselect_b64 {sreg(sXoff,2)}, {sreg(sX0,2)}, {sreg(sXoff,2)}")
        if last: ph.shadow(G(5, 15), f"s_cmp_lt_u32 s{sIt}, 6")
    if rdT:
        ph.put(G(3, 16), Ins(f"ds_read_b128 {vr(vE, 4)}, v{vX}", "T"))
        ph.put(G(4, 16), f"v_add_u32 v{vX}, {QP}, v{vX}")
    ph.shadow(G(5, 16), *sync((lambda y: f"KV{y+2}") if dyn else f"KV{x+2}", "all" if dyn else [f"V{x+1}"]))
    return ph

def period_jit(x, ph):
    s0 = len(ph.steps)
    un = lambda t, q: U(t, q, 6 * t + q)
    for j in range(6):
        ph.step(un(x, j + 2) if j < 4 else un(x + 1, j - 4), un(x, j + 1) if j < 5 else un(x + 1, 0), un(x, j))
    G = lambda j, k: ph.g(s0 + j, k)
    ph.shadow(G(0, 7), W(lg=f"V{x}"))
    js = a.jstep
    ph.shadow(G(js, 0), *sync(f"KV{x+1}", None))
    for n in range(8): ph.put(G(js, [2, 2, 4, 4, 6, 8, 8, 10][n]), k_read(x + 1, n))
    ph.shadow(G(3, 16), W(lg=f"K{x+1}"))
    kv_dma(ph, [G(js, 14), G(js + 1, 8), G(js + 1, 14), G(js + 2, 8)], x + 3)
    ph.spread([v_read(x + 1, n) for n in range(16)], G(js + 1, 0), G(5, 8))
    ph.shadow(G(5, 16), *sync(f"KV{x+2}"))

def main_loop(hd, x0, x1):
    odd = (x1 - x0) % 2 == 0
    if odd: A(f"s_branch L_mid{hd}")
    E(".p2align 3")
    t0 = len(trace)
    L(f"L_loop{hd}")
    halves = []
    for h in range(2):
        if h and odd: L(f"L_mid{hd}")
        b = len(code)
        if a.stamps == 2: stamp()
        sf = a.soft if hd == 0 else a.softb
        if sf:
            it, sl = sf.split(",")
            A(f"s_cmp_lt_u32 s{sIt}, {int(it)+h}", f"s_cbranch_scc0 L_soft{hd}{h}", f"s_sleep {sl}"); L(f"L_soft{hd}{h}")
        period(x1 - 1 + h, hd, True, last=(h == 1)).emit(f"period{hd}{h}")
        if h: A(f"s_cbranch_scc1 L_loop{hd}")
        halves.append(code[b:])
    del trace[t0:]
    for x in range(x0, x1 + 1):
        trace.extend((i, x) for i in halves[(x - x1 - 1) % 2])

def window(srd, ptr, hreg):
    A(f"s_mul_i32 s{sT}, s{hreg}, 98304", f"s_mul_i32 s{sT2}, s{sWV}, 24576", f"s_add_u32 s{sT}, s{sT}, s{sT2}",
      f"s_add_u32 s{srd}, s{ptr}, s{sT}", f"s_addc_u32 s{srd+1}, s{ptr+1}, 0", f"s_mov_b32 s{srd+2}, 24576")
def kv_offset(hreg, kv):
    A(f"s_lshl_b32 s{kv}, s{hreg}, 17", f"s_and_b32 s{sT}, s{sWV}, 1", f"s_lshl_b32 s{sT}, s{sT}, 12", f"s_add_u32 s{kv}, s{kv}, s{sT}")
def kv_issue(x):
    r = []
    for p in range(4):
        r += [f"s_add_u32 m0, s{sWpart}, {SL(x) + 32*p}", "s_nop 0", dma(SRD_KV, f"s{sPoff}", 1024*p, f"KV{x}")]
    return r + adv()
def q_issue(k):
    r = [f"s_mov_b32 s{sT2}, {4096*k}"]
    for p in range(4):
        r += [f"s_add_u32 m0, s{sReg}, {4*k*QP + (QP-1024)*p}", "s_nop 0", dma(SRD_Q, f"s{sT2}", 1024*p, f"QD0_{k}")]
    return r

def norm_a(qt):
    r = [f"v_accvgpr_read_b32 v{vT+1}, a{aL + 4*qt}", f"v_rcp_f32 v{vT}, v{vT+1}", f"v_cmp_nle_f32 vcc, s{sLo}, v{vT+1}"]
    for o in range(Oreg(qt, 0), Oreg(qt, 8), 2):
        r.append(f"v_pk_mul_f32 {vr(o,2)}, {vr(o,2)}, {vr(vT,2)} op_sel_hi:[1,0]")
    return r
def norm_b(qt):
    r = [f"s_or_b64 {sreg(sBad,2)}, {sreg(sBad,2)}, vcc", f"v_cmp_nge_f32 vcc, s{sHi}, v{vT+1}", f"v_add_u32 v{vT+2}, {qt*4*QP}, v{vOw}"]
    for dt in range(0, 8, 2):
        for d in (dt, dt + 1):
            o = Oreg(qt, d)
            r += [f"v_cvt_pk_bf16_f32 v{o}, v{o}, v{o+1}", f"v_cvt_pk_bf16_f32 v{o+1}, v{o+2}, v{o+3}"]
        if dt == 0: r.append(f"s_or_b64 {sreg(sBad,2)}, {sreg(sBad,2)}, vcc")
        r.append(Ins(f"ds_write2_b64 v{vT+2}, {vr(Oreg(qt, dt),2)}, {vr(Oreg(qt, dt+1),2)} offset0:{4*dt} offset1:{4*dt+4}", f"W{qt}"))
    return r
def back_ops(qt):
    return [Ins(f"ds_read_b128 {vr(Oreg(qt, j), 4)}, v{vOr} offset:{qt*4*QP + QP*j}", f"B{qt}_{j}") for j in range(4)]
def store_ops(qt, sp):
    if qt >= 6 - a.ndef: sp = pol(a.spl)
    r = [f"s_mov_b32 s{sT2}, {4096*qt}"]
    for j in range(4): r += [W(lg=f"B{qt}_{j}"), o_store(vr(Oreg(qt, j), 4), f"s{sT2}", 1024*j, sp)]
    return r
def park_ops(c, t):
    r = vr(vE + 4 + 4 * t, 4)
    return [Ins(f"ds_read_b128 {r}, v{vOr} offset:{c*QP}", f"P{c}")], [f"s_mov_b32 s{sT}, {1024*c}", W(lg=f"P{c}"), o_store(r, f"s{sT}", 0, SPA)]
def q_dma(ph, gs, k, srd=SRD_Q, hd=0):
    ph.shadow(gs[0] - 2, f"s_mov_b32 s{sT2}, {4096*k}")
    for p, g in enumerate(gs):
        (ph.put if g - 1 in gs else ph.shadow)(g - 1, f"s_add_u32 m0, s{sReg}, {4*k*QP + (QP-1024)*p}")
        ph.put(g, dma(srd, f"s{sT2}", 1024*p, f"QD{hd}_{k}"))
NPRE = a.nb
NFIN = 24 - a.nb - 6 * a.oper
def park(ph, c, t, gr, gs):
    rd, st = park_ops(c, t)
    ph.put(gr, *rd)
    ph.shadow(gs - 1, st[0]); ph.shadow(gs, st[1]); ph.put(gs, st[2])
def flag_ops(bit):
    return [f"s_cmp_lg_u64 {sreg(sBad,2)}, 0", f"s_cselect_b32 s{sT2}, {0 if a.abl else bit}, 0", f"s_or_b32 s{sFlag}, s{sFlag}, s{sT2}", f"s_mov_b64 {sreg(sBad,2)}, 0"]

def boundary():
    order = [(14, 0), (14, 1), (14, 2), (15, 0), (15, 1), (15, 2), (14, 3), (15, 3), (14, 4), (15, 4), (14, 5), (15, 5), (16, 0), (16, 1)]
    us = [U(t, q, 84 + i) for i, (t, q) in enumerate(order)]
    ph = Phase()
    for j in range(12):
        reads = []
        if j in (1, 2): reads = [v_read(15, 8 * (j - 1) + n) for n in range(8)]
        if j == 0:
            reads = [k_read(15, n) for n in range(8)]
            g0 = ph.step(us[j + 2], us[j + 1], us[j], reads=reads[:4], early=True)
            for n in range(4): ph.put(g0 + 1 + 2 * n, reads[4 + n])
        else:
            ph.step(us[j + 2], us[j + 1], us[j], reads=reads)
    G = ph.g
    ph.shadow(G(0, 16), W(lg="K15"))
    ph.shadow(G(3, 7), W(lg="V15"))
    kv_dma(ph, [G(0, 11), G(0, 15), G(1, 11), G(1, 15)], 17)
    pre = {k: [W(vm=f"QD1_{k}")] + [q_read(k, ks, 1) for ks in range(4)] for k in range(6)}
    ph.spread(pre[0] + pre[1], G(3, 0), G(3, 16))
    ph.spread(pre[2], G(4, 0), G(4, 16)); ph.spread(pre[3], G(6, 0), G(6, 16))
    for k in range(6 - a.qdelay, 6):
        j = 2 + 2 * (k - (6 - a.qdelay))
        q_dma(ph, [G(j, 5), G(j, 13), G(j + 1, 5), G(j + 1, 13)], k, SRD_X, 1)
    ph.spread(pre[4], G(10, 0), G(10, 7))
    ph.shadow(G(8, 7), *sync("KV16", "V15"))
    ph.spread([k_read(16, n) for n in range(8)], G(8, 8), G(9, 8))
    ph.shadow(G(9, 16), W(lg=["K16", "Q1_0", "Q1_1"]))
    kv_dma(ph, [G(9, 9), G(9, 11), G(9, 13), G(9, 15)], 18)
    ph.spread([v_read(16, n) for n in range(16)], G(10, 10), G(11, 8))
    ph.shadow(G(11, 16), *sync("KV17", ["V16", "Q1_4"]))
    period(16, 1, False, ph, first=True)
    ph.spread(pre[5], G(12, 7), G(12, 13))
    ph.shadow(G(14, 15), W(lg="Q1_5"))
    lo, hi = G(6, 3), G(17, 3)
    avail = [G(6, 0), G(8, 0), G(10, 0), G(13, 2), G(15, 0)]
    for c in range(NPRE):
        g = max(lo + (hi - lo) * c // max(NPRE - 1, 1), avail[c // 4])
        while (g - ph.steps[0]) % 17 not in (1, 3, 5, 7): g += 1
        park(ph, c, c % 2, g, g + 8)
    for k, (ga, gb) in enumerate([(G(4, 5), G(5, 16)), (G(6, 1), G(7, 16)), (G(8, 1), G(9, 16)), (G(11, 9), G(13, 0)), (G(13, 1), G(14, 16)), (G(15, 1), G(16, 16))]):
        ph.put(ga, *norm_a(k))
        ph.spread(norm_b(k), ga + 1, gb)
    for k, i in enumerate(flag_ops(1) + [f"s_mov_b32 s{sIt}, 0", f"s_mov_b32 s{sXoff}, {1024*NPRE}", f"s_mov_b32 s{sR}, {SL(18)}", f"s_add_u32 s{sW}, s{sWpart}, {SL(17)}"]):
        ph.shadow(G(17, 1 + k), i)
    ph.put(G(17, 14), f"v_add_u32 v{vK}, {SL(18)}, v{vKl}")
    ph.put(G(16, 14), f"v_add_u32 v{vV}, {SL(18)}, v{vVl}")
    ph.emit("boundary")

def finish():
    order = [(29, q) for q in range(6)] + [(t, q) for q in range(6) for t in (30, 31)]
    if a.fin2: order[7], order[8] = order[8], order[7]
    us = [U(t, q, 174 + i) for i, (t, q) in enumerate(order)] + [None, None]
    ph = Phase()
    vr30 = [v_read(30, n) for n in range(16)]
    rd = {0: [k_read(30, n) for n in range(6)], 1: [k_read(30, n) for n in range(6, 8)] + vr30[:4], 2: vr30[4:10], 5: vr30[12:]}
    if a.fin2: rd = {0: [k_read(30, n) for n in range(5)], 1: [k_read(30, n) for n in range(5, 8)] + vr30[:2], 2: vr30[2:7], 3: vr30[7:12], 4: vr30[12:]}
    for j in range(18):
        ph.step(us[j + 2], us[j + 1], us[j], reads=rd.get(j, []), early=(j == (4 if a.fin2 else 5)))
    G = ph.g
    for k, i in enumerate([f"s_mul_i32 s{sT}, s{sHB}, 98304", f"s_mul_i32 s{sT2}, s{sWV}, 24576", f"s_add_u32 s{sT}, s{sT}, s{sT2}",
                           f"s_add_u32 s{SRD_O}, s{sOp}, s{sT}", f"s_addc_u32 s{SRD_O+1}, s{sOp+1}, 0"]):
        ph.shadow(G(8, 11 + k), i)
    for c in range(NFIN):
        g = G(0, 1) + (G(8, 1) - G(0, 1)) * c // max(NFIN - 1, 1)
        while g % 17 not in (1, 3, 5, 7, 10, 12, 14, 16): g += 1
        park(ph, 24 - NFIN + c, c % 2, g, g + 8)
    if not a.fin2:
        ph.spread(vr30[10:12], G(3, 0), G(3, 6))
        ph.shadow(G(3, 7), *sync("KV31", "K30"))
        ph.spread([k_read(31, n) for n in range(8)], G(3, 8), G(4, 10))
        ph.shadow(G(4, 16), W(lg="K31"))
        ph.spread([v_read(31, n) for n in range(16)], G(5, 10), G(6, 16))
        ph.shadow(G(6, 7), W(lg="V30"))
        ph.shadow(G(7, 7), W(lg="V31"))
    else:
        ph.shadow(G(3, 15), W(lg="K30"))
        ph.shadow(G(4, 12), *sync("KV31", None))
        ph.spread([k_read(31, n) for n in range(8)], G(4, 13), G(5, 10))
        ph.shadow(G(5, 16), W(lg="K31"))
        ph.spread([v_read(31, n) for n in range(16)], G(6, 0), G(7, 16))
        ph.shadow(G(8, 7), W(lg="V31"))
    for k in range(4):
        j = 8 + 2 * k
        if a.fin2 and k == 0:
            ph.put(G(9, 5 if "nomul" in a.abl else 3), *norm_a(0))
            ph.spread(norm_b(0) + back_ops(0), G(9, 6 if "nomul" in a.abl else 4), G(9, 16))
            continue
        ph.put(G(j, 5 if "nomul" in a.abl else 3), *norm_a(k))
        if a.fin2 and k == 1:
            nb = norm_b(1); st = store_ops(0, SP)
            ph.spread(st[:5] + nb[:9] + st[5:7] + nb[9:14] + st[7:] + nb[14:] + back_ops(1), G(j, 6 if "nomul" in a.abl else 4), G(j + 1, 2))
            ph.spread(store_ops(k, SP), G(j + 1, 7), G(j + 1, 16))
            continue
        ph.spread(norm_b(k) + back_ops(k), G(j, 6 if "nomul" in a.abl else 4), G(j, 16))
        ph.spread(store_ops(k, SP), G(j + 1, 4), G(j + 1, 16))
    ph.put(G(16, 2), *norm_a(4))
    ph.spread(norm_b(4) + back_ops(4), G(16, 3), G(17, 4))
    ph.emit("finish")
    n0 = len(code)
    st4 = store_ops(4, SP)
    A(*st4[:5]); A("s_nop 2")
    A(*norm_a(5)); nb = norm_b(5)
    A(*(nb[:9] + st4[5:7] + nb[9:14] + st4[7:] + nb[14:] + back_ops(5) + flag_ops(2) + store_ops(5, SP)))
    est.append(("tail", n0, len(code), 0))

L(NAME)
if a.stamps == 5: A("s_memtime s[80:81]", "s_memrealtime s[82:83]")
A("s_load_dwordx8 s[4:11], s[0:1], 0", "s_cmp_ge_u32 s2, 256", "s_cbranch_scc1 L_exit")
def code_prefetch():
    C("touch ten 128-byte lines of this kernel's code per workgroup so that later instruction fetches hit in L2")
    A("s_getpc_b64 s[12:13]", f"s_lshr_b32 s{sT}, s2, 3", f"s_mulk_i32 s{sT}, 1280",
      f"v_min_u32 v{vT+1}, 9, v{vT+1}", f"v_lshl_add_u32 v{vT+1}, v{vT+1}, 7, s{sT}", f"v_min_u32 v{vT+1}, L_exit-{NAME}-1024, v{vT+1}",
      Ins(f"global_load_dword a255, v{vT+1}, s[12:13]", "code"))
if a.stamps: A(f"s_load_dwordx2 s[{SRD_W}:{SRD_W+1}], s[0:1], 40", f"s_mov_b32 s{sSt+5}, 0")
A(f"v_lshrrev_b32 v{vT}, 6, v0", f"v_lshrrev_b32 v{vT+1}, 4, v0", f"v_readfirstlane_b32 s{sWV}, v{vT}", "v_and_b32 v0, 63, v0", f"v_lshlrev_b32 v{vDMA}, 4, v0")
if a.cpf == 1: code_prefetch()
if a.hmap == 0: A(f"s_lshl_b32 s{sHA}, s2, 1")
else: A(f"s_mov_b32 s{sHA}, s2")
A(f"s_mov_b32 s{SRD_KV+3}, 0x20000", f"s_mov_b32 s{SRD_KV+2}, {KBYTES}", f"s_mul_i32 s{sWpart}, s{sWV}, {4*PIECE}")
kv_offset(sHA, sPoff)
if a.rot: A(f"s_mov_b32 s{sBase}, s{sPoff}", f"s_lshr_b32 s{sRot}, s2, {a.rot // 100}", f"s_mul_i32 s{sRot}, s{sRot}, {(a.rot % 100) * 8192}", f"s_and_b32 s{sRot}, s{sRot}, 0x1ffff", f"s_add_u32 s{sPoff}, s{sBase}, s{sRot}")
A(f"s_mul_i32 s{sT}, s{sHA}, 98304", f"s_mul_i32 s{sT2}, s{sWV}, 24576", f"s_add_u32 s{sT}, s{sT}, s{sT2}", f"s_mov_b32 s{SRD_Q+2}, 24576",
  f"s_mov_b32 s{SRD_Q+3}, 0x20000", f"s_mul_i32 s{sReg}, s{sWV}, {REGW}", f"s_add_u32 s{sReg}, s{sReg}, {REG}", f"s_mov_b32 m0, s{sWpart}")
A(f"s_cmp_lt_u32 s{sWV}, 2", "s_waitcnt lgkmcnt(0)", f"s_cselect_b64 {sreg(SRD_KV,2)}, s[6:7], s[8:9]")
if a.stamps: A(f"s_mov_b32 s{SRD_W+2}, 268435456", f"s_mov_b32 s{SRD_W+3}, 0x20000")
if a.stamps == 5: A("s_memtime s[84:85]", "s_memrealtime s[86:87]")
else: stamp()
if a.stamps: A("s_nop 0")
def fill(seq, filler):
    for i in seq:
        if i == "s_nop 0" and filler: A(filler.pop(0))
        else: A(i)
fl = [f"s_mov_b32 s{SRD_O+3}, 0x20000", f"s_mov_b32 s{SRD_X+3}, 0x20000", f"s_mov_b32 s{sFlag}, {a.force_redo}", f"s_mov_b64 {sreg(sBad,2)}, 0",
      f"s_mov_b32 s{sC}, 0x{CSCALE:08x}", f"s_mov_b32 s{sLo}, 1.0", f"s_mov_b32 s{sHi}, 0x4e800000", f"s_mov_b32 s{sIt}, {(X0 - 1) // 2}",
      f"s_add_u32 s{sHB}, s{sHA}, {256 if a.hmap else 1}", f"s_mov_b32 s{sMask}, 0xffff0000", f"s_mov_b32 s{sX0}, 0"]
fill(kv_issue(0)[2:], fl)
if a.stamps == 5: A("s_memtime s[88:89]", "s_memrealtime s[90:91]")
A(f"s_add_u32 s{SRD_Q}, s{sQp}, s{sT}", f"s_addc_u32 s{SRD_Q+1}, s{sQp+1}, 0")
if a.cpf == 2: code_prefetch()
fill(q_issue(0), fl)
if a.stamps == 5: A("s_memtime s[92:93]", "s_memrealtime s[94:95]")
if a.cpf == 3: code_prefetch()
k1 = kv_issue(1)
fill(k1[:6], fl)
C("---- per-lane LDS addresses (i = lane%16, g = lane/16)")
A(f"v_and_b32 v{vT}, 15, v0", f"v_lshrrev_b32 v{vT+1}, 4, v0")
A(f"v_and_b32 v{vT+2}, 7, v{vT}", f"v_mul_u32_u24 v{vKl}, {PIECE}, v{vT+2}", f"v_lshrrev_b32 v{vT+2}, 3, v{vT}",
  f"v_lshl_add_u32 v{vKl}, v{vT+2}, 8, v{vKl}", f"v_lshl_add_u32 v{vKl}, v{vT+1}, 4, v{vKl}")
A(f"v_bfe_u32 v{vT+2}, v0, 2, 3", f"v_mul_u32_u24 v{vVl}, {PIECE}, v{vT+2}", f"v_lshrrev_b32 v{vT+2}, 5, v0",
  f"v_lshl_add_u32 v{vVl}, v{vT+2}, 8, v{vVl}", f"v_and_b32 v{vT+2}, 3, v0", f"v_lshl_add_u32 v{vVl}, v{vT+2}, 3, v{vVl}",
  f"v_add_u32 v{vVl}, {8*PIECE}, v{vVl}")
A(f"v_cmp_eq_u32 vcc, 0, v{vT+2}", f"v_mov_b32 v{vT+4}, 0x3f803f80")
A(f"v_mul_u32_u24 v{vQ}, {QP}, v{vT+2}", f"v_cndmask_b32 v{vT+4}, 0, v{vT+4}, vcc", f"v_lshrrev_b32 v{vT+3}, 2, v{vT}",
  f"v_lshl_add_u32 v{vQ}, v{vT+3}, 8, v{vQ}", f"v_lshl_add_u32 v{vQ}, v{vT+1}, 4, v{vQ}", f"v_add_u32 v{vQ}, s{sReg}, v{vQ}")
A(f"v_lshl_add_u32 v{vT+2}, v{vT+2}, 2, v{vT+3}", f"v_mul_u32_u24 v{vOw}, 272, v{vT+2}", f"v_lshl_add_u32 v{vOw}, v{vT+1}, 3, v{vOw}",
  f"v_add_u32 v{vOw}, s{sReg}, v{vOw}", f"v_mul_u32_u24 v{vOr}, 272, v{vT+1}", f"v_lshl_add_u32 v{vOr}, v{vT}, 4, v{vOr}",
  f"v_add_u32 v{vOr}, s{sReg}, v{vOr}", f"v_add_u32 v{vX}, {NPRE*QP}, v{vOr}")
for j in range(4): A(f"v_accvgpr_write_b32 a{aONE+j}, v{vT+4}")
A(f"v_add_u32 v{vK}, {SL(X0+1)}, v{vKl}", f"v_add_u32 v{vV}, {SL(X0+1)}, v{vVl}")
window(SRD_O, sOp, sHA)
if "nost" in a.abl: A(f"s_mov_b32 s{SRD_O+2}, 0")
window(SRD_X, sQp, sHB)
kv_offset(sHB, sKVoffN)
if a.qdelay: A(f"s_mov_b32 s{SRD_X+2}, 0")
A(f"s_mov_b32 s{sXoff}, 0", f"s_mov_b32 s{sXm}, s{sReg}", f"s_mov_b32 s{sR}, {SL(X0+1)}", f"s_add_u32 s{sW}, s{sWpart}, {SL(X0)}")
fill(k1[6:], fl)
assert not fl
C("---- start-up: tiles 0 and 1 are processed q-major while Q arrives")
if a.stamps == 5:
    A("s_waitcnt lgkmcnt(0)")
    for k in range(4): A(f"v_writelane_b32 v{vStamp}, s{80+4*k}, {k}", f"v_writelane_b32 v{vStamp+1}, s{82+4*k}, {k}")
    A(f"s_mov_b32 s{sSt+5}, 4")
def st3():
    if a.stamps in (3, 5): stamp()
st3()
A(*sync("KV0", None)); st3()
A(*[k_read(0, n) for n in range(8)]); A(*q_issue(1))
A(W(vm="QD0_0")); st3(); A(*[q_read(0, ks, 0, a.pre) for ks in range(4)]); A(*q_issue(2)); A(W(lg="all"))
if a.pre:
    for ks in range(4): A(*pre_ops(0, ks))
    A("s_nop 1")
assert a.pre
if a.start == 2:
    order = [(t, q) for q in range(6) for t in range(2)] + [(2, 0), (2, 1)]
    qstep = {2: 3, 3: 5, 4: 7, 5: 9}
else:
    order = [(t, q) for q in range(4) for t in range(2)] + [(2, 0), (2, 1), (2, 2), (2, 3), (1, 4), (2, 4), (1, 5), (2, 5), (-1, 4), (-1, 5), (3, 0), (3, 1)]
    qstep = {2: 3, 3: 5, 4: 11, 5: 13}
    if a.var == 1:
        order = [(t, q) for q in range(5) for t in range(2)] + [(2, 0), (2, 1), (2, 2), (2, 3), (1, 5), (2, 4), (2, 5), (-1, 5), (3, 0), (3, 1)]
        qstep = {2: 3, 3: 5, 4: 7, 5: 13}
us = [U(t, q, n) for n, (t, q) in enumerate(order)]
ph = Phase()
ph.step(us[0], reads=[v_read(0, n) for n in range(16)])
ph.emit()
A(*sync("KV1")); st3()
A(*[k_read(1, n) for n in range(8)]); A(*q_issue(3)); A(W(lg="all"))
ph = Phase()
seen = set()
for n in range(1, len(us)):
    pv = us[n - 2] if n >= 2 else None
    ph.step(us[n], us[n - 1], pv, first=(pv is not None and pv.q not in seen))
    if pv: seen.add(pv.q)
G = lambda n, k: ph.g(n - 1, k)
ph.put(G(1, 0), W(vm="QD0_1"), *[q_read(1, ks, 0, True) for ks in range(4)])
for ks in range(4):
    g = G(1, [5, 6, 6, 7][ks])
    if ks != 2: ph.shadow(g, W(lg=f"Q0_1_{ks + (ks == 1)}"))
    ph.put(g, *pre_ops(1, ks))
ph.spread([v_read(1, n) for n in range(16)], G(2, 0), G(2, 16))
ph.shadow(G(3, 7), W(lg="V1"))
for q in range(2, 6):
    n = qstep[q]
    if a.qw == 1:
        ph.shadow(G(n, 1), W(vm=f"QD0_{q}"))
        for ks in range(4):
            ph.put(G(n, [2, 2, 4, 4][ks]), q_read(q, ks, 0, True))
            ph.shadow(G(n, 10 + ks), W(lg=f"Q0_{q}_{ks}"))
            ph.put(G(n, 10 + ks), *pre_ops(q, ks))
    else:
        ph.put(G(n, 8), W(vm=f"QD0_{q}"), *[q_read(q, ks, 0, True) for ks in range(4)])
        for ks in range(4):
            g = G(n, [14, 15, 16, 16][ks])
            if ks != 3: ph.shadow(g, W(lg=f"Q0_{q}_{ks + (ks == 2)}"))
            ph.put(g, *pre_ops(q, ks))
gs = lambda n: [G(n, 3), G(n, 5), G(n, 7), G(n, 9)] if a.qw == 1 else [G(n, 10), G(n, 11), G(n, 12), G(n, 13)]
def kjit(n, x):
    ph.shadow(G(n, 0), *sync(f"KV{x}", None))
    for k in range(8): ph.put(G(n, [2, 2, 4, 4, 6, 8, 8, 10][k]), k_read(x, k))
    ph.shadow(G(n, 16), W(lg=f"K{x}"))
if a.start == 2:
    q_dma(ph, [G(1, 2), G(1, 3), G(1, 4), G(1, 5)], 4)
    q_dma(ph, gs(3), 5); kv_dma(ph, gs(5), 2); kv_dma(ph, gs(7), 3); kv_dma(ph, gs(9), 4)
    ph.shadow(G(6, 8), "s_barrier")
    kjit(11, 2)
    if a.jit:
        ph.spread([v_read(2, n) for n in range(16)], G(12, 10), G(13, 16))
        period_jit(2, ph)
    else:
        ph.spread([v_read(2, n) for n in range(16)], G(12, 10), G(13, 8))
        ph.shadow(G(13, 16), *sync("KV3"))
elif a.var == 1:
    q_dma(ph, [G(1, 2), G(1, 3), G(1, 4), G(1, 5)], 4)
    kv_dma(ph, gs(3), 2); q_dma(ph, gs(5), 5)
    ph.shadow(G(6, 8), "s_barrier")
    kv_dma(ph, gs(7), 3)
    kjit(9, 2)
    ph.spread([v_read(2, n) for n in range(16)], G(10, 10), G(11, 8))
    ph.shadow(G(11, 16), W(lg="V2"), "s_barrier")
    kv_dma(ph, [G(12, 2), G(12, 4), G(12, 8), G(12, 14)], 4)
    ph.spread([k_read(-1, n) for n in range(8)], G(14, 8), G(15, 16))
    ph.shadow(G(16, 8), W(lg="K-1"))
    kjit(17, 3)
    vs = [v_read(-1, n) for n in range(16)]
    ph.spread(vs[:8], G(16, 12), G(16, 16)); ph.spread(vs[8:], G(17, 11), G(18, 0))
    ph.shadow(G(18, 8), W(lg="V-1"), "s_barrier")
    kv_dma(ph, [G(18, 10), G(18, 14), G(19, 2), G(19, 8)], 5)
    assert a.jit
    ph.spread([v_read(3, n) for n in range(16)], G(18, 11), G(19, 16))
    period_jit(3, ph)
else:
    kv_dma(ph, [G(1, 2), G(1, 3), G(1, 4), G(1, 5)], 2)
    q_dma(ph, gs(3), 4); q_dma(ph, gs(5), 5)
    kjit(7, 2)
    kv_dma(ph, [G(7, 12), G(7, 14), G(8, 2), G(8, 4)], 3)
    ph.spread([v_read(2, n) for n in range(16)], G(8, 10), G(9, 16))
    ph.shadow(G(10, 7), W(lg="V2"))
    ph.shadow(G(10, 14), "s_barrier")
    kv_dma(ph, gs(11), 4)
    ph.spread([k_read(-1, n) for n in range(8)], G(14, 8), G(15, 8))
    ph.shadow(G(15, 16), W(lg="K-1"))
    kjit(17, 3)
    vs = [v_read(-1, n) for n in range(16)]
    ph.spread(vs[:8], G(16, 12), G(16, 16)); ph.spread(vs[8:], G(17, 11), G(18, 0))
    ph.shadow(G(18, 7), W(lg="V-1"))
    ph.shadow(G(18, 8), "s_barrier")
    kv_dma(ph, [G(18, 10), G(18, 14), G(19, 2), G(19, 8)], 5)
    if a.jit:
        ph.spread([v_read(3, n) for n in range(16)], G(18, 9), G(19, 16))
        period_jit(3, ph)
    else:
        ph.spread([v_read(3, n) for n in range(16)], G(18, 9), G(19, 10))
        ph.shadow(G(19, 16), *sync("KV4"))
ph.emit("start")
stamp()
main_loop(0, X0, 13)
stamp()
boundary()
stamp()
main_loop(1, 17, 28)
stamp()
finish()
stamp()
C("---- combine the per-wave 'row sum left the safe range' flags of the workgroup")
A(f"s_lshl_b32 s{sT}, s{sWV}, 2", f"s_add_u32 s{sT}, s{sT}, {FLAGS}", f"v_mov_b32 v{vT}, s{sT}", f"v_mov_b32 v{vT+1}, s{sFlag}",
  f"ds_write_b32 v{vT}, v{vT+1}", f"v_mov_b32 v{vT}, {FLAGS}", "s_waitcnt lgkmcnt(0)", "s_barrier",
  f"ds_read_b128 {vr(vT+2,4)}, v{vT}", "s_waitcnt lgkmcnt(0)",
  f"v_or_b32 v{vT+2}, v{vT+2}, v{vT+3}", f"v_or3_b32 v{vT+2}, v{vT+2}, v{vT+4}, v{vT+5}", "s_nop 0",
  f"v_readfirstlane_b32 s{sPend}, v{vT+2}", "s_nop 3")
L("L_pend")
A(f"s_cmp_eq_u32 s{sPend}, 0", "s_cbranch_scc1 L_done")
C("==== rare path: redo a head, subtracting the true row maximum (plain, unpipelined code)")
A(f"s_bitcmp1_b32 s{sPend}, 0", f"s_cselect_b32 s{sCur}, s{sHA}, s{sHB}", f"s_cselect_b32 s{sT}, 2, 0", f"s_and_b32 s{sPend}, s{sPend}, s{sT}",
  "s_waitcnt vmcnt(0) lgkmcnt(0)", "s_barrier", f"s_mov_b32 s{SRD_KV+2}, {KBYTES}")
window(SRD_Q, sQp, sCur); window(SRD_O, sOp, sCur)
for k in range(6): A(*q_issue(k))
for j in range(6): A(f"v_mov_b32 v{vM+j}, 0xff800000")
A("s_waitcnt vmcnt(0)")
for k in range(6):
    A(*[q_read(k, ks, 0) for ks in range(4)]); A("s_waitcnt lgkmcnt(0)")
kv_offset(sCur, sPoff)
if a.rot: A(f"s_mov_b32 s{sBase}, s{sPoff}", f"s_mov_b32 s{sRot}, 0")
A(f"s_mov_b32 s{sIt}, 0")
L("L_maxloop")
A(*kv_issue(0)); A("s_waitcnt vmcnt(0)", "s_barrier")
A(*[k_read(0, n) for n in range(8)]); A("s_waitcnt lgkmcnt(0)", "s_barrier")
for qt in range(6):
    A(*qk_mfmas(U(0, qt, 0))); A("s_nop 7")
    for j in range(4): A(f"v_max3_f32 v{vM+qt}, v{vM+qt}, v{vS+2*j}, v{vS+2*j+1}")
A(f"s_add_u32 s{sIt}, s{sIt}, 1", f"s_cmp_lt_u32 s{sIt}, 16", "s_cbranch_scc1 L_maxloop")
for qt in range(6):
    m = vM + qt
    A(f"v_mov_b32 v{vT}, v{m}", "s_nop 1", f"v_permlane32_swap_b32 v{vT}, v{m}", "s_nop 1", f"v_max_f32 v{m}, v{m}, v{vT}",
      f"v_mov_b32 v{vT}, v{m}", "s_nop 1", f"v_permlane16_swap_b32 v{vT}, v{m}", "s_nop 1", f"v_max_f32 v{m}, v{m}, v{vT}",
      f"v_mul_f32 v{m}, s{sC}, v{m}", f"v_sub_f32 v{m}, 0, v{m}")
for r in range(vO, 256, 2): A(f"v_mov_b64 {vr(r,2)}, 0")
for r in range(24): A(f"v_accvgpr_write_b32 a{aL+r}, 0")
kv_offset(sCur, sPoff)
if a.rot: A(f"s_mov_b32 s{sBase}, s{sPoff}", f"s_mov_b32 s{sRot}, 0")
A(f"s_mov_b32 s{sIt}, 0")
L("L_slowloop")
A(*kv_issue(0)); A("s_waitcnt vmcnt(0)", "s_barrier")
A(*[k_read(0, n) for n in range(8)]); A("s_waitcnt lgkmcnt(0)")
A(*[v_read(0, n) for n in range(16)]); A("s_waitcnt lgkmcnt(0)", "s_barrier")
for qt in range(6):
    u = U(0, qt, 0)
    A(*qk_mfmas(u)); A("s_nop 7")
    for j in range(8): A(f"v_fma_f32 v{vS+j}, v{vS+j}, s{sC}, v{vM+qt}")
    for j in range(8): A(sm_e(u, j))
    A("s_nop 0")
    for k in range(4): A(sm_c(u, k))
    A("s_nop 1"); A(*pv_mfmas(u))
A(f"s_add_u32 s{sIt}, s{sIt}, 1", f"s_cmp_lt_u32 s{sIt}, 16", "s_cbranch_scc1 L_slowloop")
A("s_nop 7")
for qt in range(6): A(*(norm_a(qt) + norm_b(qt) + back_ops(qt) + store_ops(qt, SP)))
A("s_branch L_pend")
L("L_done")
if a.probe >= 0 or a.probec:
    A("s_waitcnt vmcnt(0)"); stamp()
    if a.probec: A(f"s_sub_u32 s{sSt+8}, s{sSt+10}, s{sSt+8}", f"s_lshr_b32 s{sSt+8}, s{sSt+8}, 3", f"s_add_u32 s{sSt+6}, s{sSt+6}, s{sSt+8}")
    L("L_spin")
    A(f"s_memrealtime s[{sSt}:{sSt+1}]", "s_waitcnt lgkmcnt(0)", f"s_sub_u32 s{sSt}, s{sSt}, s{sSt+6}", f"s_cmp_lt_i32 s{sSt}, 10000", "s_cbranch_scc1 L_spin")
if a.stamps:
    A("s_waitcnt vmcnt(0)"); stamp()
    A(f"v_lshlrev_b32 v{vT}, 3, v0", f"s_lshl_b32 s{sT}, s2, 2", f"s_add_u32 s{sT}, s{sT}, s{sWV}", f"s_lshl_b32 s{sT}, s{sT}, 9",
      f"buffer_store_dwordx2 {vr(vStamp,2)}, v{vT}, {sreg(SRD_W,4)}, s{sT} offen")
L("L_exit")
A("s_endpgm")

resolve(trace)
errs = verify(trace)
for e in errs[:40]: print("VERIFY:", e, file=sys.stderr)
if a.est:
    for (name, n0, n1, nm) in est: print(f"est {name}: {estimate(code[n0:n1])} cycles, {nm} mfma", file=sys.stderr)
if a.est:
    for tau in (260, 300, 340):
        seq = [i for i, x in trace]
        res = []
        for nmf in (6 * 102, ):
            cnt = 0; cut = 0
            for k, i in enumerate(seq):
                if i.kind == "mfma":
                    cnt += 1
                    if cnt == nmf: cut = k; break
            res.append(simulate(seq[:cut], tau=tau)[1])
        print(f"sim tau={tau}: 6 tiles of work done at {res} -> virtual start {res[0] - 6*1705}", file=sys.stderr)
hdr = open("standalone__mha_softmax__near_ridge.s.ref").read().split("; Override launch")[0]
o = [hdr.rstrip(), f"; @launch grid=(256,1,1) block=(256,1,1) lds={LDS}", '.amdgcn_target "amdgcn-amd-amdhsa--gfx950"',
     ".text", f".globl {NAME}", ".p2align 8", f".type {NAME},@function"]
for i in code:
    t = i.render()
    if t is None: continue
    o.append(t if i.kind == "label" or t.startswith(".") else "    " + t.rstrip())
o += ['.section .rodata,"a"', ".p2align 6", f".amdhsa_kernel {NAME}", """  .amdhsa_next_free_vgpr 512
  .amdhsa_next_free_sgpr 102
  .amdhsa_accum_offset 256
  .amdhsa_group_segment_fixed_size 0
  .amdhsa_kernarg_size 48
  .amdhsa_user_sgpr_count 2
  .amdhsa_user_sgpr_kernarg_segment_ptr 1
  .amdhsa_system_sgpr_workgroup_id_x 1
  .amdhsa_float_denorm_mode_32 3""", ".end_amdhsa_kernel"]
print("\n".join(o))
sys.exit(1 if errs else 0)
```

```python
import re

class Ins:
    __slots__ = ("text", "kind", "tag", "need_vm", "need_lg", "vm", "lg", "force")
    def __init__(self, text, tag=None):
        self.text = text
        self.tag = tag
        self.need_vm = None
        self.need_lg = None
        self.vm = None
        self.lg = None
        self.force = False
        self.kind = classify(text)
    def render(self):
        if self.kind == "wait" and (self.need_vm is not None or self.need_lg is not None):
            p = []
            if self.need_vm is not None and self.vm is not None: p.append(f"vmcnt({min(self.vm, 63)})")
            if self.need_lg is not None and self.lg is not None: p.append(f"lgkmcnt({min(self.lg, 15)})")
            if not p: return None
            return "s_waitcnt " + " ".join(p)
        return self.text

def classify(t):
    op = t.split()[0] if t.split() else ""
    if t.endswith(":"): return "label"
    if op.startswith(";") or op.startswith("."): return "meta"
    if "mfma" in op: return "mfma"
    if op in ("v_exp_f32", "v_rcp_f32", "v_log_f32"): return "trans"
    if op.startswith("v_"): return "valu"
    if op.startswith("ds_"): return "ds"
    if op.startswith("buffer_") or op.startswith("global_"): return "vmem"
    if op == "s_waitcnt": return "wait"
    if op == "s_barrier": return "barrier"
    if op.startswith("s_load") or op.startswith("s_mem"): return "smem"
    if op.startswith("s_"): return "salu"
    raise Exception("classify: " + t)

def W(vm=None, lg=None):
    i = Ins("s_waitcnt")
    i.need_vm, i.need_lg = vm, lg
    return i

def _ev(v, x): return v(x) if callable(v) else v

def resolve(trace):
    vm, lg = [], []
    for ins, x in trace:
        if ins.kind == "vmem": vm.append(_ev(ins.tag, x))
        elif ins.kind == "ds": lg.append(_ev(ins.tag, x))
        elif ins.kind == "wait":
            for need, hist, attr in ((ins.need_vm, vm, "vm"), (ins.need_lg, lg, "lg")):
                if need is None: continue
                need = _ev(need, x)
                if need == "all": n = 0
                else:
                    if isinstance(need, str): need = [need]
                    idx = [k for k, t in enumerate(hist) if t in need]
                    missing = [t for t in need if t not in hist]
                    assert not missing, f"wait for tags never issued: {missing} (x={x})"
                    if not idx: continue
                    n = len(hist) - 1 - max(idx)
                cur = getattr(ins, attr)
                setattr(ins, attr, n if cur is None else min(cur, n))

_R = re.compile(r"\b([vas])(?:\[(\d+):(\d+)\]|(\d+))")
def regs(op):
    r = set()
    for m in _R.finditer(op):
        if m.group(2) is not None: r.update((m.group(1), k) for k in range(int(m.group(2)), int(m.group(3)) + 1))
        else: r.add((m.group(1), int(m.group(4))))
    if re.search(r"\bvcc\b", op): r.add(("s", "vcc"))
    if re.search(r"\bm0\b", op): r.add(("s", "m0"))
    return r

def rw(text):
    parts = text.split(None, 1)
    op = parts[0]
    ops = [o.strip() for o in parts[1].split(",")] if len(parts) > 1 else []
    k = classify(text)
    if k in ("label", "meta", "wait", "barrier"): return set(), set(), set()
    if k == "mfma":
        if "smfmac" in op: return regs(ops[0]), regs(ops[1]) | regs(ops[2]) | regs(ops[3]), regs(ops[0])
        return regs(ops[0]), regs(ops[1]) | regs(ops[2]), regs(ops[3])
    if k == "ds":
        if op.startswith("ds_write"): return set(), set().union(*map(regs, ops)), set()
        return regs(ops[0]), set().union(*map(regs, ops[1:])), set()
    if k == "vmem":
        if "store" in op: return set(), set().union(*map(regs, ops)), set()
        if re.search(r"\blds\b", text): return set(), set().union(*map(regs, ops)) | {("s", "m0")}, set()
        return regs(ops[0]), set().union(*map(regs, ops[1:])), set()
    if op.startswith("s_cmp") or op.startswith("s_bitcmp") or op.startswith("s_cbranch") or op in ("s_branch", "s_nop", "s_endpgm", "s_sleep", "s_setprio"):
        return set(), set().union(set(), *map(regs, ops)), set()
    if "permlane" in op: return regs(ops[0]) | regs(ops[1]), regs(ops[0]) | regs(ops[1]), set()
    w = regs(ops[0]); r = set().union(set(), *map(regs, ops[1:]))
    if op.startswith("v_fmac") or op.startswith("v_writelane") or op.startswith("v_dot2c"): r |= w
    return w, r, set()

def verify(trace):
    errs = []
    pend_vm, pend_lg = [], []
    hist = []
    for ins, x in trace:
        t = ins.render()
        if t is None: continue
        k = classify(t)
        if k in ("label", "meta"): continue
        w, r, c = rw(t)
        touched = w | r | c
        for pend, nm in ((pend_vm, "vm"), (pend_lg, "lg")):
            for d, tt in pend:
                if d & touched and not (k == "ds" and nm == "lg" and not (d & (r | c))):
                    errs.append(f"[{nm} pending] x={x}: '{t}' touches dest of outstanding '{tt}'")
        dist = 0
        for (pk, pt, pw, pr, pc, st) in reversed(hist):
            need = 0
            if pk == "mfma":
                p8 = "32x32" in pt
                if k == "mfma":
                    if pw & r: need = 12 if p8 else 8
                    if pw & c and not (pw == c and (("32x32" in t) == p8)): need = max(need, 10 if p8 else 6)
                else:
                    if pw & touched: need = 12 if p8 else 8
                    if k in ("valu", "trans") and (pc & w): need = max(need, 7 if p8 else 3)
            elif pk in ("valu", "trans"):
                if k == "mfma" and pw & (r | c): need = 2
                if pk == "trans" and k == "valu" and pw & r: need = max(need, 1)
                if "permlane" in t and pw & r: need = max(need, 2)
                if ("readfirstlane" in t or "readlane" in t) and pw & r: need = max(need, 1)
                sw = {q for q in pw if q[0] == "s"}
                if sw & r and k == "vmem": need = max(need, 5)
                if sw & r and k in ("valu", "trans"): need = max(need, 2)
            elif pk == "salu":
                if ("s", "m0") in pw and k == "vmem" and ("s", "m0") in r: need = 1
            elif pk == "vmem" and "store_dwordx4" in pt:
                if k in ("valu", "trans") and (regs(pt.split(None, 1)[1].split(",")[0]) & w): need = 2
            if dist < need: errs.append(f"[hazard {need}] x={x}: '{pt}' -> '{t}' only {dist} states")
            dist += st
            if dist >= 12: break
        if k == "vmem": pend_vm.append((w, t))
        elif k == "ds": pend_lg.append((w, t))
        elif k == "wait":
            m = re.search(r"vmcnt\((\d+)\)", t)
            if m: n = int(m.group(1)); pend_vm = pend_vm[len(pend_vm) - n:] if n < len(pend_vm) else pend_vm
            m = re.search(r"lgkmcnt\((\d+)\)", t)
            if m: n = int(m.group(1)); pend_lg = pend_lg[len(pend_lg) - n:] if n < len(pend_lg) else pend_lg
        st = 1
        if t.startswith("s_nop"): st = int(t.split()[1]) + 1
        hist.append((k, t, w, r, c, st))
        if len(hist) > 16: hist.pop(0)
    return errs

def estimate(seq):
    cyc = 0; pipe_free = 0; vec_free = 0; mf_done = 0; last = None; sm_free = 0
    for ins in seq:
        t = ins.render()
        if t is None: continue
        k = classify(t)
        if k in ("label", "meta"): continue
        if k == "mfma":
            s = max(cyc, pipe_free, vec_free)
            n = 32 if "32x32" in t else 16
            pipe_free = s + n; mf_done = s + n + 12; vec_free = s + 8; cyc = s + 4
            sm_free = s + 12 if "smfmac" in t else 0
        elif k == "valu":
            s = max(cyc, vec_free, sm_free)
            if t.startswith("v_pk_") or t.startswith("v_dot2"): s = max(s, mf_done)
            vec_free = cyc = s + 4
        elif k == "trans":
            s = max(cyc, vec_free, sm_free); vec_free = cyc = s + 8
        elif k in ("ds", "vmem"):
            s = max(cyc, vec_free) + (8 if last in ("valu", "trans") else 0)
            c = 4
            if t.startswith("ds_write_b64"): c = 12
            if t.startswith("ds_write2_b64"): c = 20
            if k == "vmem": c = 40 if "store" in t else 13
            vec_free = cyc = s + c
        elif k == "barrier":
            cyc += 28
        elif t.startswith("s_nop"):
            cyc += 4 * (int(t.split()[1]) + 1)
        else:
            cyc += 4
        last = k
    return cyc

def simulate(seq, tau=300, lat=1100, cap=11, ldslat=128):
    cyc = 0; pipe_free = 0; vec_free = 0; mf_done = 0; last = None; sm_free = 0
    vm = []; lg = []; lastdone = 0; marks = []; nm = 0
    for ins in seq:
        t = ins.render()
        if t is None: continue
        k = classify(t)
        if k in ("label", "meta"):
            if t.startswith("; MARK") or k == "label": marks.append((t, cyc, nm))
            continue
        if k == "mfma":
            s = max(cyc, pipe_free, vec_free); nm += 1
            n = 32 if "32x32" in t else 16
            pipe_free = s + n; mf_done = s + n + 12; vec_free = s + 8; cyc = s + 4
            sm_free = s + 12 if "smfmac" in t else 0
        elif k == "valu":
            s = max(cyc, vec_free, sm_free)
            if t.startswith("v_pk_") or t.startswith("v_dot2"): s = max(s, mf_done)
            vec_free = cyc = s + 4
        elif k == "trans":
            s = max(cyc, vec_free, sm_free); vec_free = cyc = s + 8
        elif k in ("ds", "vmem"):
            s = max(cyc, vec_free) + (8 if last in ("valu", "trans") else 0)
            c = 4
            if t.startswith("ds_write_b64"): c = 12
            if t.startswith("ds_write2_b64"): c = 20
            if k == "vmem":
                c = 40 if "store" in t else 13
                out = [d for d in vm if d > s]
                if len(out) >= cap: s = sorted(out)[len(out) - cap]
                cheap = t.startswith("global_load") or "s[28:31]" in t
                d = max(s + lat, lastdone + (0 if cheap else tau)); lastdone = d; vm.append(d)
            else:
                lg.append(max(s + ldslat, (lg[-1] + (16 if "b128" in t else 8)) if lg else 0))
            vec_free = cyc = s + c
        elif k == "barrier":
            cyc += 28
        elif k == "wait":
            m = re.search(r"vmcnt\((\d+)\)", t)
            if m and len(vm) > int(m.group(1)): cyc = max(cyc, vm[len(vm) - 1 - int(m.group(1))])
            m = re.search(r"lgkmcnt\((\d+)\)", t)
            if m and len(lg) > int(m.group(1)): cyc = max(cyc, lg[len(lg) - 1 - int(m.group(1))])
            cyc += 4
        elif t.startswith("s_nop"):
            cyc += 4 * (int(t.split()[1]) + 1)
        else:
            cyc += 4
        last = k
    return marks, cyc
```

```python
import sys, argparse, struct
from asmlib import *
ap = argparse.ArgumentParser()
ap.add_argument("--lp", default="nt")
ap.add_argument("--sp", default="sc1+nt")
ap.add_argument("--spa", default="sc1+nt")
ap.add_argument("--hmap", type=int, default=1)
ap.add_argument("--stamps", type=int, default=0)
ap.add_argument("--probe", type=int, default=-1)
ap.add_argument("--force_redo", type=int, default=0)
ap.add_argument("--cpf", type=int, default=1)
ap.add_argument("--rot", type=int, default=0)
ap.add_argument("--dmapos", default="0,0,1,1")
ap.add_argument("--est", type=int, default=0)
ap.add_argument("--stpos", default="2,11")
ap.add_argument("--dpos", default="0,5,0,14,1,5,1,16")
ap.add_argument("--opat", type=int, default=2)
ap.add_argument("--smpos", type=int, default=4)
ap.add_argument("--smf", type=int, default=3)
ap.add_argument("--slp", type=int, default=0)
ap.add_argument("--jit", type=int, default=0)
ap.add_argument("--var", type=int, default=0)
ap.add_argument("--qw", type=int, default=1)
ap.add_argument("--jstep", type=int, default=2)
ap.add_argument("--start", type=int, default=2)
ap.add_argument("--spl", default="")
ap.add_argument("--qkrev", type=int, default=1)
ap.add_argument("--softb", default="")
ap.add_argument("--pre", type=int, default=1)
ap.add_argument("--fin2", type=int, default=1)
ap.add_argument("--dma0", type=int, default=0)
ap.add_argument("--ndef", type=int, default=0)
ap.add_argument("--qdelay", type=int, default=2)
ap.add_argument("--oper", type=int, default=2)
ap.add_argument("--nb", type=int, default=6)
ap.add_argument("--soft", default="")
ap.add_argument("--probec", default="")
ap.add_argument("--abl", default="")
ap.add_argument("--pad", type=int, default=0)
a = ap.parse_args()
pol = lambda s: s.replace("+", " ").replace("-", "")
LP, SP, SPA = pol(a.lp), pol(a.sp), pol(a.spa)

NAME = "standalone__mha_softmax__near_ridge_kernel"
PIECE = 1056
SLOT = 16 * PIECE
NS = 3
RING = NS * SLOT
QP = 1088
REGW = 24 * QP
REG = RING
FLAGS = REG + 4 * REGW
LDS = FLAGS + 64
assert LDS <= 163840
KBYTES = 16 * 32 * 512 * 128 * 2
CSCALE = struct.unpack("<I", struct.pack("<f", 1.4426950408889634 * 128 ** -0.5))[0]

if "cone" in a.abl or "nomul" in a.abl: CSCALE = 0x3f800000
sWV = 3
sQp, sOp = 4, 10
SRD_Q, SRD_KV, SRD_O, SRD_X = 16, 20, 24, 28
sC, sPoff = 32, 33
sR, sW, sD, sT = 35, 36, 37, 38
sWpart, sIt, sCur = 39, 40, 41
sXoff, sXm = 42, 43
sX0, sReg, sKVoffN, sKVoff = 44, 45, 46, 48
sBad = 50
sRot, sBase = 47, 49
sFlag, sPend = 52, 54
sHA, sHB = 56, 57
sT2, sLo, sHi, sCm = 59, 60, 61, 62
SRD_W, sSt = 64, 68
vDMA, vK, vV, vQ, vOw, vOr, vKl, vVl, vX = 1, 2, 3, 4, 5, 6, 7, 8, 9
vT = 10
vM = 16
vStamp = 22
vS = 24
vE = 48
vO = 64
aQ, aK, aV, aL, aONE, aSM = 0, 96, 160, 224, 236, 244
vP, vIdx = 40, 13

SH = 1 if a.start == 3 else 0
X0 = a.start + a.jit
def vi(x): return 3 if x == -1 else (x + SH if x >= 3 else x)
def SL(x): return (vi(x) % NS) * SLOT
def BF(x): return vi(x) % 2
def vr(b, n): return f"v[{b}:{b+n-1}]"
def ar(b, n): return f"a[{b}:{b+n-1}]"
def sreg(b, n): return f"s[{b}:{b+n-1}]"
def Sbuf(n): return vS + 8 * (n % 2)
def Pbuf(n): return vP + 4 * (n % 2)
def Oreg(qt, dt): return vO + 32 * qt + 4 * dt

code = []
trace = []
ctx = [None]
def E(i, tr=True):
    if isinstance(i, str): i = Ins(i)
    code.append(i)
    if tr: trace.append((i, ctx[0]))
    return i
def A(*xs):
    for x in xs: E(x)
def L(s): E(s + ":")
def C(s): E("; " + s)

MF = "v_mfma_f32_16x16x32_bf16"
class U:
    def __init__(s, x, q, n): s.x, s.q, s.n = x, q, n
def qk_mfmas(u):
    r = []
    for kt in range(2):
        d = vr(Sbuf(u.n) + 4 * kt, 4)
        for i, ks in enumerate([3, 2, 1, 0] if (kt == 1 and a.qkrev) else range(4)):
            r.append(f"{MF} {d}, {ar(aK + 32*BF(u.x) + 16*kt + 4*ks, 4)}, {ar(aQ + 16*u.q + 4*ks, 4)}, {'0' if i == 0 else d}")
    return r
def pv_mfmas(u, first=False, dense=True):
    r = []
    p = vr(Pbuf(u.n), 4)
    for dt in range(8):
        d = vr(Oreg(u.q, dt), 4)
        r.append(f"{MF} {d}, {ar(aV + 32*BF(u.x) + 4*dt, 4)}, {p}, {'0' if first else d}")
    d = ar(aL + 4 * (u.q // 2), 4)
    if dense: r.append(f"{MF} {d}, {ar(aONE + 4 * (u.q % 2), 4)}, {p}, {'0' if (first and u.q % 2 == 0) else d}")
    return r
def nomul(u): return "nomul" in a.abl or (a.pre and u.x < 16)
def sm_f(u, j): return f"v_mul_f32 v{Sbuf(u.n)+j}, s{sC}, v{Sbuf(u.n)+j}"
def sm_e(u, j): return f"v_exp_f32 v{Sbuf(u.n)+j}, v{Sbuf(u.n)+j}"
def sm_c(u, k): return f"v_cvt_pk_bf16_f32 v{Pbuf(u.n)+k}, v{Sbuf(u.n)+2*k}, v{Sbuf(u.n)+2*k+1}"
def k_read(x, n, dyn=False):
    kt, ks = n // 4, n % 4
    base, off = (vK, 0) if dyn else (vKl, SL(x))
    return Ins(f"ds_read_b128 {ar(aK + 32*BF(x) + 16*kt + 4*ks, 4)}, v{base} offset:{off + kt*512 + ks*64}", "K" if dyn else f"K{x}")
def v_read(x, n, dyn=False):
    dt, kt = n // 2, n % 2
    base, off = (vV, 0) if dyn else (vVl, SL(x))
    return Ins(f"ds_read_b64_tr_b16 {ar(aV + 32*BF(x) + 4*dt + 2*kt, 2)}, v{base} offset:{off + kt*512 + dt*32}", "V" if dyn else f"V{x}")
vQt, vPp, sMask = 48, 14, 34
def pre_ops(qt, ks):
    r = []
    for j in range(4):
        r += [f"v_lshlrev_b32 v{vPp+2*j}, 16, v{vQt+4*ks+j}", f"v_and_b32 v{vPp+2*j+1}, s{sMask}, v{vQt+4*ks+j}"]
    r += [f"v_pk_mul_f32 {vr(vPp+2*j,2)}, {vr(vPp+2*j,2)}, {sreg(sC,2)} op_sel_hi:[1,0]" for j in range(4)]
    r += [f"v_cvt_pk_bf16_f32 v{vPp+2*j}, v{vPp+2*j}, v{vPp+2*j+1}" for j in range(4)]
    r += [f"v_accvgpr_write_b32 a{aQ+16*qt+4*ks+j}, v{vPp+2*j}" for j in range(4)]
    return r
def q_read(qt, ks, hd, raw=False):
    if raw: return Ins(f"ds_read_b128 {vr(vQt + 4*ks, 4)}, v{vQ} offset:{qt*4*QP + 64*ks}", f"Q{hd}_{qt}_{ks}")
    return Ins(f"ds_read_b128 {ar(aQ + 16*qt + 4*ks, 4)}, v{vQ} offset:{qt*4*QP + 64*ks}", f"Q{hd}_{qt}")
def dma(srd, soff, off, tag):
    return Ins(f"buffer_load_dwordx4 v{vDMA}, {sreg(srd,4)}, {soff} offen offset:{off} {LP} lds", tag)
def o_store(reg, soff, off, sp):
    return Ins(f"buffer_store_dwordx4 {reg}, v{vDMA}, {sreg(SRD_O,4)}, {soff} offen offset:{off} {sp}", "st")

nst = [0]
def stamp():
    nst[0] += 1
    if a.probe == nst[0] - 1:
        A(f"s_memrealtime s[{sSt+6}:{sSt+7}]", "s_waitcnt lgkmcnt(0)")
    if a.probec:
        pa, pb = map(int, a.probec.split(","))
        if nst[0] - 1 == 0: A(f"s_memrealtime s[{sSt+6}:{sSt+7}]", "s_waitcnt lgkmcnt(0)")
        if nst[0] - 1 == pa: A(f"s_memtime s[{sSt+8}:{sSt+9}]", "s_waitcnt lgkmcnt(0)")
        if nst[0] - 1 == pb: A(f"s_memtime s[{sSt+10}:{sSt+11}]", "s_waitcnt lgkmcnt(0)")
    if not a.stamps: return
    A(f"s_memtime s[{sSt}:{sSt+1}]", f"s_memrealtime s[{sSt+2}:{sSt+3}]", "s_waitcnt lgkmcnt(0)",
      f"s_mov_b32 s{sSt+4}, m0", f"s_mov_b32 m0, s{sSt+5}",
      f"v_writelane_b32 v{vStamp}, s{sSt}, m0", f"v_writelane_b32 v{vStamp+1}, s{sSt+2}, m0",
      f"s_add_u32 s{sSt+5}, s{sSt+5}, 1", f"s_mov_b32 m0, s{sSt+4}")

lst = [0]
def light_stamp():
    k = lst[0]; lst[0] += 1
    A(f"s_getreg_b32 s{sSt+8}, hwreg(HW_REG_SHADER_CYCLES)") if False else None
    stamp()
COST = {"valu": 4, "trans": 8, "ds": 4, "vmem": 12, "salu": 0, "wait": 0, "barrier": 24}
def cost(i):
    if i.text.startswith("ds_write2"): return 20
    if i.text.startswith("buffer_store"): return 40
    return COST[i.kind]
class Phase:
    def __init__(s): s.mf, s.front, s.back, s.steps, s.pre = [], [], [], [], {}
    def step(s, qk=None, sm=None, pv=None, first=False, reads=(), early=False, hole=False, smf=False):
        g0 = len(s.mf)
        m = (qk_mfmas(qk) if qk else []) + (pv_mfmas(pv, first, not smf) if pv else [])
        if smf:
            reads = list(reads)
            odd = pv.q % 2
            assert pv.n % 2 == odd
            if odd: m.insert(a.smpos, f"v_smfmac_f32_16x16x64_bf16 {ar(aL + 4 * (pv.q // 2), 4)}, {ar(aSM, 4)}, {vr(vP, 8)}, v{vIdx}")
            s.mf += m; s.front += [[] for _ in m]; s.back += [[] for _ in m]
            s.steps.append(g0)
            f = lambda j: sm_f(sm, j); c = lambda k: sm_c(sm, k)
            cp = sm_c(pv, 3)
            if nomul(sm):
                pat = {0: [cp], 6: [c(0)], 10: [c(1)], 12: [c(2)], 16: [c(3)]} if odd else {6: [c(0)], 10: [c(1)], 12: [c(2)]}
                rg = [0, 2, 4, 6]
            elif not odd:
                pat = {0: [f(0), f(1)], 2: [f(2)], 4: [c(0), f(3)], 6: [f(4)], 8: [c(1), f(5)], 10: [f(6)], 12: [c(2), f(7)]}
                rg = [2, 6, 10, 14]
            elif early:
                pat = {0: [cp, f(0)], 2: [f(1)], 4: [f(2)], 6: [f(3)], 8: [f(4)], 10: [c(0), f(5)], 12: [c(1), f(6)], 14: [c(2), f(7)], 16: [c(3)]}
                rg = [2, 4, 6, 8]
            else:
                pat = {0: [cp, f(0)], 2: [f(1)], 4: [f(2), f(3)], 6: [c(0)], 8: [f(4), f(5)], 10: [c(1)], 12: [f(6), f(7)], 14: [c(2)], 16: [c(3)]}
                rg = [2, 6, 10, 14]
                if a.opat == 1:
                    pat = {0: [cp, f(0)], 2: [f(1)], 4: [f(2)], 6: [f(3)], 8: [c(0), f(4)], 10: [f(5)], 12: [c(1), f(6)], 14: [c(2), f(7)], 16: [c(3)]}
                    rg = [2, 6, 10, 16]
                if a.opat == 2:
                    pat = {0: [cp, f(0)], 2: [f(1), f(2)], 4: [f(3)], 6: [c(0)], 8: [f(4), f(5)], 10: [c(1)], 12: [f(6), f(7)], 14: [c(2)], 16: [c(3)]}
                    rg = [4, 6, 10, 14]
            for j in range(8): pat[2 * j + 1] = [sm_e(sm, j)]
            for g, v in pat.items(): s.back[g0 + g] += [Ins(t) for t in v]
            for g in rg: s.front[g0 + g].append(reads.pop(0))
            return g0
        s.mf += m; s.front += [[] for _ in m]; s.back += [[] for _ in m]
        s.steps.append(g0)
        if not qk: s.before(g0, "s_nop 1")
        reads = list(reads)
        if len(m) == 17 and sm:
            f = lambda j: sm_f(sm, j); c = lambda k: sm_c(sm, k)
            if early:
                pat = {0: [f(0)], 2: [f(1)], 4: [f(2)], 6: [f(3)], 8: [f(4), f(5)], 10: [c(0), f(6)], 12: [c(1), f(7)], 14: [c(2)], 16: [c(3)]}
                rg = [0, 2, 4, 6]
            else:
                pat = {0: [f(0), f(1)], 2: [f(2)], 4: [c(0), f(3)], 6: [f(4)], 8: [c(1), f(5)], 10: [f(6)], 12: [c(2), f(7)], 16: [c(3)]}
                rg = [2, 6, 10, 16 if hole else 14]
            if nomul(sm):
                pat = {6: [c(0)], 10: [c(1)], 12: [c(2)], 16: [c(3)]}; rg = [0, 2, 4, 6]
            for j in range(8): pat[2 * j + 1] = [sm_e(sm, j)]
            for g, v in pat.items(): s.back[g0 + g] += [Ins(t) for t in v]
            for g in rg:
                if reads: s.front[g0 + g].append(reads.pop(0))
        elif sm:
            f = lambda j: sm_f(sm, j); c = lambda k: sm_c(sm, k); e = lambda j: sm_e(sm, j)
            pat = [[f(0), f(1), f(2), f(3)], [e(0), e(1)], [e(2), e(3)], [f(4), f(5), f(6), f(7)], [e(4), e(5)], [e(6), e(7)], [c(0), c(1)], [c(2), c(3)]]
            if nomul(sm): pat = [[e(0)], [e(1)], [e(2), c(0)], [e(3)], [e(4), c(1)], [e(5)], [e(6), c(2)], [e(7), "s_nop 0", c(3)]]
            for g, v in enumerate(pat): s.back[g0 + g] += [Ins(t) for t in v]
        if reads: s.spread(reads, g0, len(s.mf) - 1)
        return g0
    def g(s, step, k=0): return s.steps[step] + k
    def load(s, g):
        sc = [k for k, i in enumerate(s.front[g]) if i.kind in ("salu", "wait")]
        return sum(cost(i) for i in s.front[g] + s.back[g]) + 4 * len([k for k in sc if k > 0])
    def put(s, g, *ins):
        for i in ins:
            if isinstance(i, str): i = Ins(i)
            (s.back if i.kind in ("valu", "trans") else s.front)[g].append(i)
    def shadow(s, g, *ins):
        s.front[g][0:0] = [Ins(i) if isinstance(i, str) else i for i in ins]
    def before(s, g, *ins):
        s.pre.setdefault(g, []).extend(Ins(i) if isinstance(i, str) else i for i in ins)
    def spread(s, ops, g0, g1):
        ops = [Ins(i) if isinstance(i, str) else i for i in ops]
        tot = sum(max(cost(i), 1) for i in ops); cum = 0
        ptr = g0; lastback = -1
        for i in ops:
            tg = min(g1, g0 + int(cum / tot * (g1 - g0 + 1))); cum += max(cost(i), 1)
            if i.kind in ("valu", "trans"):
                cand = [g for g in range(max(ptr, tg - 1), min(g1, tg + 1) + 1) if s.load(g) + COST[i.kind] <= 8]
                g = cand[0] if cand else max(ptr, tg)
                s.back[g].append(i); lastback = g
            else:
                lo = max(ptr, tg, lastback + 1)
                if lo > g1:
                    g = g1; s.back[g].append(i); lastback = g
                else:
                    rng = range(lo, min(g1, lo + 2) + 1)
                    if i.kind in ("salu", "wait"): cand = [g for g in rng if not s.front[g]]
                    else: cand = [g for g in rng if s.load(g) <= 4]
                    g = cand[0] if cand else lo
                    s.front[g].append(i)
            ptr = g
    def emit(s, name=None):
        n0 = len(code)
        for g, m in enumerate(s.mf):
            if a.stamps == 4 and name in ("boundary", "finish") and g in s.steps and g > 0:
                est.append((name + str(s.steps.index(g) - 1), nb if g != s.steps[1] else n0, len(code), 0))
                light_stamp(); nb = len(code)
            for i in s.pre.get(g, []): E(i)
            if "halfsum" in a.abl and name and name.startswith("period") and (m.startswith(f"{MF} a[224:") or m.startswith(f"{MF} a[232:") or m.startswith(f"{MF} a[240:")):
                s.back[g + 1][0:0] = s.back[g]; s.back[g] = []; s.front[g + 1][0:0] = s.front[g]; s.front[g] = []
                continue
            E(m)
            for i in s.front[g] + s.back[g]: E(i)
        if name: est.append((name, n0, len(code), len(s.mf)))
est = []

def sync(kv, lg="all"):
    return [W(vm=kv, lg=lg), Ins("s_barrier")]

def adv():
    if a.rot: return [f"s_add_u32 s{sRot}, s{sRot}, 8192", f"s_and_b32 s{sRot}, s{sRot}, 0x1ffff", f"s_add_u32 s{sPoff}, s{sBase}, s{sRot}"]
    return [f"s_add_u32 s{sPoff}, s{sPoff}, 8192"]
def kv_dma(ph, gs, x, dyn=False):
    for p, g in enumerate(gs):
        if dyn:
            ph.shadow(g - 1, f"s_add_u32 m0, s{sW}, {32*p}")
            ph.put(g, dma(SRD_KV, f"s{sPoff}", 1024 * p, lambda y: f"KV{y+3}"))
        else:
            (ph.put if g - 1 in gs else ph.shadow)(g - 1, f"s_add_u32 m0, s{sWpart}, {SL(x) + 32*p}")
            ph.put(g, dma(SRD_KV, f"s{sPoff}", 1024 * p, f"KV{x}"))
    for k, i in enumerate(adv()): ph.shadow(gs[-1] + 1 + k, i)

def period(x, hd, dyn, ph=None, first=False, last=False):
    if ph is None: ph = Phase()
    s0 = len(ph.steps)
    un = lambda t, q: U(t, q, 6 * t + q)
    rdT = hd == 1 and (a.oper == 2 or (a.oper == 1 and x % 2 == 0))
    stT = hd == 1 and dyn and (a.oper == 2 or (a.oper == 1 and x % 2 == 1))
    smf = dyn and bool(a.smf >> hd & 1)
    tight = smf and not nomul(un(x, 0))
    for j in range(6):
        qk = un(x, j + 2) if j < 4 else un(x + 1, j - 4)
        sm = un(x, j + 1) if j < 5 else un(x + 1, 0)
        reads = [k_read(x + 1, 4 * j + i, dyn) for i in range(4)] if j < 2 else [v_read(x + 1, 4 * (j - 2) + i, dyn) for i in range(4)]
        ph.step(qk, sm, un(x, j), first, reads, early=(j == 5), hole=(j < (4 if hd == 0 else 3 if stT else 2)), smf=smf)
    G = lambda j, k: ph.g(s0 + j, k)
    if a.pad:
        for j in range(6): ph.back[G(j, 7)].append(Ins(f"s_nop {a.pad-1}"))
    ph.shadow(G(3, 15), W(lg="K" if dyn else f"K{x+1}"))
    if nomul(un(x, 0)): kv_dma(ph, [G(0, 8), G(0, 14), G(1, 8), G(1, 14)], x + 3, dyn)
    elif tight:
        dp = list(map(int, a.dpos.split(",")))
        kv_dma(ph, [G(dp[2*i], dp[2*i+1]) for i in range(4)], x + 3, dyn)
    elif a.dma0: kv_dma(ph, [G(0, 1), G(0, 5), G(0, 9), G(0, 14)], x + 3, dyn)
    else: kv_dma(ph, [G(0, 5), G(0, 14), G(1, 5), G(1, 14)], x + 3, dyn)
    if dyn:
        ph.shadow(G(4, 1), f"s_add_u32 s{sW}, s{sR}, s{sWpart}")
        ph.shadow(G(4, 2), f"s_add_u32 s{sT}, s{sR}, {SLOT}")
        ph.shadow(G(4, 3), f"s_cmp_eq_u32 s{sT}, {RING}")
        ph.shadow(G(4, 4), f"s_cselect_b32 s{sT}, 0, s{sT}")
        ph.shadow(G(4, 5), f"s_sub_u32 s{sD}, s{sT}, s{sR}")
        ph.shadow(G(4, 6), f"s_mov_b32 s{sR}, s{sT}")
        ph.put(G(4, 14), f"v_add_u32 v{vK}, s{sD}, v{vK}")
        ph.put(G(5, 16 if tight else 14), f"v_add_u32 v{vV}, s{sD}, v{vV}")
        if not last:
            ph.shadow(G(5, 1), f"s_add_u32 s{sIt}, s{sIt}, 1")
            if hd == 0:
                ph.shadow(G(5, 2), f"s_cmp_eq_u32 s{sIt}, 6")
                if a.rot:
                    ph.shadow(G(5, 3), f"s_cselect_b32 s{sBase}, s{sKVoffN}, s{sBase}")
                    ph.shadow(G(5, 4), f"s_add_u32 s{sPoff}, s{sBase}, s{sRot}")
                else: ph.shadow(G(5, 3), f"s_cselect_b32 s{sPoff}, s{sKVoffN}, s{sPoff}")
        if hd == 0:
            for p in range(2):
                ph.shadow(G(2 + p, 13), f"s_add_u32 m0, s{sXm}, {(QP-1024)*p}")
                ph.put(G(2 + p, 14), dma(SRD_X, f"s{sXoff}", 1024 * p, lambda y: f"QD1_{(y-2)//2 - a.qdelay}"))
            ph.shadow(G(5, 9), f"s_add_u32 s{sXm}, s{sXm}, {2*QP}")
        else:
            if stT and "nolst" not in a.abl: ph.put(G(*map(int, a.stpos.split(","))) if tight else G(2, 14), o_store(vr(vE, 4), f"s{sXoff}", 0, SPA))
        if hd == 0 or stT: ph.shadow(G(5, 11), f"s_add_u32 s{sXoff}, s{sXoff}, {2048 if hd == 0 else 1024}")
        if last and hd == 0 and a.qdelay:
            ph.shadow(G(5, 12), f"s_cmp_eq_u32 s{sIt}, {a.qdelay}")
            ph.shadow(G(5, 13), f"s_cselect_b32 s{SRD_X+2}, 24576, s{SRD_X+2}")
            ph.shadow(G(5, 14), f"s_cselect_b64 {sreg(sXoff,2)}, {sreg(sX0,2)}, {sreg(sXoff,2)}")
        if last: ph.shadow(G(5, 15), f"s_cmp_lt_u32 s{sIt}, 6")
    if rdT:
        ph.put(G(2, 14) if tight else G(3, 16), Ins(f"ds_read_b128 {vr(vE, 4)}, v{vX}", "T"))
        ph.put(G(3, 16) if tight else G(4, 16), f"v_add_u32 v{vX}, {QP}, v{vX}")
    ph.shadow(G(5, 16), *sync((lambda y: f"KV{y+2}") if dyn else f"KV{x+2}", "all" if dyn else [f"V{x+1}"]))
    return ph

def period_jit(x, ph):
    s0 = len(ph.steps)
    un = lambda t, q: U(t, q, 6 * t + q)
    for j in range(6):
        ph.step(un(x, j + 2) if j < 4 else un(x + 1, j - 4), un(x, j + 1) if j < 5 else un(x + 1, 0), un(x, j))
    G = lambda j, k: ph.g(s0 + j, k)
    ph.shadow(G(0, 7), W(lg=f"V{x}"))
    js = a.jstep
    ph.shadow(G(js, 0), *sync(f"KV{x+1}", None))
    for n in range(8): ph.put(G(js, [2, 2, 4, 4, 6, 8, 8, 10][n]), k_read(x + 1, n))
    ph.shadow(G(3, 16), W(lg=f"K{x+1}"))
    kv_dma(ph, [G(js, 14), G(js + 1, 8), G(js + 1, 14), G(js + 2, 8)], x + 3)
    ph.spread([v_read(x + 1, n) for n in range(16)], G(js + 1, 0), G(5, 8))
    ph.shadow(G(5, 16), *sync(f"KV{x+2}"))

def main_loop(hd, x0, x1):
    odd = (x1 - x0) % 2 == 0
    if odd: A(f"s_branch L_mid{hd}")
    E(".p2align 3")
    t0 = len(trace)
    L(f"L_loop{hd}")
    halves = []
    for h in range(2):
        if h and odd: L(f"L_mid{hd}")
        b = len(code)
        if a.stamps == 2: stamp()
        sf = a.soft if hd == 0 else a.softb
        if sf:
            it, sl = sf.split(",")
            A(f"s_cmp_lt_u32 s{sIt}, {int(it)+h}", f"s_cbranch_scc0 L_soft{hd}{h}", f"s_sleep {sl}"); L(f"L_soft{hd}{h}")
        period(x1 - 1 + h, hd, True, last=(h == 1)).emit(f"period{hd}{h}")
        if h: A(f"s_cbranch_scc1 L_loop{hd}")
        halves.append(code[b:])
    del trace[t0:]
    for x in range(x0, x1 + 1):
        trace.extend((i, x) for i in halves[(x - x1 - 1) % 2])

def window(srd, ptr, hreg):
    A(f"s_mul_i32 s{sT}, s{hreg}, 98304", f"s_mul_i32 s{sT2}, s{sWV}, 24576", f"s_add_u32 s{sT}, s{sT}, s{sT2}",
      f"s_add_u32 s{srd}, s{ptr}, s{sT}", f"s_addc_u32 s{srd+1}, s{ptr+1}, 0", f"s_mov_b32 s{srd+2}, 24576")
def kv_offset(hreg, kv):
    A(f"s_lshl_b32 s{kv}, s{hreg}, 17", f"s_and_b32 s{sT}, s{sWV}, 1", f"s_lshl_b32 s{sT}, s{sT}, 12", f"s_add_u32 s{kv}, s{kv}, s{sT}")
def kv_issue(x):
    r = []
    for p in range(4):
        r += [f"s_add_u32 m0, s{sWpart}, {SL(x) + 32*p}", "s_nop 0", dma(SRD_KV, f"s{sPoff}", 1024*p, f"KV{x}")]
    return r + adv()
def q_issue(k):
    r = [f"s_mov_b32 s{sT2}, {4096*k}"]
    for p in range(4):
        r += [f"s_add_u32 m0, s{sReg}, {4*k*QP + (QP-1024)*p}", "s_nop 0", dma(SRD_Q, f"s{sT2}", 1024*p, f"QD0_{k}")]
    return r

def norm_a(qt):
    r = [f"v_accvgpr_read_b32 v{vT+1}, a{aL + 2*qt}", f"v_accvgpr_read_b32 v{vT}, a{aL + 2*qt + 1}", f"v_add_f32 v{vT+1}, v{vT+1}, v{vT}",
         f"v_rcp_f32 v{vT}, v{vT+1}", f"v_cmp_nle_f32 vcc, s{sLo}, v{vT+1}"]
    for o in range(Oreg(qt, 0), Oreg(qt, 8), 2):
        r.append(f"v_pk_mul_f32 {vr(o,2)}, {vr(o,2)}, {vr(vT,2)} op_sel_hi:[1,0]")
    return r
def norm_b(qt):
    r = [f"s_or_b64 {sreg(sBad,2)}, {sreg(sBad,2)}, vcc", f"v_cmp_nge_f32 vcc, s{sHi}, v{vT+1}", f"v_add_u32 v{vT+2}, {qt*4*QP}, v{vOw}"]
    for dt in range(0, 8, 2):
        for d in (dt, dt + 1):
            o = Oreg(qt, d)
            r += [f"v_cvt_pk_bf16_f32 v{o}, v{o}, v{o+1}", f"v_cvt_pk_bf16_f32 v{o+1}, v{o+2}, v{o+3}"]
        if dt == 0: r.append(f"s_or_b64 {sreg(sBad,2)}, {sreg(sBad,2)}, vcc")
        r.append(Ins(f"ds_write2_b64 v{vT+2}, {vr(Oreg(qt, dt),2)}, {vr(Oreg(qt, dt+1),2)} offset0:{4*dt} offset1:{4*dt+4}", f"W{qt}"))
    return r
def back_ops(qt):
    return [Ins(f"ds_read_b128 {vr(Oreg(qt, j), 4)}, v{vOr} offset:{qt*4*QP + QP*j}", f"B{qt}_{j}") for j in range(4)]
def store_ops(qt, sp):
    if qt >= 6 - a.ndef: sp = pol(a.spl)
    r = [f"s_mov_b32 s{sT2}, {4096*qt}"]
    for j in range(4): r += [W(lg=f"B{qt}_{j}"), o_store(vr(Oreg(qt, j), 4), f"s{sT2}", 1024*j, sp)]
    return r
def park_ops(c, t):
    r = vr(vE + 4 + 4 * t, 4)
    return [Ins(f"ds_read_b128 {r}, v{vOr} offset:{c*QP}", f"P{c}")], [f"s_mov_b32 s{sT}, {1024*c}", W(lg=f"P{c}"), o_store(r, f"s{sT}", 0, SPA)]
def q_dma(ph, gs, k, srd=SRD_Q, hd=0):
    ph.shadow(gs[0] - 2, f"s_mov_b32 s{sT2}, {4096*k}")
    for p, g in enumerate(gs):
        (ph.put if g - 1 in gs else ph.shadow)(g - 1, f"s_add_u32 m0, s{sReg}, {4*k*QP + (QP-1024)*p}")
        ph.put(g, dma(srd, f"s{sT2}", 1024*p, f"QD{hd}_{k}"))
NPRE = a.nb
NFIN = 24 - a.nb - 6 * a.oper
def park(ph, c, t, gr, gs):
    rd, st = park_ops(c, t)
    ph.put(gr, *rd)
    ph.shadow(gs - 1, st[0]); ph.shadow(gs, st[1]); ph.put(gs, st[2])
def flag_ops(bit):
    return [f"s_cmp_lg_u64 {sreg(sBad,2)}, 0", f"s_cselect_b32 s{sT2}, {0 if a.abl else bit}, 0", f"s_or_b32 s{sFlag}, s{sFlag}, s{sT2}", f"s_mov_b64 {sreg(sBad,2)}, 0"]

def boundary():
    order = [(14, 0), (14, 1), (14, 2), (15, 0), (15, 1), (15, 2), (14, 3), (15, 3), (14, 4), (15, 4), (14, 5), (15, 5), (16, 0), (16, 1)]
    us = [U(t, q, 84 + i) for i, (t, q) in enumerate(order)]
    ph = Phase()
    for j in range(12):
        reads = []
        if j in (1, 2): reads = [v_read(15, 8 * (j - 1) + n) for n in range(8)]
        if j == 0:
            reads = [k_read(15, n) for n in range(8)]
            g0 = ph.step(us[j + 2], us[j + 1], us[j], reads=reads[:4], early=True)
            for n in range(4): ph.put(g0 + 1 + 2 * n, reads[4 + n])
        else:
            ph.step(us[j + 2], us[j + 1], us[j], reads=reads)
    G = ph.g
    ph.shadow(G(0, 16), W(lg="K15"))
    ph.shadow(G(3, 7), W(lg="V15"))
    kv_dma(ph, [G(0, 11), G(0, 15), G(1, 11), G(1, 15)], 17)
    pre = {k: [W(vm=f"QD1_{k}")] + [q_read(k, ks, 1) for ks in range(4)] for k in range(6)}
    ph.spread(pre[0] + pre[1], G(3, 0), G(3, 16))
    ph.spread(pre[2], G(4, 0), G(4, 16)); ph.spread(pre[3], G(6, 0), G(6, 16))
    for k in range(6 - a.qdelay, 6):
        j = 2 + 2 * (k - (6 - a.qdelay))
        q_dma(ph, [G(j, 5), G(j, 13), G(j + 1, 5), G(j + 1, 13)], k, SRD_X, 1)
    ph.spread(pre[4], G(10, 0), G(10, 7))
    ph.shadow(G(8, 7), *sync("KV16", "V15"))
    ph.spread([k_read(16, n) for n in range(8)], G(8, 8), G(9, 8))
    ph.shadow(G(9, 16), W(lg=["K16", "Q1_0", "Q1_1"]))
    kv_dma(ph, [G(9, 9), G(9, 11), G(9, 13), G(9, 15)], 18)
    ph.spread([v_read(16, n) for n in range(16)], G(10, 10), G(11, 8))
    ph.shadow(G(11, 16), *sync("KV17", ["V16", "Q1_4"]))
    period(16, 1, False, ph, first=True)
    ph.spread(pre[5], G(12, 7), G(12, 13))
    ph.shadow(G(14, 15), W(lg="Q1_5"))
    lo, hi = G(6, 3), G(17, 3)
    avail = [G(6, 0), G(8, 0), G(10, 0), G(13, 2), G(15, 0)]
    for c in range(0 if "nobst" in a.abl else NPRE):
        g = max(lo + (hi - lo) * c // max(NPRE - 1, 1), avail[c // 4])
        while (g - ph.steps[0]) % 17 not in (1, 3, 5, 7): g += 1
        park(ph, c, c % 2, g, g + 8)
    for k, (ga, gb) in enumerate([(G(4, 5), G(5, 16)), (G(6, 1), G(7, 16)), (G(8, 5), G(9, 16)), (G(11, 9), G(13, 0)), (G(13, 1), G(14, 16)), (G(15, 1), G(16, 16))]):
        ph.put(ga, *norm_a(k))
        ph.spread(norm_b(k), ga + 1, gb)
    for k, i in enumerate(flag_ops(1) + [f"s_mov_b32 s{sIt}, 0", f"s_mov_b32 s{sXoff}, {1024*NPRE}", f"s_mov_b32 s{sR}, {SL(18)}", f"s_add_u32 s{sW}, s{sWpart}, {SL(17)}"]):
        ph.shadow(G(17, 1 + k), i)
    ph.put(G(17, 14), f"v_add_u32 v{vK}, {SL(18)}, v{vKl}")
    ph.put(G(16, 14), f"v_add_u32 v{vV}, {SL(18)}, v{vVl}")
    ph.emit("boundary")

def finish():
    order = [(29, q) for q in range(6)] + [(t, q) for q in range(6) for t in (30, 31)]
    if a.fin2: order[7], order[8] = order[8], order[7]
    us = [U(t, q, 174 + i) for i, (t, q) in enumerate(order)] + [None, None]
    ph = Phase()
    vr30 = [v_read(30, n) for n in range(16)]
    rd = {0: [k_read(30, n) for n in range(6)], 1: [k_read(30, n) for n in range(6, 8)] + vr30[:4], 2: vr30[4:10], 5: vr30[12:]}
    if a.fin2: rd = {0: [k_read(30, n) for n in range(5)], 1: [k_read(30, n) for n in range(5, 8)] + vr30[:2], 2: vr30[2:7], 3: vr30[7:12], 4: vr30[12:]}
    for j in range(18):
        ph.step(us[j + 2], us[j + 1], us[j], reads=rd.get(j, []), early=(j == (4 if a.fin2 else 5)))
    G = ph.g
    for k, i in enumerate([f"s_mul_i32 s{sT}, s{sHB}, 98304", f"s_mul_i32 s{sT2}, s{sWV}, 24576", f"s_add_u32 s{sT}, s{sT}, s{sT2}",
                           f"s_add_u32 s{SRD_O}, s{sOp}, s{sT}", f"s_addc_u32 s{SRD_O+1}, s{sOp+1}, 0"]):
        ph.shadow(G(8, 11 + k), i)
    for c in range(NFIN):
        g = G(0, 1) + (G(8, 1) - G(0, 1)) * c // max(NFIN - 1, 1)
        while g % 17 not in (1, 3, 5, 7, 10, 12, 14, 16): g += 1
        park(ph, 24 - NFIN + c, c % 2, g, g + 8)
    if not a.fin2:
        ph.spread(vr30[10:12], G(3, 0), G(3, 6))
        ph.shadow(G(3, 7), *sync("KV31", "K30"))
        ph.spread([k_read(31, n) for n in range(8)], G(3, 8), G(4, 10))
        ph.shadow(G(4, 16), W(lg="K31"))
        ph.spread([v_read(31, n) for n in range(16)], G(5, 10), G(6, 16))
        ph.shadow(G(6, 7), W(lg="V30"))
        ph.shadow(G(7, 7), W(lg="V31"))
    else:
        ph.shadow(G(3, 15), W(lg="K30"))
        ph.shadow(G(4, 12), *sync("KV31", None))
        ph.spread([k_read(31, n) for n in range(8)], G(4, 13), G(5, 10))
        ph.shadow(G(5, 16), W(lg="K31"))
        ph.spread([v_read(31, n) for n in range(16)], G(6, 0), G(7, 16))
        ph.shadow(G(8, 7), W(lg="V31"))
    for k in range(4):
        j = 8 + 2 * k
        if a.fin2 and k == 0:
            ph.put(G(9, 5 if "nomul" in a.abl else 3), *norm_a(0))
            ph.spread(norm_b(0) + back_ops(0), G(9, 6 if "nomul" in a.abl else 4), G(9, 16))
            continue
        ph.put(G(j, 5 if "nomul" in a.abl else 3), *norm_a(k))
        if a.fin2 and k == 1:
            nb = norm_b(1); st = store_ops(0, SP)
            ph.spread(st[:5] + nb[:9] + st[5:7] + nb[9:14] + st[7:] + nb[14:] + back_ops(1), G(j, 6 if "nomul" in a.abl else 4), G(j + 1, 2))
            ph.spread(store_ops(k, SP), G(j + 1, 7), G(j + 1, 16))
            continue
        ph.spread(norm_b(k) + back_ops(k), G(j, 6 if "nomul" in a.abl else 4), G(j, 16))
        ph.spread(store_ops(k, SP), G(j + 1, 4), G(j + 1, 16))
    ph.put(G(16, 2), *norm_a(4))
    ph.spread(norm_b(4) + back_ops(4), G(16, 3), G(17, 4))
    ph.emit("finish")
    n0 = len(code)
    st4 = store_ops(4, SP)
    A(*st4[:5]); A("s_nop 2")
    A(*norm_a(5)); nb = norm_b(5)
    A(*(nb[:9] + st4[5:7] + nb[9:14] + st4[7:] + nb[14:] + back_ops(5) + flag_ops(2) + store_ops(5, SP)))
    est.append(("tail", n0, len(code), 0))

L(NAME)
if a.stamps == 5: A("s_memtime s[80:81]", "s_memrealtime s[82:83]")
A("s_load_dwordx8 s[4:11], s[0:1], 0", "s_cmp_ge_u32 s2, 256", "s_cbranch_scc1 L_exit")
def code_prefetch():
    C("touch ten 128-byte lines of this kernel's code per workgroup so that later instruction fetches hit in L2")
    A("s_getpc_b64 s[12:13]", f"s_lshr_b32 s{sT}, s2, 3", f"s_mulk_i32 s{sT}, 1280",
      f"v_min_u32 v{vT+1}, 9, v{vT+1}", f"v_lshl_add_u32 v{vT+1}, v{vT+1}, 7, s{sT}", f"v_min_u32 v{vT+1}, L_exit-{NAME}-1024, v{vT+1}",
      Ins(f"global_load_dword a255, v{vT+1}, s[12:13]", "code"))
if a.stamps: A(f"s_load_dwordx2 s[{SRD_W}:{SRD_W+1}], s[0:1], 40", f"s_mov_b32 s{sSt+5}, 0")
A(f"v_lshrrev_b32 v{vT}, 6, v0", f"v_lshrrev_b32 v{vT+1}, 4, v0", f"v_readfirstlane_b32 s{sWV}, v{vT}", "v_and_b32 v0, 63, v0", f"v_lshlrev_b32 v{vDMA}, 4, v0")
if a.cpf == 1: code_prefetch()
if a.hmap == 0: A(f"s_lshl_b32 s{sHA}, s2, 1")
else: A(f"s_mov_b32 s{sHA}, s2")
A(f"s_mov_b32 s{SRD_KV+3}, 0x20000", f"s_mov_b32 s{SRD_KV+2}, {KBYTES}", f"s_mul_i32 s{sWpart}, s{sWV}, {4*PIECE}")
kv_offset(sHA, sPoff)
if a.rot: A(f"s_mov_b32 s{sBase}, s{sPoff}", f"s_lshr_b32 s{sRot}, s2, {a.rot // 100}", f"s_mul_i32 s{sRot}, s{sRot}, {(a.rot % 100) * 8192}", f"s_and_b32 s{sRot}, s{sRot}, 0x1ffff", f"s_add_u32 s{sPoff}, s{sBase}, s{sRot}")
A(f"s_mul_i32 s{sT}, s{sHA}, 98304", f"s_mul_i32 s{sT2}, s{sWV}, 24576", f"s_add_u32 s{sT}, s{sT}, s{sT2}", f"s_mov_b32 s{SRD_Q+2}, 24576",
  f"s_mov_b32 s{SRD_Q+3}, 0x20000", f"s_mul_i32 s{sReg}, s{sWV}, {REGW}", f"s_add_u32 s{sReg}, s{sReg}, {REG}", f"s_mov_b32 m0, s{sWpart}")
A(f"s_cmp_lt_u32 s{sWV}, 2", "s_waitcnt lgkmcnt(0)", f"s_cselect_b64 {sreg(SRD_KV,2)}, s[6:7], s[8:9]")
if a.stamps: A(f"s_mov_b32 s{SRD_W+2}, 268435456", f"s_mov_b32 s{SRD_W+3}, 0x20000")
if a.stamps == 5: A("s_memtime s[84:85]", "s_memrealtime s[86:87]")
else: stamp()
if a.stamps: A("s_nop 0")
if a.slp > 0:
    A("s_bitcmp1_b32 s2, 3", "s_cbranch_scc0 L_noslp", f"s_sleep {a.slp}"); L("L_noslp")
if a.slp < 0:
    for b in range(3):
        A(f"s_bitcmp1_b32 s2, {3+b}", f"s_cbranch_scc0 L_noslp{b}", f"s_sleep {(-a.slp) << b}"); L(f"L_noslp{b}")
def fill(seq, filler):
    for i in seq:
        if i == "s_nop 0" and filler: A(filler.pop(0))
        else: A(i)
fl = [f"s_mov_b32 s{SRD_O+3}, 0x20000", f"s_mov_b32 s{SRD_X+3}, 0x20000", f"s_mov_b32 s{sFlag}, {a.force_redo}", f"s_mov_b64 {sreg(sBad,2)}, 0",
      f"s_mov_b32 s{sC}, 0x{CSCALE:08x}", f"s_mov_b32 s{sLo}, 1.0", f"s_mov_b32 s{sHi}, 0x4e800000", f"s_mov_b32 s{sIt}, {(X0 - 1) // 2}",
      f"s_add_u32 s{sHB}, s{sHA}, {256 if a.hmap else 1}", f"s_mov_b32 s{sMask}, 0xffff0000", f"s_mov_b32 s{sX0}, 0"]
fill(kv_issue(0)[2:], fl)
if a.stamps == 5: A("s_memtime s[88:89]", "s_memrealtime s[90:91]")
A(f"s_add_u32 s{SRD_Q}, s{sQp}, s{sT}", f"s_addc_u32 s{SRD_Q+1}, s{sQp+1}, 0")
if a.cpf == 2: code_prefetch()
fill(q_issue(0), fl)
if a.stamps == 5: A("s_memtime s[92:93]", "s_memrealtime s[94:95]")
if a.cpf == 3: code_prefetch()
k1 = kv_issue(1)
fill(k1[:6], fl)
C("---- per-lane LDS addresses (i = lane%16, g = lane/16)")
A(f"v_and_b32 v{vT}, 15, v0", f"v_lshrrev_b32 v{vT+1}, 4, v0")
A(f"v_and_b32 v{vT+2}, 7, v{vT}", f"v_mul_u32_u24 v{vKl}, {PIECE}, v{vT+2}", f"v_lshrrev_b32 v{vT+2}, 3, v{vT}",
  f"v_lshl_add_u32 v{vKl}, v{vT+2}, 8, v{vKl}", f"v_lshl_add_u32 v{vKl}, v{vT+1}, 4, v{vKl}")
A(f"v_bfe_u32 v{vT+2}, v0, 2, 3", f"v_mul_u32_u24 v{vVl}, {PIECE}, v{vT+2}", f"v_lshrrev_b32 v{vT+2}, 5, v0",
  f"v_lshl_add_u32 v{vVl}, v{vT+2}, 8, v{vVl}", f"v_and_b32 v{vT+2}, 3, v0", f"v_lshl_add_u32 v{vVl}, v{vT+2}, 3, v{vVl}",
  f"v_add_u32 v{vVl}, {8*PIECE}, v{vVl}")
A(f"v_cmp_eq_u32 vcc, 0, v{vT+2}", f"v_mov_b32 v{vT+4}, 0x3f803f80")
A(f"v_mul_u32_u24 v{vQ}, {QP}, v{vT+2}", f"v_cndmask_b32 v{vT+4}, 0, v{vT+4}, vcc", f"v_lshrrev_b32 v{vT+3}, 2, v{vT}",
  f"v_lshl_add_u32 v{vQ}, v{vT+3}, 8, v{vQ}", f"v_lshl_add_u32 v{vQ}, v{vT+1}, 4, v{vQ}", f"v_add_u32 v{vQ}, s{sReg}, v{vQ}")
A(f"v_lshl_add_u32 v{vT+2}, v{vT+2}, 2, v{vT+3}", f"v_mul_u32_u24 v{vOw}, 272, v{vT+2}", f"v_lshl_add_u32 v{vOw}, v{vT+1}, 3, v{vOw}",
  f"v_add_u32 v{vOw}, s{sReg}, v{vOw}", f"v_mul_u32_u24 v{vOr}, 272, v{vT+1}", f"v_lshl_add_u32 v{vOr}, v{vT}, 4, v{vOr}",
  f"v_add_u32 v{vOr}, s{sReg}, v{vOr}", f"v_add_u32 v{vX}, {NPRE*QP}, v{vOr}")
for j in range(4): A(f"v_accvgpr_write_b32 a{aONE+j}, v{vT+4}")
A(f"v_and_b32 v{vT+2}, 3, v0", f"v_cmp_eq_u32 vcc, 2, v{vT+2}", f"v_mov_b32 v{vT+3}, 0x3f803f80", f"v_bfe_u32 v{vT+2}, v0, 1, 1",
  f"v_cndmask_b32 v{vT+4}, 0, v{vT+3}, vcc", f"v_lshrrev_b32 v{vT}, 5, v0", f"v_cmp_eq_u32 vcc, v{vT}, v{vT+2}")
for j in range(4): A(f"v_accvgpr_write_b32 a{aONE+4+j}, v{vT+4}")
A(f"v_cndmask_b32 v{vT+4}, 0, v{vT+3}, vcc", f"v_and_b32 v{vT+2}, 1, v0", f"v_mul_u32_u24 v{vT+2}, 0xaaaa, v{vT+2}", f"v_add_u32 v{vIdx}, 0x4444, v{vT+2}")
for j in range(4): A(f"v_accvgpr_write_b32 a{aSM+j}, v{vT+4}")
A(f"v_add_u32 v{vK}, {SL(X0+1)}, v{vKl}", f"v_add_u32 v{vV}, {SL(X0+1)}, v{vVl}")
window(SRD_O, sOp, sHA)
if "nost" in a.abl: A(f"s_mov_b32 s{SRD_O+2}, 0")
window(SRD_X, sQp, sHB)
kv_offset(sHB, sKVoffN)
if a.qdelay: A(f"s_mov_b32 s{SRD_X+2}, 0")
A(f"s_mov_b32 s{sXoff}, 0", f"s_mov_b32 s{sXm}, s{sReg}", f"s_mov_b32 s{sR}, {SL(X0+1)}", f"s_add_u32 s{sW}, s{sWpart}, {SL(X0)}")
fill(k1[6:], fl)
assert not fl
C("---- start-up: tiles 0 and 1 are processed q-major while Q arrives")
if a.stamps == 5:
    A("s_waitcnt lgkmcnt(0)")
    for k in range(4): A(f"v_writelane_b32 v{vStamp}, s{80+4*k}, {k}", f"v_writelane_b32 v{vStamp+1}, s{82+4*k}, {k}")
    A(f"s_mov_b32 s{sSt+5}, 4")
def st3():
    if a.stamps in (3, 5): stamp()
st3()
A(*sync("KV0", None)); st3()
A(*[k_read(0, n) for n in range(8)]); A(*q_issue(1))
A(W(vm="QD0_0")); st3(); A(*[q_read(0, ks, 0, a.pre) for ks in range(4)]); A(*q_issue(2)); A(W(lg="all"))
if a.pre:
    for ks in range(4): A(*pre_ops(0, ks))
    A("s_nop 1")
assert a.pre
if a.start == 2:
    order = [(t, q) for q in range(6) for t in range(2)] + [(2, 0), (2, 1)]
    qstep = {2: 3, 3: 5, 4: 7, 5: 9}
else:
    order = [(t, q) for q in range(4) for t in range(2)] + [(2, 0), (2, 1), (2, 2), (2, 3), (1, 4), (2, 4), (1, 5), (2, 5), (-1, 4), (-1, 5), (3, 0), (3, 1)]
    qstep = {2: 3, 3: 5, 4: 11, 5: 13}
    if a.var == 1:
        order = [(t, q) for q in range(5) for t in range(2)] + [(2, 0), (2, 1), (2, 2), (2, 3), (1, 5), (2, 4), (2, 5), (-1, 5), (3, 0), (3, 1)]
        qstep = {2: 3, 3: 5, 4: 7, 5: 13}
us = [U(t, q, n) for n, (t, q) in enumerate(order)]
ph = Phase()
ph.step(us[0], reads=[v_read(0, n) for n in range(16)])
ph.emit()
A(*sync("KV1")); st3()
A(*[k_read(1, n) for n in range(8)]); A(*q_issue(3)); A(W(lg="all"))
ph = Phase()
seen = set()
for n in range(1, len(us)):
    pv = us[n - 2] if n >= 2 else None
    ph.step(us[n], us[n - 1], pv, first=(pv is not None and pv.q not in seen))
    if pv: seen.add(pv.q)
G = lambda n, k: ph.g(n - 1, k)
ph.put(G(1, 0), W(vm="QD0_1"), *[q_read(1, ks, 0, True) for ks in range(4)])
for ks in range(4):
    g = G(1, [5, 6, 6, 7][ks])
    if ks != 2: ph.shadow(g, W(lg=f"Q0_1_{ks + (ks == 1)}"))
    ph.put(g, *pre_ops(1, ks))
ph.spread([v_read(1, n) for n in range(16)], G(2, 0), G(2, 16))
ph.shadow(G(3, 7), W(lg="V1"))
for q in range(2, 6):
    n = qstep[q]
    if a.qw == 1:
        ph.shadow(G(n, 1), W(vm=f"QD0_{q}"))
        for ks in range(4):
            ph.put(G(n, [2, 2, 4, 4][ks]), q_read(q, ks, 0, True))
            ph.shadow(G(n, 10 + ks), W(lg=f"Q0_{q}_{ks}"))
            ph.put(G(n, 10 + ks), *pre_ops(q, ks))
    else:
        ph.put(G(n, 8), W(vm=f"QD0_{q}"), *[q_read(q, ks, 0, True) for ks in range(4)])
        for ks in range(4):
            g = G(n, [14, 15, 16, 16][ks])
            if ks != 3: ph.shadow(g, W(lg=f"Q0_{q}_{ks + (ks == 2)}"))
            ph.put(g, *pre_ops(q, ks))
gs = lambda n: [G(n, 3), G(n, 5), G(n, 7), G(n, 9)] if a.qw == 1 else [G(n, 10), G(n, 11), G(n, 12), G(n, 13)]
def kjit(n, x):
    ph.shadow(G(n, 0), *sync(f"KV{x}", None))
    for k in range(8): ph.put(G(n, [2, 2, 4, 4, 6, 8, 8, 10][k]), k_read(x, k))
    ph.shadow(G(n, 16), W(lg=f"K{x}"))
if a.start == 2:
    q_dma(ph, [G(1, 2), G(1, 3), G(1, 4), G(1, 5)], 4)
    q_dma(ph, gs(3), 5); kv_dma(ph, gs(5), 2); kv_dma(ph, gs(7), 3); kv_dma(ph, gs(9), 4)
    ph.shadow(G(6, 8), "s_barrier")
    kjit(11, 2)
    if a.jit:
        ph.spread([v_read(2, n) for n in range(16)], G(12, 10), G(13, 16))
        period_jit(2, ph)
    else:
        ph.spread([v_read(2, n) for n in range(16)], G(12, 10), G(13, 8))
        ph.shadow(G(13, 16), *sync("KV3"))
elif a.var == 1:
    q_dma(ph, [G(1, 2), G(1, 3), G(1, 4), G(1, 5)], 4)
    kv_dma(ph, gs(3), 2); q_dma(ph, gs(5), 5)
    ph.shadow(G(6, 8), "s_barrier")
    kv_dma(ph, gs(7), 3)
    kjit(9, 2)
    ph.spread([v_read(2, n) for n in range(16)], G(10, 10), G(11, 8))
    ph.shadow(G(11, 16), W(lg="V2"), "s_barrier")
    kv_dma(ph, [G(12, 2), G(12, 4), G(12, 8), G(12, 14)], 4)
    ph.spread([k_read(-1, n) for n in range(8)], G(14, 8), G(15, 16))
    ph.shadow(G(16, 8), W(lg="K-1"))
    kjit(17, 3)
    vs = [v_read(-1, n) for n in range(16)]
    ph.spread(vs[:8], G(16, 12), G(16, 16)); ph.spread(vs[8:], G(17, 11), G(18, 0))
    ph.shadow(G(18, 8), W(lg="V-1"), "s_barrier")
    kv_dma(ph, [G(18, 10), G(18, 14), G(19, 2), G(19, 8)], 5)
    assert a.jit
    ph.spread([v_read(3, n) for n in range(16)], G(18, 11), G(19, 16))
    period_jit(3, ph)
else:
    kv_dma(ph, [G(1, 2), G(1, 3), G(1, 4), G(1, 5)], 2)
    q_dma(ph, gs(3), 4); q_dma(ph, gs(5), 5)
    kjit(7, 2)
    kv_dma(ph, [G(7, 12), G(7, 14), G(8, 2), G(8, 4)], 3)
    ph.spread([v_read(2, n) for n in range(16)], G(8, 10), G(9, 16))
    ph.shadow(G(10, 7), W(lg="V2"))
    ph.shadow(G(10, 14), "s_barrier")
    kv_dma(ph, gs(11), 4)
    ph.spread([k_read(-1, n) for n in range(8)], G(14, 8), G(15, 8))
    ph.shadow(G(15, 16), W(lg="K-1"))
    kjit(17, 3)
    vs = [v_read(-1, n) for n in range(16)]
    ph.spread(vs[:8], G(16, 12), G(16, 16)); ph.spread(vs[8:], G(17, 11), G(18, 0))
    ph.shadow(G(18, 7), W(lg="V-1"))
    ph.shadow(G(18, 8), "s_barrier")
    kv_dma(ph, [G(18, 10), G(18, 14), G(19, 2), G(19, 8)], 5)
    if a.jit:
        ph.spread([v_read(3, n) for n in range(16)], G(18, 9), G(19, 16))
        period_jit(3, ph)
    else:
        ph.spread([v_read(3, n) for n in range(16)], G(18, 9), G(19, 10))
        ph.shadow(G(19, 16), *sync("KV4"))
ph.emit("start")
stamp()
main_loop(0, X0, 13)
stamp()
boundary()
stamp()
main_loop(1, 17, 28)
stamp()
finish()
stamp()
C("---- combine the per-wave 'row sum left the safe range' flags of the workgroup")
A(f"s_lshl_b32 s{sT}, s{sWV}, 2", f"s_add_u32 s{sT}, s{sT}, {FLAGS}", f"v_mov_b32 v{vT}, s{sT}", f"v_mov_b32 v{vT+1}, s{sFlag}",
  f"ds_write_b32 v{vT}, v{vT+1}", f"v_mov_b32 v{vT}, {FLAGS}", "s_waitcnt lgkmcnt(0)", "s_barrier",
  f"ds_read_b128 {vr(vT+2,4)}, v{vT}", "s_waitcnt lgkmcnt(0)",
  f"v_or_b32 v{vT+2}, v{vT+2}, v{vT+3}", f"v_or3_b32 v{vT+2}, v{vT+2}, v{vT+4}, v{vT+5}", "s_nop 0",
  f"v_readfirstlane_b32 s{sPend}, v{vT+2}", "s_nop 3")
L("L_pend")
A(f"s_cmp_eq_u32 s{sPend}, 0", "s_cbranch_scc1 L_done")
C("==== rare path: redo a head, subtracting the true row maximum (plain, unpipelined code)")
A(f"s_bitcmp1_b32 s{sPend}, 0", f"s_cselect_b32 s{sCur}, s{sHA}, s{sHB}", f"s_cselect_b32 s{sT}, 2, 0", f"s_and_b32 s{sPend}, s{sPend}, s{sT}",
  "s_waitcnt vmcnt(0) lgkmcnt(0)", "s_barrier", f"s_mov_b32 s{SRD_KV+2}, {KBYTES}")
window(SRD_Q, sQp, sCur); window(SRD_O, sOp, sCur)
for k in range(6): A(*q_issue(k))
for j in range(6): A(f"v_mov_b32 v{vM+j}, 0xff800000")
A("s_waitcnt vmcnt(0)")
for k in range(6):
    A(*[q_read(k, ks, 0) for ks in range(4)]); A("s_waitcnt lgkmcnt(0)")
kv_offset(sCur, sPoff)
if a.rot: A(f"s_mov_b32 s{sBase}, s{sPoff}", f"s_mov_b32 s{sRot}, 0")
A(f"s_mov_b32 s{sIt}, 0")
L("L_maxloop")
A(*kv_issue(0)); A("s_waitcnt vmcnt(0)", "s_barrier")
A(*[k_read(0, n) for n in range(8)]); A("s_waitcnt lgkmcnt(0)", "s_barrier")
for qt in range(6):
    A(*qk_mfmas(U(0, qt, 0))); A("s_nop 7")
    for j in range(4): A(f"v_max3_f32 v{vM+qt}, v{vM+qt}, v{vS+2*j}, v{vS+2*j+1}")
A(f"s_add_u32 s{sIt}, s{sIt}, 1", f"s_cmp_lt_u32 s{sIt}, 16", "s_cbranch_scc1 L_maxloop")
for qt in range(6):
    m = vM + qt
    A(f"v_mov_b32 v{vT}, v{m}", "s_nop 1", f"v_permlane32_swap_b32 v{vT}, v{m}", "s_nop 1", f"v_max_f32 v{m}, v{m}, v{vT}",
      f"v_mov_b32 v{vT}, v{m}", "s_nop 1", f"v_permlane16_swap_b32 v{vT}, v{m}", "s_nop 1", f"v_max_f32 v{m}, v{m}, v{vT}",
      f"v_mul_f32 v{m}, s{sC}, v{m}", f"v_sub_f32 v{m}, 0, v{m}")
for r in range(vO, 256, 2): A(f"v_mov_b64 {vr(r,2)}, 0")
for r in range(12): A(f"v_accvgpr_write_b32 a{aL+r}, 0")
kv_offset(sCur, sPoff)
if a.rot: A(f"s_mov_b32 s{sBase}, s{sPoff}", f"s_mov_b32 s{sRot}, 0")
A(f"s_mov_b32 s{sIt}, 0")
L("L_slowloop")
A(*kv_issue(0)); A("s_waitcnt vmcnt(0)", "s_barrier")
A(*[k_read(0, n) for n in range(8)]); A("s_waitcnt lgkmcnt(0)")
A(*[v_read(0, n) for n in range(16)]); A("s_waitcnt lgkmcnt(0)", "s_barrier")
for qt in range(6):
    u = U(0, qt, 0)
    A(*qk_mfmas(u)); A("s_nop 7")
    for j in range(8): A(f"v_fma_f32 v{vS+j}, v{vS+j}, s{sC}, v{vM+qt}")
    for j in range(8): A(sm_e(u, j))
    A("s_nop 0")
    for k in range(4): A(sm_c(u, k))
    A("s_nop 1"); A(*pv_mfmas(u))
A(f"s_add_u32 s{sIt}, s{sIt}, 1", f"s_cmp_lt_u32 s{sIt}, 16", "s_cbranch_scc1 L_slowloop")
A("s_nop 7")
for qt in range(6): A(*(norm_a(qt) + norm_b(qt) + back_ops(qt) + store_ops(qt, SP)))
A("s_branch L_pend")
L("L_done")
if a.probe >= 0 or a.probec:
    A("s_waitcnt vmcnt(0)"); stamp()
    if a.probec: A(f"s_sub_u32 s{sSt+8}, s{sSt+10}, s{sSt+8}", f"s_lshr_b32 s{sSt+8}, s{sSt+8}, 3", f"s_add_u32 s{sSt+6}, s{sSt+6}, s{sSt+8}")
    L("L_spin")
    A(f"s_memrealtime s[{sSt}:{sSt+1}]", "s_waitcnt lgkmcnt(0)", f"s_sub_u32 s{sSt}, s{sSt}, s{sSt+6}", f"s_cmp_lt_i32 s{sSt}, 10000", "s_cbranch_scc1 L_spin")
if a.stamps:
    A("s_waitcnt vmcnt(0)"); stamp()
    A(f"v_lshlrev_b32 v{vT}, 3, v0", f"s_lshl_b32 s{sT}, s2, 2", f"s_add_u32 s{sT}, s{sT}, s{sWV}", f"s_lshl_b32 s{sT}, s{sT}, 9",
      f"buffer_store_dwordx2 {vr(vStamp,2)}, v{vT}, {sreg(SRD_W,4)}, s{sT} offen")
L("L_exit")
A("s_endpgm")

resolve(trace)
errs = verify(trace)
for e in errs[:40]: print("VERIFY:", e, file=sys.stderr)
if a.est:
    for (name, n0, n1, nm) in est: print(f"est {name}: {estimate(code[n0:n1])} cycles, {nm} mfma", file=sys.stderr)
if a.est:
    for tau in (260, 300, 340):
        seq = [i for i, x in trace]
        res = []
        for nmf in (6 * 102, ):
            cnt = 0; cut = 0
            for k, i in enumerate(seq):
                if i.kind == "mfma":
                    cnt += 1
                    if cnt == nmf: cut = k; break
            res.append(simulate(seq[:cut], tau=tau)[1])
        print(f"sim tau={tau}: 6 tiles of work done at {res} -> virtual start {res[0] - 6*1705}", file=sys.stderr)
hdr = open("standalone__mha_softmax__near_ridge.s.ref").read().split("; Override launch")[0]
o = [hdr.rstrip(), f"; @launch grid=(256,1,1) block=(256,1,1) lds={LDS}", '.amdgcn_target "amdgcn-amd-amdhsa--gfx950"',
     ".text", f".globl {NAME}", ".p2align 8", f".type {NAME},@function"]
for i in code:
    t = i.render()
    if t is None: continue
    o.append(t if i.kind == "label" or t.startswith(".") else "    " + t.rstrip())
o += ['.section .rodata,"a"', ".p2align 6", f".amdhsa_kernel {NAME}", """  .amdhsa_next_free_vgpr 512
  .amdhsa_next_free_sgpr 102
  .amdhsa_accum_offset 256
  .amdhsa_group_segment_fixed_size 0
  .amdhsa_kernarg_size 48
  .amdhsa_user_sgpr_count 2
  .amdhsa_user_sgpr_kernarg_segment_ptr 1
  .amdhsa_system_sgpr_workgroup_id_x 1
  .amdhsa_float_denorm_mode_32 3""", ".end_amdhsa_kernel"]
print("\n".join(o))
sys.exit(1 if errs else 0)
```

```python
import sys, argparse, struct
from asmlib import *
ap = argparse.ArgumentParser()
ap.add_argument("--lp", default="nt")
ap.add_argument("--sp", default="sc1+nt")
ap.add_argument("--spa", default="sc1+nt")
ap.add_argument("--hmap", type=int, default=1)
ap.add_argument("--stamps", type=int, default=0)
ap.add_argument("--probe", type=int, default=-1)
ap.add_argument("--force_redo", type=int, default=0)
ap.add_argument("--cpf", type=int, default=1)
ap.add_argument("--rot", type=int, default=0)
ap.add_argument("--dmapos", default="0,0,1,1")
ap.add_argument("--est", type=int, default=0)
ap.add_argument("--cpfm", type=int, default=0)
ap.add_argument("--stpos", default="2,11")
ap.add_argument("--dpos", default="0,5,0,14,1,5,1,16")
ap.add_argument("--opat", type=int, default=2)
ap.add_argument("--smpos", type=int, default=4)
ap.add_argument("--smf", type=int, default=3)
ap.add_argument("--slp", type=int, default=0)
ap.add_argument("--jit", type=int, default=0)
ap.add_argument("--var", type=int, default=0)
ap.add_argument("--qw", type=int, default=1)
ap.add_argument("--jstep", type=int, default=2)
ap.add_argument("--start", type=int, default=2)
ap.add_argument("--spl", default="")
ap.add_argument("--qkrev", type=int, default=1)
ap.add_argument("--softb", default="")
ap.add_argument("--pre", type=int, default=1)
ap.add_argument("--fin2", type=int, default=1)
ap.add_argument("--dma0", type=int, default=0)
ap.add_argument("--ndef", type=int, default=0)
ap.add_argument("--qdelay", type=int, default=2)
ap.add_argument("--oper", type=int, default=2)
ap.add_argument("--nb", type=int, default=6)
ap.add_argument("--soft", default="")
ap.add_argument("--probec", default="")
ap.add_argument("--abl", default="")
ap.add_argument("--pad", type=int, default=0)
a = ap.parse_args()
pol = lambda s: s.replace("+", " ").replace("-", "")
LP, SP, SPA = pol(a.lp), pol(a.sp), pol(a.spa)

NAME = "standalone__mha_softmax__near_ridge_kernel"
PIECE = 1056
SLOT = 16 * PIECE
NS = 3
RING = NS * SLOT
QP = 1088
REGW = 24 * QP
REG = RING
FLAGS = REG + 4 * REGW
LDS = FLAGS + 64
assert LDS <= 163840
KBYTES = 16 * 32 * 512 * 128 * 2
CSCALE = struct.unpack("<I", struct.pack("<f", 1.4426950408889634 * 128 ** -0.5))[0]

if "cone" in a.abl or "nomul" in a.abl: CSCALE = 0x3f800000
sWV = 3
sQp, sOp = 4, 10
SRD_Q, SRD_KV, SRD_O, SRD_X = 16, 20, 24, 28
sC, sPoff = 32, 33
sR, sW, sD, sT = 35, 36, 37, 38
sWpart, sIt, sCur = 39, 40, 41
sXoff, sXm = 42, 43
sX0, sReg, sKVoffN, sKVoff = 44, 45, 46, 48
sBad = 50
sRot, sBase = 47, 49
sFlag, sPend = 52, 54
sHA, sHB = 56, 57
sT2, sLo, sHi, sCm = 59, 60, 61, 62
SRD_W, sSt = 64, 68
vDMA, vK, vV, vQ, vOw, vOr, vKl, vVl, vX = 1, 2, 3, 4, 5, 6, 7, 8, 9
vT = 10
vM = 16
vStamp = 22
vS = 24
vE = 48
vO = 64
aQ, aK, aV, aL, aONE, aSM = 0, 96, 160, 224, 236, 244
vP, vIdx = 40, 13

SH = 1 if a.start == 3 else 0
X0 = a.start + a.jit
def vi(x): return 3 if x == -1 else (x + SH if x >= 3 else x)
def SL(x): return (vi(x) % NS) * SLOT
def BF(x): return vi(x) % 2
def vr(b, n): return f"v[{b}:{b+n-1}]"
def ar(b, n): return f"a[{b}:{b+n-1}]"
def sreg(b, n): return f"s[{b}:{b+n-1}]"
def Sbuf(n): return vS + 8 * (n % 2)
def Pbuf(n): return vP + 4 * (n % 2)
def Oreg(qt, dt): return vO + 32 * qt + 4 * dt

code = []
trace = []
ctx = [None]
def E(i, tr=True):
    if isinstance(i, str): i = Ins(i)
    code.append(i)
    if tr: trace.append((i, ctx[0]))
    return i
def A(*xs):
    for x in xs: E(x)
def L(s): E(s + ":")
def C(s): E("; " + s)

MF = "v_mfma_f32_16x16x32_bf16"
class U:
    def __init__(s, x, q, n): s.x, s.q, s.n = x, q, n
def qk_mfmas(u):
    r = []
    for kt in range(2):
        d = vr(Sbuf(u.n) + 4 * kt, 4)
        for i, ks in enumerate([3, 2, 1, 0] if (kt == 1 and a.qkrev) else range(4)):
            r.append(f"{MF} {d}, {ar(aK + 32*BF(u.x) + 16*kt + 4*ks, 4)}, {ar(aQ + 16*u.q + 4*ks, 4)}, {'0' if i == 0 else d}")
    return r
def pv_mfmas(u, first=False, dense=True):
    r = []
    p = vr(Pbuf(u.n), 4)
    for dt in range(8):
        d = vr(Oreg(u.q, dt), 4)
        r.append(f"{MF} {d}, {ar(aV + 32*BF(u.x) + 4*dt, 4)}, {p}, {'0' if first else d}")
    d = ar(aL + 4 * (u.q // 2), 4)
    if dense: r.append(f"{MF} {d}, {ar(aONE + 4 * (u.q % 2), 4)}, {p}, {'0' if (first and u.q % 2 == 0) else d}")
    return r
def nomul(u): return "nomul" in a.abl or (a.pre and u.x < 16)
def sm_f(u, j): return f"v_mul_f32 v{Sbuf(u.n)+j}, s{sC}, v{Sbuf(u.n)+j}"
def sm_e(u, j): return f"v_exp_f32 v{Sbuf(u.n)+j}, v{Sbuf(u.n)+j}"
def sm_c(u, k): return f"v_cvt_pk_bf16_f32 v{Pbuf(u.n)+k}, v{Sbuf(u.n)+2*k}, v{Sbuf(u.n)+2*k+1}"
def k_read(x, n, dyn=False):
    kt, ks = n // 4, n % 4
    base, off = (vK, 0) if dyn else (vKl, SL(x))
    return Ins(f"ds_read_b128 {ar(aK + 32*BF(x) + 16*kt + 4*ks, 4)}, v{base} offset:{off + kt*512 + ks*64}", "K" if dyn else f"K{x}")
def v_read(x, n, dyn=False):
    dt, kt = n // 2, n % 2
    base, off = (vV, 0) if dyn else (vVl, SL(x))
    return Ins(f"ds_read_b64_tr_b16 {ar(aV + 32*BF(x) + 4*dt + 2*kt, 2)}, v{base} offset:{off + kt*512 + dt*32}", "V" if dyn else f"V{x}")
vQt, vPp, sMask = 48, 14, 34
def pre_ops(qt, ks):
    r = []
    for j in range(4):
        r += [f"v_lshlrev_b32 v{vPp+2*j}, 16, v{vQt+4*ks+j}", f"v_and_b32 v{vPp+2*j+1}, s{sMask}, v{vQt+4*ks+j}"]
    r += [f"v_pk_mul_f32 {vr(vPp+2*j,2)}, {vr(vPp+2*j,2)}, {sreg(sC,2)} op_sel_hi:[1,0]" for j in range(4)]
    r += [f"v_cvt_pk_bf16_f32 v{vPp+2*j}, v{vPp+2*j}, v{vPp+2*j+1}" for j in range(4)]
    r += [f"v_accvgpr_write_b32 a{aQ+16*qt+4*ks+j}, v{vPp+2*j}" for j in range(4)]
    return r
def q_read(qt, ks, hd, raw=False):
    if raw: return Ins(f"ds_read_b128 {vr(vQt + 4*ks, 4)}, v{vQ} offset:{qt*4*QP + 64*ks}", f"Q{hd}_{qt}_{ks}")
    return Ins(f"ds_read_b128 {ar(aQ + 16*qt + 4*ks, 4)}, v{vQ} offset:{qt*4*QP + 64*ks}", f"Q{hd}_{qt}")
def dma(srd, soff, off, tag):
    return Ins(f"buffer_load_dwordx4 v{vDMA}, {sreg(srd,4)}, {soff} offen offset:{off} {LP} lds", tag)
def o_store(reg, soff, off, sp):
    return Ins(f"buffer_store_dwordx4 {reg}, v{vDMA}, {sreg(SRD_O,4)}, {soff} offen offset:{off} {sp}", "st")

nst = [0]
def stamp():
    nst[0] += 1
    if a.probe == nst[0] - 1:
        A(f"s_memrealtime s[{sSt+6}:{sSt+7}]", "s_waitcnt lgkmcnt(0)")
    if a.probec:
        pa, pb = map(int, a.probec.split(","))
        if nst[0] - 1 == 0: A(f"s_memrealtime s[{sSt+6}:{sSt+7}]", "s_waitcnt lgkmcnt(0)")
        if nst[0] - 1 == pa: A(f"s_memtime s[{sSt+8}:{sSt+9}]", "s_waitcnt lgkmcnt(0)")
        if nst[0] - 1 == pb: A(f"s_memtime s[{sSt+10}:{sSt+11}]", "s_waitcnt lgkmcnt(0)")
    if not a.stamps: return
    A(f"s_memtime s[{sSt}:{sSt+1}]", f"s_memrealtime s[{sSt+2}:{sSt+3}]", "s_waitcnt lgkmcnt(0)",
      f"s_mov_b32 s{sSt+4}, m0", f"s_mov_b32 m0, s{sSt+5}",
      f"v_writelane_b32 v{vStamp}, s{sSt}, m0", f"v_writelane_b32 v{vStamp+1}, s{sSt+2}, m0",
      f"s_add_u32 s{sSt+5}, s{sSt+5}, 1", f"s_mov_b32 m0, s{sSt+4}")

lst = [0]
def light_stamp():
    k = lst[0]; lst[0] += 1
    A(f"s_getreg_b32 s{sSt+8}, hwreg(HW_REG_SHADER_CYCLES)") if False else None
    stamp()
COST = {"valu": 4, "trans": 8, "ds": 4, "vmem": 12, "salu": 0, "wait": 0, "barrier": 24}
def cost(i):
    if i.text.startswith("ds_write2"): return 20
    if i.text.startswith("buffer_store"): return 40
    return COST[i.kind]
class Phase:
    def __init__(s): s.mf, s.front, s.back, s.steps, s.pre = [], [], [], [], {}
    def step(s, qk=None, sm=None, pv=None, first=False, reads=(), early=False, hole=False, smf=False):
        g0 = len(s.mf)
        m = (qk_mfmas(qk) if qk else []) + (pv_mfmas(pv, first, not smf) if pv else [])
        if smf:
            reads = list(reads)
            odd = pv.q % 2
            assert pv.n % 2 == odd
            if odd: m.insert(a.smpos, f"v_smfmac_f32_16x16x64_bf16 {ar(aL + 4 * (pv.q // 2), 4)}, {ar(aSM, 4)}, {vr(vP, 8)}, v{vIdx}")
            s.mf += m; s.front += [[] for _ in m]; s.back += [[] for _ in m]
            s.steps.append(g0)
            f = lambda j: sm_f(sm, j); c = lambda k: sm_c(sm, k)
            cp = sm_c(pv, 3)
            if nomul(sm):
                pat = {0: [cp], 6: [c(0)], 10: [c(1)], 12: [c(2)], 16: [c(3)]} if odd else {6: [c(0)], 10: [c(1)], 12: [c(2)]}
                rg = [0, 2, 4, 6]
            elif not odd:
                pat = {0: [f(0), f(1)], 2: [f(2)], 4: [c(0), f(3)], 6: [f(4)], 8: [c(1), f(5)], 10: [f(6)], 12: [c(2), f(7)]}
                rg = [2, 6, 10, 14]
            elif early:
                pat = {0: [cp, f(0)], 2: [f(1)], 4: [f(2)], 6: [f(3)], 8: [f(4)], 10: [c(0), f(5)], 12: [c(1), f(6)], 14: [c(2), f(7)], 16: [c(3)]}
                rg = [2, 4, 6, 8]
            else:
                pat = {0: [cp, f(0)], 2: [f(1)], 4: [f(2), f(3)], 6: [c(0)], 8: [f(4), f(5)], 10: [c(1)], 12: [f(6), f(7)], 14: [c(2)], 16: [c(3)]}
                rg = [2, 6, 10, 14]
                if a.opat == 1:
                    pat = {0: [cp, f(0)], 2: [f(1)], 4: [f(2)], 6: [f(3)], 8: [c(0), f(4)], 10: [f(5)], 12: [c(1), f(6)], 14: [c(2), f(7)], 16: [c(3)]}
                    rg = [2, 6, 10, 16]
                if a.opat == 2:
                    pat = {0: [cp, f(0)], 2: [f(1), f(2)], 4: [f(3)], 6: [c(0)], 8: [f(4), f(5)], 10: [c(1)], 12: [f(6), f(7)], 14: [c(2)], 16: [c(3)]}
                    rg = [4, 6, 10, 14]
            for j in range(8): pat[2 * j + 1] = [sm_e(sm, j)]
            for g, v in pat.items(): s.back[g0 + g] += [Ins(t) for t in v]
            for g in rg: s.front[g0 + g].append(reads.pop(0))
            return g0
        s.mf += m; s.front += [[] for _ in m]; s.back += [[] for _ in m]
        s.steps.append(g0)
        if not qk: s.before(g0, "s_nop 1")
        reads = list(reads)
        if len(m) == 17 and sm:
            f = lambda j: sm_f(sm, j); c = lambda k: sm_c(sm, k)
            if early:
                pat = {0: [f(0)], 2: [f(1)], 4: [f(2)], 6: [f(3)], 8: [f(4), f(5)], 10: [c(0), f(6)], 12: [c(1), f(7)], 14: [c(2)], 16: [c(3)]}
                rg = [0, 2, 4, 6]
            else:
                pat = {0: [f(0), f(1)], 2: [f(2)], 4: [c(0), f(3)], 6: [f(4)], 8: [c(1), f(5)], 10: [f(6)], 12: [c(2), f(7)], 16: [c(3)]}
                rg = [2, 6, 10, 16 if hole else 14]
            if nomul(sm):
                pat = {6: [c(0)], 10: [c(1)], 12: [c(2)], 16: [c(3)]}; rg = [0, 2, 4, 6]
            for j in range(8): pat[2 * j + 1] = [sm_e(sm, j)]
            for g, v in pat.items(): s.back[g0 + g] += [Ins(t) for t in v]
            for g in rg:
                if reads: s.front[g0 + g].append(reads.pop(0))
        elif sm:
            f = lambda j: sm_f(sm, j); c = lambda k: sm_c(sm, k); e = lambda j: sm_e(sm, j)
            pat = [[f(0), f(1), f(2), f(3)], [e(0), e(1)], [e(2), e(3)], [f(4), f(5), f(6), f(7)], [e(4), e(5)], [e(6), e(7)], [c(0), c(1)], [c(2), c(3)]]
            if nomul(sm): pat = [[e(0)], [e(1)], [e(2), c(0)], [e(3)], [e(4), c(1)], [e(5)], [e(6), c(2)], [e(7), "s_nop 0", c(3)]]
            for g, v in enumerate(pat): s.back[g0 + g] += [Ins(t) for t in v]
        if reads: s.spread(reads, g0, len(s.mf) - 1)
        return g0
    def g(s, step, k=0): return s.steps[step] + k
    def load(s, g):
        sc = [k for k, i in enumerate(s.front[g]) if i.kind in ("salu", "wait")]
        return sum(cost(i) for i in s.front[g] + s.back[g]) + 4 * len([k for k in sc if k > 0])
    def put(s, g, *ins):
        for i in ins:
            if isinstance(i, str): i = Ins(i)
            (s.back if i.kind in ("valu", "trans") else s.front)[g].append(i)
    def shadow(s, g, *ins):
        s.front[g][0:0] = [Ins(i) if isinstance(i, str) else i for i in ins]
    def before(s, g, *ins):
        s.pre.setdefault(g, []).extend(Ins(i) if isinstance(i, str) else i for i in ins)
    def spread(s, ops, g0, g1):
        ops = [Ins(i) if isinstance(i, str) else i for i in ops]
        tot = sum(max(cost(i), 1) for i in ops); cum = 0
        ptr = g0; lastback = -1
        for i in ops:
            tg = min(g1, g0 + int(cum / tot * (g1 - g0 + 1))); cum += max(cost(i), 1)
            if i.kind in ("valu", "trans"):
                cand = [g for g in range(max(ptr, tg - 1), min(g1, tg + 1) + 1) if s.load(g) + COST[i.kind] <= 8]
                g = cand[0] if cand else max(ptr, tg)
                s.back[g].append(i); lastback = g
            else:
                lo = max(ptr, tg, lastback + 1)
                if lo > g1:
                    g = g1; s.back[g].append(i); lastback = g
                else:
                    rng = range(lo, min(g1, lo + 2) + 1)
                    if i.kind in ("salu", "wait"): cand = [g for g in rng if not s.front[g]]
                    else: cand = [g for g in rng if s.load(g) <= 4]
                    g = cand[0] if cand else lo
                    s.front[g].append(i)
            ptr = g
    def emit(s, name=None):
        n0 = len(code)
        for g, m in enumerate(s.mf):
            if a.stamps == 4 and name in ("boundary", "finish") and g in s.steps and g > 0:
                est.append((name + str(s.steps.index(g) - 1), nb if g != s.steps[1] else n0, len(code), 0))
                light_stamp(); nb = len(code)
            for i in s.pre.get(g, []): E(i)
            if "halfsum" in a.abl and name and name.startswith("period") and (m.startswith(f"{MF} a[224:") or m.startswith(f"{MF} a[232:") or m.startswith(f"{MF} a[240:")):
                s.back[g + 1][0:0] = s.back[g]; s.back[g] = []; s.front[g + 1][0:0] = s.front[g]; s.front[g] = []
                continue
            E(m)
            for i in s.front[g] + s.back[g]: E(i)
        if name: est.append((name, n0, len(code), len(s.mf)))
est = []

def sync(kv, lg="all"):
    return [W(vm=kv, lg=lg), Ins("s_barrier")]

def adv():
    if a.rot: return [f"s_add_u32 s{sRot}, s{sRot}, 8192", f"s_and_b32 s{sRot}, s{sRot}, 0x1ffff", f"s_add_u32 s{sPoff}, s{sBase}, s{sRot}"]
    return [f"s_add_u32 s{sPoff}, s{sPoff}, 8192"]
def kv_dma(ph, gs, x, dyn=False):
    for p, g in enumerate(gs):
        if dyn:
            ph.shadow(g - 1, f"s_add_u32 m0, s{sW}, {32*p}")
            ph.put(g, dma(SRD_KV, f"s{sPoff}", 1024 * p, lambda y: f"KV{y+3}"))
        else:
            (ph.put if g - 1 in gs else ph.shadow)(g - 1, f"s_add_u32 m0, s{sWpart}, {SL(x) + 32*p}")
            ph.put(g, dma(SRD_KV, f"s{sPoff}", 1024 * p, f"KV{x}"))
    for k, i in enumerate(adv()): ph.shadow(gs[-1] + 1 + k, i)

def period(x, hd, dyn, ph=None, first=False, last=False):
    if ph is None: ph = Phase()
    s0 = len(ph.steps)
    un = lambda t, q: U(t, q, 6 * t + q)
    rdT = hd == 1 and (a.oper == 2 or (a.oper == 1 and x % 2 == 0))
    stT = hd == 1 and dyn and (a.oper == 2 or (a.oper == 1 and x % 2 == 1))
    smf = dyn and bool(a.smf >> hd & 1)
    tight = smf and not nomul(un(x, 0))
    for j in range(6):
        qk = un(x, j + 2) if j < 4 else un(x + 1, j - 4)
        sm = un(x, j + 1) if j < 5 else un(x + 1, 0)
        reads = [k_read(x + 1, 4 * j + i, dyn) for i in range(4)] if j < 2 else [v_read(x + 1, 4 * (j - 2) + i, dyn) for i in range(4)]
        ph.step(qk, sm, un(x, j), first, reads, early=(j == 5), hole=(j < (4 if hd == 0 else 3 if stT else 2)), smf=smf)
    G = lambda j, k: ph.g(s0 + j, k)
    if a.pad:
        for j in range(6): ph.back[G(j, 7)].append(Ins(f"s_nop {a.pad-1}"))
    ph.shadow(G(3, 15), W(lg="K" if dyn else f"K{x+1}"))
    if nomul(un(x, 0)): kv_dma(ph, [G(0, 8), G(0, 14), G(1, 8), G(1, 14)], x + 3, dyn)
    elif tight:
        dp = list(map(int, a.dpos.split(",")))
        kv_dma(ph, [G(dp[2*i], dp[2*i+1]) for i in range(4)], x + 3, dyn)
    elif a.dma0: kv_dma(ph, [G(0, 1), G(0, 5), G(0, 9), G(0, 14)], x + 3, dyn)
    else: kv_dma(ph, [G(0, 5), G(0, 14), G(1, 5), G(1, 14)], x + 3, dyn)
    if dyn:
        ph.shadow(G(4, 1), f"s_add_u32 s{sW}, s{sR}, s{sWpart}")
        ph.shadow(G(4, 2), f"s_add_u32 s{sT}, s{sR}, {SLOT}")
        ph.shadow(G(4, 3), f"s_cmp_eq_u32 s{sT}, {RING}")
        ph.shadow(G(4, 4), f"s_cselect_b32 s{sT}, 0, s{sT}")
        ph.shadow(G(4, 5), f"s_sub_u32 s{sD}, s{sT}, s{sR}")
        ph.shadow(G(4, 6), f"s_mov_b32 s{sR}, s{sT}")
        ph.put(G(4, 14), f"v_add_u32 v{vK}, s{sD}, v{vK}")
        ph.put(G(5, 16 if tight else 14), f"v_add_u32 v{vV}, s{sD}, v{vV}")
        if not last:
            ph.shadow(G(5, 1), f"s_add_u32 s{sIt}, s{sIt}, 1")
            if hd == 0:
                ph.shadow(G(5, 2), f"s_cmp_eq_u32 s{sIt}, 6")
                if a.rot:
                    ph.shadow(G(5, 3), f"s_cselect_b32 s{sBase}, s{sKVoffN}, s{sBase}")
                    ph.shadow(G(5, 4), f"s_add_u32 s{sPoff}, s{sBase}, s{sRot}")
                else: ph.shadow(G(5, 3), f"s_cselect_b32 s{sPoff}, s{sKVoffN}, s{sPoff}")
        if hd == 0:
            for p in range(2):
                ph.shadow(G(2 + p, 13), f"s_add_u32 m0, s{sXm}, {(QP-1024)*p}")
                ph.put(G(2 + p, 14), dma(SRD_X, f"s{sXoff}", 1024 * p, lambda y: f"QD1_{(y-2)//2 - a.qdelay}"))
            ph.shadow(G(5, 9), f"s_add_u32 s{sXm}, s{sXm}, {2*QP}")
        else:
            if stT and "nolst" not in a.abl: ph.put(G(*map(int, a.stpos.split(","))) if tight else G(2, 14), o_store(vr(vE, 4), f"s{sXoff}", 0, SPA))
        if hd == 0 or stT: ph.shadow(G(5, 11), f"s_add_u32 s{sXoff}, s{sXoff}, {2048 if hd == 0 else 1024}")
        if last and hd == 0 and a.qdelay:
            ph.shadow(G(5, 12), f"s_cmp_eq_u32 s{sIt}, {a.qdelay}")
            ph.shadow(G(5, 13), f"s_cselect_b32 s{SRD_X+2}, 24576, s{SRD_X+2}")
            ph.shadow(G(5, 14), f"s_cselect_b64 {sreg(sXoff,2)}, {sreg(sX0,2)}, {sreg(sXoff,2)}")
        if last: ph.shadow(G(5, 15), f"s_cmp_lt_u32 s{sIt}, 6")
    if rdT:
        ph.put(G(2, 14) if tight else G(3, 16), Ins(f"ds_read_b128 {vr(vE, 4)}, v{vX}", "T"))
        ph.put(G(3, 16) if tight else G(4, 16), f"v_add_u32 v{vX}, {QP}, v{vX}")
    ph.shadow(G(5, 16), *sync((lambda y: f"KV{y+2}") if dyn else f"KV{x+2}", "all" if dyn else [f"V{x+1}"]))
    return ph

def period_jit(x, ph):
    s0 = len(ph.steps)
    un = lambda t, q: U(t, q, 6 * t + q)
    for j in range(6):
        ph.step(un(x, j + 2) if j < 4 else un(x + 1, j - 4), un(x, j + 1) if j < 5 else un(x + 1, 0), un(x, j))
    G = lambda j, k: ph.g(s0 + j, k)
    ph.shadow(G(0, 7), W(lg=f"V{x}"))
    js = a.jstep
    ph.shadow(G(js, 0), *sync(f"KV{x+1}", None))
    for n in range(8): ph.put(G(js, [2, 2, 4, 4, 6, 8, 8, 10][n]), k_read(x + 1, n))
    ph.shadow(G(3, 16), W(lg=f"K{x+1}"))
    kv_dma(ph, [G(js, 14), G(js + 1, 8), G(js + 1, 14), G(js + 2, 8)], x + 3)
    ph.spread([v_read(x + 1, n) for n in range(16)], G(js + 1, 0), G(5, 8))
    ph.shadow(G(5, 16), *sync(f"KV{x+2}"))

def main_loop(hd, x0, x1):
    odd = (x1 - x0) % 2 == 0
    if odd: A(f"s_branch L_mid{hd}")
    E(".p2align 3")
    t0 = len(trace)
    L(f"L_loop{hd}")
    halves = []
    for h in range(2):
        if h and odd: L(f"L_mid{hd}")
        b = len(code)
        if a.stamps == 2: stamp()
        sf = a.soft if hd == 0 else a.softb
        if sf:
            it, sl = sf.split(",")
            A(f"s_cmp_lt_u32 s{sIt}, {int(it)+h}", f"s_cbranch_scc0 L_soft{hd}{h}", f"s_sleep {sl}"); L(f"L_soft{hd}{h}")
        period(x1 - 1 + h, hd, True, last=(h == 1)).emit(f"period{hd}{h}")
        if h: A(f"s_cbranch_scc1 L_loop{hd}")
        halves.append(code[b:])
    del trace[t0:]
    for x in range(x0, x1 + 1):
        trace.extend((i, x) for i in halves[(x - x1 - 1) % 2])

def window(srd, ptr, hreg):
    A(f"s_mul_i32 s{sT}, s{hreg}, 98304", f"s_mul_i32 s{sT2}, s{sWV}, 24576", f"s_add_u32 s{sT}, s{sT}, s{sT2}",
      f"s_add_u32 s{srd}, s{ptr}, s{sT}", f"s_addc_u32 s{srd+1}, s{ptr+1}, 0", f"s_mov_b32 s{srd+2}, 24576")
def kv_offset(hreg, kv):
    A(f"s_lshl_b32 s{kv}, s{hreg}, 17", f"s_and_b32 s{sT}, s{sWV}, 1", f"s_lshl_b32 s{sT}, s{sT}, 12", f"s_add_u32 s{kv}, s{kv}, s{sT}")
def kv_issue(x):
    r = []
    for p in range(4):
        r += [f"s_add_u32 m0, s{sWpart}, {SL(x) + 32*p}", "s_nop 0", dma(SRD_KV, f"s{sPoff}", 1024*p, f"KV{x}")]
    return r + adv()
def q_issue(k):
    r = [f"s_mov_b32 s{sT2}, {4096*k}"]
    for p in range(4):
        r += [f"s_add_u32 m0, s{sReg}, {4*k*QP + (QP-1024)*p}", "s_nop 0", dma(SRD_Q, f"s{sT2}", 1024*p, f"QD0_{k}")]
    return r

def norm_a(qt):
    r = [f"v_accvgpr_read_b32 v{vT+1}, a{aL + 2*qt}", f"v_accvgpr_read_b32 v{vT}, a{aL + 2*qt + 1}", f"v_add_f32 v{vT+1}, v{vT+1}, v{vT}",
         f"v_rcp_f32 v{vT}, v{vT+1}", f"v_cmp_nle_f32 vcc, s{sLo}, v{vT+1}"]
    for o in range(Oreg(qt, 0), Oreg(qt, 8), 2):
        r.append(f"v_pk_mul_f32 {vr(o,2)}, {vr(o,2)}, {vr(vT,2)} op_sel_hi:[1,0]")
    return r
def norm_b(qt):
    r = [f"s_or_b64 {sreg(sBad,2)}, {sreg(sBad,2)}, vcc", f"v_cmp_nge_f32 vcc, s{sHi}, v{vT+1}", f"v_add_u32 v{vT+2}, {qt*4*QP}, v{vOw}"]
    for dt in range(0, 8, 2):
        for d in (dt, dt + 1):
            o = Oreg(qt, d)
            r += [f"v_cvt_pk_bf16_f32 v{o}, v{o}, v{o+1}", f"v_cvt_pk_bf16_f32 v{o+1}, v{o+2}, v{o+3}"]
        if dt == 0: r.append(f"s_or_b64 {sreg(sBad,2)}, {sreg(sBad,2)}, vcc")
        r.append(Ins(f"ds_write2_b64 v{vT+2}, {vr(Oreg(qt, dt),2)}, {vr(Oreg(qt, dt+1),2)} offset0:{4*dt} offset1:{4*dt+4}", f"W{qt}"))
    return r
def back_ops(qt):
    return [Ins(f"ds_read_b128 {vr(Oreg(qt, j), 4)}, v{vOr} offset:{qt*4*QP + QP*j}", f"B{qt}_{j}") for j in range(4)]
def store_ops(qt, sp):
    if qt >= 6 - a.ndef: sp = pol(a.spl)
    r = [f"s_mov_b32 s{sT2}, {4096*qt}"]
    for j in range(4): r += [W(lg=f"B{qt}_{j}"), o_store(vr(Oreg(qt, j), 4), f"s{sT2}", 1024*j, sp)]
    return r
def park_ops(c, t):
    r = vr(vE + 4 + 4 * t, 4)
    return [Ins(f"ds_read_b128 {r}, v{vOr} offset:{c*QP}", f"P{c}")], [f"s_mov_b32 s{sT}, {1024*c}", W(lg=f"P{c}"), o_store(r, f"s{sT}", 0, SPA)]
def q_dma(ph, gs, k, srd=SRD_Q, hd=0):
    ph.shadow(gs[0] - 2, f"s_mov_b32 s{sT2}, {4096*k}")
    for p, g in enumerate(gs):
        (ph.put if g - 1 in gs else ph.shadow)(g - 1, f"s_add_u32 m0, s{sReg}, {4*k*QP + (QP-1024)*p}")
        ph.put(g, dma(srd, f"s{sT2}", 1024*p, f"QD{hd}_{k}"))
NPRE = a.nb
NFIN = 24 - a.nb - 6 * a.oper
def park(ph, c, t, gr, gs):
    rd, st = park_ops(c, t)
    ph.put(gr, *rd)
    ph.shadow(gs - 1, st[0]); ph.shadow(gs, st[1]); ph.put(gs, st[2])
def flag_ops(bit):
    return [f"s_cmp_lg_u64 {sreg(sBad,2)}, 0", f"s_cselect_b32 s{sT2}, {0 if a.abl else bit}, 0", f"s_or_b32 s{sFlag}, s{sFlag}, s{sT2}", f"s_mov_b64 {sreg(sBad,2)}, 0"]

def boundary():
    order = [(14, 0), (14, 1), (14, 2), (15, 0), (15, 1), (15, 2), (14, 3), (15, 3), (14, 4), (15, 4), (14, 5), (15, 5), (16, 0), (16, 1)]
    us = [U(t, q, 84 + i) for i, (t, q) in enumerate(order)]
    ph = Phase()
    for j in range(12):
        reads = []
        if j in (1, 2): reads = [v_read(15, 8 * (j - 1) + n) for n in range(8)]
        if j == 0:
            reads = [k_read(15, n) for n in range(8)]
            g0 = ph.step(us[j + 2], us[j + 1], us[j], reads=reads[:4], early=True)
            for n in range(4): ph.put(g0 + 1 + 2 * n, reads[4 + n])
        else:
            ph.step(us[j + 2], us[j + 1], us[j], reads=reads)
    G = ph.g
    ph.shadow(G(0, 16), W(lg="K15"))
    ph.shadow(G(3, 7), W(lg="V15"))
    kv_dma(ph, [G(0, 11), G(0, 15), G(1, 11), G(1, 15)], 17)
    pre = {k: [W(vm=f"QD1_{k}")] + [q_read(k, ks, 1) for ks in range(4)] for k in range(6)}
    ph.spread(pre[0] + pre[1], G(3, 0), G(3, 16))
    ph.spread(pre[2], G(4, 0), G(4, 16)); ph.spread(pre[3], G(6, 0), G(6, 16))
    for k in range(6 - a.qdelay, 6):
        j = 2 + 2 * (k - (6 - a.qdelay))
        q_dma(ph, [G(j, 5), G(j, 13), G(j + 1, 5), G(j + 1, 13)], k, SRD_X, 1)
    ph.spread(pre[4], G(10, 0), G(10, 7))
    ph.shadow(G(8, 7), *sync("KV16", "V15"))
    ph.spread([k_read(16, n) for n in range(8)], G(8, 8), G(9, 8))
    ph.shadow(G(9, 16), W(lg=["K16", "Q1_0", "Q1_1"]))
    kv_dma(ph, [G(9, 9), G(9, 11), G(9, 13), G(9, 15)], 18)
    ph.spread([v_read(16, n) for n in range(16)], G(10, 10), G(11, 8))
    ph.shadow(G(11, 16), *sync("KV17", ["V16", "Q1_4"]))
    period(16, 1, False, ph, first=True)
    ph.spread(pre[5], G(12, 7), G(12, 13))
    ph.shadow(G(14, 15), W(lg="Q1_5"))
    lo, hi = G(6, 3), G(17, 3)
    avail = [G(6, 0), G(8, 0), G(10, 0), G(13, 2), G(15, 0)]
    for c in range(0 if "nobst" in a.abl else NPRE):
        g = max(lo + (hi - lo) * c // max(NPRE - 1, 1), avail[c // 4])
        while (g - ph.steps[0]) % 17 not in (1, 3, 5, 7): g += 1
        park(ph, c, c % 2, g, g + 8)
    for k, (ga, gb) in enumerate([(G(4, 5), G(5, 16)), (G(6, 1), G(7, 16)), (G(8, 5), G(9, 16)), (G(11, 9), G(13, 0)), (G(13, 1), G(14, 16)), (G(15, 1), G(16, 16))]):
        ph.put(ga, *norm_a(k))
        ph.spread(norm_b(k), ga + 1, gb)
    for k, i in enumerate(flag_ops(1) + [f"s_mov_b32 s{sIt}, 0", f"s_mov_b32 s{sXoff}, {1024*NPRE}", f"s_mov_b32 s{sR}, {SL(18)}", f"s_add_u32 s{sW}, s{sWpart}, {SL(17)}"]):
        ph.shadow(G(17, 1 + k), i)
    ph.put(G(17, 14), f"v_add_u32 v{vK}, {SL(18)}, v{vKl}")
    ph.put(G(16, 14), f"v_add_u32 v{vV}, {SL(18)}, v{vVl}")
    ph.emit("boundary")

def finish():
    order = [(29, q) for q in range(6)] + [(t, q) for q in range(6) for t in (30, 31)]
    if a.fin2: order[7], order[8] = order[8], order[7]
    us = [U(t, q, 174 + i) for i, (t, q) in enumerate(order)] + [None, None]
    ph = Phase()
    vr30 = [v_read(30, n) for n in range(16)]
    rd = {0: [k_read(30, n) for n in range(6)], 1: [k_read(30, n) for n in range(6, 8)] + vr30[:4], 2: vr30[4:10], 5: vr30[12:]}
    if a.fin2: rd = {0: [k_read(30, n) for n in range(5)], 1: [k_read(30, n) for n in range(5, 8)] + vr30[:2], 2: vr30[2:7], 3: vr30[7:12], 4: vr30[12:]}
    for j in range(18):
        ph.step(us[j + 2], us[j + 1], us[j], reads=rd.get(j, []), early=(j == (4 if a.fin2 else 5)))
    G = ph.g
    for k, i in enumerate([f"s_mul_i32 s{sT}, s{sHB}, 98304", f"s_mul_i32 s{sT2}, s{sWV}, 24576", f"s_add_u32 s{sT}, s{sT}, s{sT2}",
                           f"s_add_u32 s{SRD_O}, s{sOp}, s{sT}", f"s_addc_u32 s{SRD_O+1}, s{sOp+1}, 0"]):
        ph.shadow(G(8, 11 + k), i)
    for c in range(NFIN):
        g = G(0, 1) + (G(8, 1) - G(0, 1)) * c // max(NFIN - 1, 1)
        while g % 17 not in (1, 3, 5, 7, 10, 12, 14, 16): g += 1
        park(ph, 24 - NFIN + c, c % 2, g, g + 8)
    if not a.fin2:
        ph.spread(vr30[10:12], G(3, 0), G(3, 6))
        ph.shadow(G(3, 7), *sync("KV31", "K30"))
        ph.spread([k_read(31, n) for n in range(8)], G(3, 8), G(4, 10))
        ph.shadow(G(4, 16), W(lg="K31"))
        ph.spread([v_read(31, n) for n in range(16)], G(5, 10), G(6, 16))
        ph.shadow(G(6, 7), W(lg="V30"))
        ph.shadow(G(7, 7), W(lg="V31"))
    else:
        ph.shadow(G(3, 15), W(lg="K30"))
        ph.shadow(G(4, 12), *sync("KV31", None))
        ph.spread([k_read(31, n) for n in range(8)], G(4, 13), G(5, 10))
        ph.shadow(G(5, 16), W(lg="K31"))
        ph.spread([v_read(31, n) for n in range(16)], G(6, 0), G(7, 16))
        ph.shadow(G(8, 7), W(lg="V31"))
    for k in range(4):
        j = 8 + 2 * k
        if a.fin2 and k == 0:
            ph.put(G(9, 5 if "nomul" in a.abl else 3), *norm_a(0))
            ph.spread(norm_b(0) + back_ops(0), G(9, 6 if "nomul" in a.abl else 4), G(9, 16))
            continue
        ph.put(G(j, 5 if "nomul" in a.abl else 3), *norm_a(k))
        if a.fin2 and k == 1:
            nb = norm_b(1); st = store_ops(0, SP)
            ph.spread(st[:5] + nb[:9] + st[5:7] + nb[9:14] + st[7:] + nb[14:] + back_ops(1), G(j, 6 if "nomul" in a.abl else 4), G(j + 1, 2))
            ph.spread(store_ops(k, SP), G(j + 1, 7), G(j + 1, 16))
            continue
        ph.spread(norm_b(k) + back_ops(k), G(j, 6 if "nomul" in a.abl else 4), G(j, 16))
        ph.spread(store_ops(k, SP), G(j + 1, 4), G(j + 1, 16))
    ph.put(G(16, 2), *norm_a(4))
    ph.spread(norm_b(4) + back_ops(4), G(16, 3), G(17, 4))
    ph.emit("finish")
    n0 = len(code)
    st4 = store_ops(4, SP)
    A(*st4[:5]); A("s_nop 2")
    A(*norm_a(5)); nb = norm_b(5)
    A(*(nb[:9] + st4[5:7] + nb[9:14] + st4[7:] + nb[14:] + back_ops(5) + flag_ops(2) + store_ops(5, SP)))
    est.append(("tail", n0, len(code), 0))

L(NAME)
if a.stamps == 5: A("s_memtime s[80:81]", "s_memrealtime s[82:83]")
A("s_load_dwordx8 s[4:11], s[0:1], 0", "s_cmp_ge_u32 s2, 256", "s_cbranch_scc1 L_exit")
def code_prefetch():
    if a.cpfm == 0:
        C("touch ten 128-byte lines of this kernel's code per workgroup so that later instruction fetches hit in L2")
        A("s_getpc_b64 s[12:13]", f"s_lshr_b32 s{sT}, s2, 3", f"s_mulk_i32 s{sT}, 1280",
          f"v_min_u32 v{vT+1}, 9, v{vT+1}", f"v_lshl_add_u32 v{vT+1}, v{vT+1}, 7, s{sT}", f"v_min_u32 v{vT+1}, L_exit-{NAME}-1024, v{vT+1}",
          Ins(f"global_load_dword a255, v{vT+1}, s[12:13]", "code"))
    else:
        C("touch a 4 KiB slice (id mod 9) of this kernel's code, one dword per 128-byte line, so that later instruction fetches hit in L2")
        A("s_getpc_b64 s[12:13]", f"s_mul_i32 s{sT}, s2, 57", f"s_lshr_b32 s{sT}, s{sT}, 9", f"s_mulk_i32 s{sT}, 9", f"s_sub_u32 s{sT}, s2, s{sT}", f"s_lshl_b32 s{sT}, s{sT}, 12",
          f"v_lshl_add_u32 v{vT+1}, v{vT+1}, 7, s{sT}", f"v_min_u32 v{vT+1}, L_exit-{NAME}-1024, v{vT+1}",
          Ins(f"global_load_dword a255, v{vT+1}, s[12:13]", "code"))
if a.stamps: A(f"s_load_dwordx2 s[{SRD_W}:{SRD_W+1}], s[0:1], 40", f"s_mov_b32 s{sSt+5}, 0")
A(f"v_lshrrev_b32 v{vT}, 6, v0", f"v_lshrrev_b32 v{vT+1}, {3 if a.cpfm else 4}, v0", f"v_readfirstlane_b32 s{sWV}, v{vT}", "v_and_b32 v0, 63, v0", f"v_lshlrev_b32 v{vDMA}, 4, v0")
if a.cpf == 1: code_prefetch()
if a.hmap == 0: A(f"s_lshl_b32 s{sHA}, s2, 1")
else: A(f"s_mov_b32 s{sHA}, s2")
A(f"s_mov_b32 s{SRD_KV+3}, 0x20000", f"s_mov_b32 s{SRD_KV+2}, {KBYTES}", f"s_mul_i32 s{sWpart}, s{sWV}, {4*PIECE}")
kv_offset(sHA, sPoff)
if a.rot: A(f"s_mov_b32 s{sBase}, s{sPoff}", f"s_lshr_b32 s{sRot}, s2, {a.rot // 100}", f"s_mul_i32 s{sRot}, s{sRot}, {(a.rot % 100) * 8192}", f"s_and_b32 s{sRot}, s{sRot}, 0x1ffff", f"s_add_u32 s{sPoff}, s{sBase}, s{sRot}")
A(f"s_mul_i32 s{sT}, s{sHA}, 98304", f"s_mul_i32 s{sT2}, s{sWV}, 24576", f"s_add_u32 s{sT}, s{sT}, s{sT2}", f"s_mov_b32 s{SRD_Q+2}, 24576",
  f"s_mov_b32 s{SRD_Q+3}, 0x20000", f"s_mul_i32 s{sReg}, s{sWV}, {REGW}", f"s_add_u32 s{sReg}, s{sReg}, {REG}", f"s_mov_b32 m0, s{sWpart}")
A(f"s_cmp_lt_u32 s{sWV}, 2", "s_waitcnt lgkmcnt(0)", f"s_cselect_b64 {sreg(SRD_KV,2)}, s[6:7], s[8:9]")
if a.stamps: A(f"s_mov_b32 s{SRD_W+2}, 268435456", f"s_mov_b32 s{SRD_W+3}, 0x20000")
if a.stamps == 5: A("s_memtime s[84:85]", "s_memrealtime s[86:87]")
else: stamp()
if a.stamps: A("s_nop 0")
if a.slp > 0:
    A("s_bitcmp1_b32 s2, 3", "s_cbranch_scc0 L_noslp", f"s_sleep {a.slp}"); L("L_noslp")
if a.slp < 0:
    for b in range(3):
        A(f"s_bitcmp1_b32 s2, {3+b}", f"s_cbranch_scc0 L_noslp{b}", f"s_sleep {(-a.slp) << b}"); L(f"L_noslp{b}")
def fill(seq, filler):
    for i in seq:
        if i == "s_nop 0" and filler: A(filler.pop(0))
        else: A(i)
fl = [f"s_mov_b32 s{SRD_O+3}, 0x20000", f"s_mov_b32 s{SRD_X+3}, 0x20000", f"s_mov_b32 s{sFlag}, {a.force_redo}", f"s_mov_b64 {sreg(sBad,2)}, 0",
      f"s_mov_b32 s{sC}, 0x{CSCALE:08x}", f"s_mov_b32 s{sLo}, 1.0", f"s_mov_b32 s{sHi}, 0x4e800000", f"s_mov_b32 s{sIt}, {(X0 - 1) // 2}",
      f"s_add_u32 s{sHB}, s{sHA}, {256 if a.hmap else 1}", f"s_mov_b32 s{sMask}, 0xffff0000", f"s_mov_b32 s{sX0}, 0"]
fill(kv_issue(0)[2:], fl)
if a.stamps == 5: A("s_memtime s[88:89]", "s_memrealtime s[90:91]")
A(f"s_add_u32 s{SRD_Q}, s{sQp}, s{sT}", f"s_addc_u32 s{SRD_Q+1}, s{sQp+1}, 0")
if a.cpf == 2: code_prefetch()
fill(q_issue(0), fl)
if a.stamps == 5: A("s_memtime s[92:93]", "s_memrealtime s[94:95]")
if a.cpf == 3: code_prefetch()
k1 = kv_issue(1)
fill(k1[:6], fl)
C("---- per-lane LDS addresses (i = lane%16, g = lane/16)")
A(f"v_and_b32 v{vT}, 15, v0", f"v_lshrrev_b32 v{vT+1}, 4, v0")
A(f"v_and_b32 v{vT+2}, 7, v{vT}", f"v_mul_u32_u24 v{vKl}, {PIECE}, v{vT+2}", f"v_lshrrev_b32 v{vT+2}, 3, v{vT}",
  f"v_lshl_add_u32 v{vKl}, v{vT+2}, 8, v{vKl}", f"v_lshl_add_u32 v{vKl}, v{vT+1}, 4, v{vKl}")
A(f"v_bfe_u32 v{vT+2}, v0, 2, 3", f"v_mul_u32_u24 v{vVl}, {PIECE}, v{vT+2}", f"v_lshrrev_b32 v{vT+2}, 5, v0",
  f"v_lshl_add_u32 v{vVl}, v{vT+2}, 8, v{vVl}", f"v_and_b32 v{vT+2}, 3, v0", f"v_lshl_add_u32 v{vVl}, v{vT+2}, 3, v{vVl}",
  f"v_add_u32 v{vVl}, {8*PIECE}, v{vVl}")
A(f"v_cmp_eq_u32 vcc, 0, v{vT+2}", f"v_mov_b32 v{vT+4}, 0x3f803f80")
A(f"v_mul_u32_u24 v{vQ}, {QP}, v{vT+2}", f"v_cndmask_b32 v{vT+4}, 0, v{vT+4}, vcc", f"v_lshrrev_b32 v{vT+3}, 2, v{vT}",
  f"v_lshl_add_u32 v{vQ}, v{vT+3}, 8, v{vQ}", f"v_lshl_add_u32 v{vQ}, v{vT+1}, 4, v{vQ}", f"v_add_u32 v{vQ}, s{sReg}, v{vQ}")
A(f"v_lshl_add_u32 v{vT+2}, v{vT+2}, 2, v{vT+3}", f"v_mul_u32_u24 v{vOw}, 272, v{vT+2}", f"v_lshl_add_u32 v{vOw}, v{vT+1}, 3, v{vOw}",
  f"v_add_u32 v{vOw}, s{sReg}, v{vOw}", f"v_mul_u32_u24 v{vOr}, 272, v{vT+1}", f"v_lshl_add_u32 v{vOr}, v{vT}, 4, v{vOr}",
  f"v_add_u32 v{vOr}, s{sReg}, v{vOr}", f"v_add_u32 v{vX}, {NPRE*QP}, v{vOr}")
for j in range(4): A(f"v_accvgpr_write_b32 a{aONE+j}, v{vT+4}")
A(f"v_and_b32 v{vT+2}, 3, v0", f"v_cmp_eq_u32 vcc, 2, v{vT+2}", f"v_mov_b32 v{vT+3}, 0x3f803f80", f"v_bfe_u32 v{vT+2}, v0, 1, 1",
  f"v_cndmask_b32 v{vT+4}, 0, v{vT+3}, vcc", f"v_lshrrev_b32 v{vT}, 5, v0", f"v_cmp_eq_u32 vcc, v{vT}, v{vT+2}")
for j in range(4): A(f"v_accvgpr_write_b32 a{aONE+4+j}, v{vT+4}")
A(f"v_cndmask_b32 v{vT+4}, 0, v{vT+3}, vcc", f"v_and_b32 v{vT+2}, 1, v0", f"v_mul_u32_u24 v{vT+2}, 0xaaaa, v{vT+2}", f"v_add_u32 v{vIdx}, 0x4444, v{vT+2}")
for j in range(4): A(f"v_accvgpr_write_b32 a{aSM+j}, v{vT+4}")
A(f"v_add_u32 v{vK}, {SL(X0+1)}, v{vKl}", f"v_add_u32 v{vV}, {SL(X0+1)}, v{vVl}")
window(SRD_O, sOp, sHA)
if "nost" in a.abl: A(f"s_mov_b32 s{SRD_O+2}, 0")
window(SRD_X, sQp, sHB)
kv_offset(sHB, sKVoffN)
if a.qdelay: A(f"s_mov_b32 s{SRD_X+2}, 0")
A(f"s_mov_b32 s{sXoff}, 0", f"s_mov_b32 s{sXm}, s{sReg}", f"s_mov_b32 s{sR}, {SL(X0+1)}", f"s_add_u32 s{sW}, s{sWpart}, {SL(X0)}")
fill(k1[6:], fl)
assert not fl
C("---- start-up: tiles 0 and 1 are processed q-major while Q arrives")
if a.stamps == 5:
    A("s_waitcnt lgkmcnt(0)")
    for k in range(4): A(f"v_writelane_b32 v{vStamp}, s{80+4*k}, {k}", f"v_writelane_b32 v{vStamp+1}, s{82+4*k}, {k}")
    A(f"s_mov_b32 s{sSt+5}, 4")
def st3():
    if a.stamps in (3, 5): stamp()
st3()
A(*sync("KV0", None)); st3()
A(*[k_read(0, n) for n in range(8)]); A(*q_issue(1))
A(W(vm="QD0_0")); st3(); A(*[q_read(0, ks, 0, a.pre) for ks in range(4)]); A(*q_issue(2)); A(W(lg="all"))
if a.pre:
    for ks in range(4): A(*pre_ops(0, ks))
    A("s_nop 1")
assert a.pre
if a.start == 2:
    order = [(t, q) for q in range(6) for t in range(2)] + [(2, 0), (2, 1)]
    qstep = {2: 3, 3: 5, 4: 7, 5: 9}
else:
    order = [(t, q) for q in range(4) for t in range(2)] + [(2, 0), (2, 1), (2, 2), (2, 3), (1, 4), (2, 4), (1, 5), (2, 5), (-1, 4), (-1, 5), (3, 0), (3, 1)]
    qstep = {2: 3, 3: 5, 4: 11, 5: 13}
    if a.var == 1:
        order = [(t, q) for q in range(5) for t in range(2)] + [(2, 0), (2, 1), (2, 2), (2, 3), (1, 5), (2, 4), (2, 5), (-1, 5), (3, 0), (3, 1)]
        qstep = {2: 3, 3: 5, 4: 7, 5: 13}
us = [U(t, q, n) for n, (t, q) in enumerate(order)]
ph = Phase()
ph.step(us[0], reads=[v_read(0, n) for n in range(16)])
ph.emit()
A(*sync("KV1")); st3()
A(*[k_read(1, n) for n in range(8)]); A(*q_issue(3)); A(W(lg="all"))
ph = Phase()
seen = set()
for n in range(1, len(us)):
    pv = us[n - 2] if n >= 2 else None
    ph.step(us[n], us[n - 1], pv, first=(pv is not None and pv.q not in seen))
    if pv: seen.add(pv.q)
G = lambda n, k: ph.g(n - 1, k)
ph.put(G(1, 0), W(vm="QD0_1"), *[q_read(1, ks, 0, True) for ks in range(4)])
for ks in range(4):
    g = G(1, [5, 6, 6, 7][ks])
    if ks != 2: ph.shadow(g, W(lg=f"Q0_1_{ks + (ks == 1)}"))
    ph.put(g, *pre_ops(1, ks))
ph.spread([v_read(1, n) for n in range(16)], G(2, 0), G(2, 16))
ph.shadow(G(3, 7), W(lg="V1"))
for q in range(2, 6):
    n = qstep[q]
    if a.qw == 1:
        ph.shadow(G(n, 1), W(vm=f"QD0_{q}"))
        for ks in range(4):
            ph.put(G(n, [2, 2, 4, 4][ks]), q_read(q, ks, 0, True))
            ph.shadow(G(n, 10 + ks), W(lg=f"Q0_{q}_{ks}"))
            ph.put(G(n, 10 + ks), *pre_ops(q, ks))
    else:
        ph.put(G(n, 8), W(vm=f"QD0_{q}"), *[q_read(q, ks, 0, True) for ks in range(4)])
        for ks in range(4):
            g = G(n, [14, 15, 16, 16][ks])
            if ks != 3: ph.shadow(g, W(lg=f"Q0_{q}_{ks + (ks == 2)}"))
            ph.put(g, *pre_ops(q, ks))
gs = lambda n: [G(n, 3), G(n, 5), G(n, 7), G(n, 9)] if a.qw == 1 else [G(n, 10), G(n, 11), G(n, 12), G(n, 13)]
def kjit(n, x):
    ph.shadow(G(n, 0), *sync(f"KV{x}", None))
    for k in range(8): ph.put(G(n, [2, 2, 4, 4, 6, 8, 8, 10][k]), k_read(x, k))
    ph.shadow(G(n, 16), W(lg=f"K{x}"))
if a.start == 2:
    q_dma(ph, [G(1, 2), G(1, 3), G(1, 4), G(1, 5)], 4)
    q_dma(ph, gs(3), 5); kv_dma(ph, gs(5), 2); kv_dma(ph, gs(7), 3); kv_dma(ph, gs(9), 4)
    ph.shadow(G(6, 8), "s_barrier")
    kjit(11, 2)
    if a.jit:
        ph.spread([v_read(2, n) for n in range(16)], G(12, 10), G(13, 16))
        period_jit(2, ph)
    else:
        ph.spread([v_read(2, n) for n in range(16)], G(12, 10), G(13, 8))
        ph.shadow(G(13, 16), *sync("KV3"))
elif a.var == 1:
    q_dma(ph, [G(1, 2), G(1, 3), G(1, 4), G(1, 5)], 4)
    kv_dma(ph, gs(3), 2); q_dma(ph, gs(5), 5)
    ph.shadow(G(6, 8), "s_barrier")
    kv_dma(ph, gs(7), 3)
    kjit(9, 2)
    ph.spread([v_read(2, n) for n in range(16)], G(10, 10), G(11, 8))
    ph.shadow(G(11, 16), W(lg="V2"), "s_barrier")
    kv_dma(ph, [G(12, 2), G(12, 4), G(12, 8), G(12, 14)], 4)
    ph.spread([k_read(-1, n) for n in range(8)], G(14, 8), G(15, 16))
    ph.shadow(G(16, 8), W(lg="K-1"))
    kjit(17, 3)
    vs = [v_read(-1, n) for n in range(16)]
    ph.spread(vs[:8], G(16, 12), G(16, 16)); ph.spread(vs[8:], G(17, 11), G(18, 0))
    ph.shadow(G(18, 8), W(lg="V-1"), "s_barrier")
    kv_dma(ph, [G(18, 10), G(18, 14), G(19, 2), G(19, 8)], 5)
    assert a.jit
    ph.spread([v_read(3, n) for n in range(16)], G(18, 11), G(19, 16))
    period_jit(3, ph)
else:
    kv_dma(ph, [G(1, 2), G(1, 3), G(1, 4), G(1, 5)], 2)
    q_dma(ph, gs(3), 4); q_dma(ph, gs(5), 5)
    kjit(7, 2)
    kv_dma(ph, [G(7, 12), G(7, 14), G(8, 2), G(8, 4)], 3)
    ph.spread([v_read(2, n) for n in range(16)], G(8, 10), G(9, 16))
    ph.shadow(G(10, 7), W(lg="V2"))
    ph.shadow(G(10, 14), "s_barrier")
    kv_dma(ph, gs(11), 4)
    ph.spread([k_read(-1, n) for n in range(8)], G(14, 8), G(15, 8))
    ph.shadow(G(15, 16), W(lg="K-1"))
    kjit(17, 3)
    vs = [v_read(-1, n) for n in range(16)]
    ph.spread(vs[:8], G(16, 12), G(16, 16)); ph.spread(vs[8:], G(17, 11), G(18, 0))
    ph.shadow(G(18, 7), W(lg="V-1"))
    ph.shadow(G(18, 8), "s_barrier")
    kv_dma(ph, [G(18, 10), G(18, 14), G(19, 2), G(19, 8)], 5)
    if a.jit:
        ph.spread([v_read(3, n) for n in range(16)], G(18, 9), G(19, 16))
        period_jit(3, ph)
    else:
        ph.spread([v_read(3, n) for n in range(16)], G(18, 9), G(19, 10))
        ph.shadow(G(19, 16), *sync("KV4"))
ph.emit("start")
stamp()
main_loop(0, X0, 13)
stamp()
boundary()
stamp()
main_loop(1, 17, 28)
stamp()
finish()
stamp()
C("---- combine the per-wave 'row sum left the safe range' flags of the workgroup")
A(f"s_lshl_b32 s{sT}, s{sWV}, 2", f"s_add_u32 s{sT}, s{sT}, {FLAGS}", f"v_mov_b32 v{vT}, s{sT}", f"v_mov_b32 v{vT+1}, s{sFlag}",
  f"ds_write_b32 v{vT}, v{vT+1}", f"v_mov_b32 v{vT}, {FLAGS}", "s_waitcnt lgkmcnt(0)", "s_barrier",
  f"ds_read_b128 {vr(vT+2,4)}, v{vT}", "s_waitcnt lgkmcnt(0)",
  f"v_or_b32 v{vT+2}, v{vT+2}, v{vT+3}", f"v_or3_b32 v{vT+2}, v{vT+2}, v{vT+4}, v{vT+5}", "s_nop 0",
  f"v_readfirstlane_b32 s{sPend}, v{vT+2}", "s_nop 3")
L("L_pend")
A(f"s_cmp_eq_u32 s{sPend}, 0", "s_cbranch_scc1 L_done")
C("==== rare path: redo a head, subtracting the true row maximum (plain, unpipelined code)")
A(f"s_bitcmp1_b32 s{sPend}, 0", f"s_cselect_b32 s{sCur}, s{sHA}, s{sHB}", f"s_cselect_b32 s{sT}, 2, 0", f"s_and_b32 s{sPend}, s{sPend}, s{sT}",
  "s_waitcnt vmcnt(0) lgkmcnt(0)", "s_barrier", f"s_mov_b32 s{SRD_KV+2}, {KBYTES}")
window(SRD_Q, sQp, sCur); window(SRD_O, sOp, sCur)
for k in range(6): A(*q_issue(k))
for j in range(6): A(f"v_mov_b32 v{vM+j}, 0xff800000")
A("s_waitcnt vmcnt(0)")
for k in range(6):
    A(*[q_read(k, ks, 0) for ks in range(4)]); A("s_waitcnt lgkmcnt(0)")
kv_offset(sCur, sPoff)
if a.rot: A(f"s_mov_b32 s{sBase}, s{sPoff}", f"s_mov_b32 s{sRot}, 0")
A(f"s_mov_b32 s{sIt}, 0")
L("L_maxloop")
A(*kv_issue(0)); A("s_waitcnt vmcnt(0)", "s_barrier")
A(*[k_read(0, n) for n in range(8)]); A("s_waitcnt lgkmcnt(0)", "s_barrier")
for qt in range(6):
    A(*qk_mfmas(U(0, qt, 0))); A("s_nop 7")
    for j in range(4): A(f"v_max3_f32 v{vM+qt}, v{vM+qt}, v{vS+2*j}, v{vS+2*j+1}")
A(f"s_add_u32 s{sIt}, s{sIt}, 1", f"s_cmp_lt_u32 s{sIt}, 16", "s_cbranch_scc1 L_maxloop")
for qt in range(6):
    m = vM + qt
    A(f"v_mov_b32 v{vT}, v{m}", "s_nop 1", f"v_permlane32_swap_b32 v{vT}, v{m}", "s_nop 1", f"v_max_f32 v{m}, v{m}, v{vT}",
      f"v_mov_b32 v{vT}, v{m}", "s_nop 1", f"v_permlane16_swap_b32 v{vT}, v{m}", "s_nop 1", f"v_max_f32 v{m}, v{m}, v{vT}",
      f"v_mul_f32 v{m}, s{sC}, v{m}", f"v_sub_f32 v{m}, 0, v{m}")
for r in range(vO, 256, 2): A(f"v_mov_b64 {vr(r,2)}, 0")
for r in range(12): A(f"v_accvgpr_write_b32 a{aL+r}, 0")
kv_offset(sCur, sPoff)
if a.rot: A(f"s_mov_b32 s{sBase}, s{sPoff}", f"s_mov_b32 s{sRot}, 0")
A(f"s_mov_b32 s{sIt}, 0")
L("L_slowloop")
A(*kv_issue(0)); A("s_waitcnt vmcnt(0)", "s_barrier")
A(*[k_read(0, n) for n in range(8)]); A("s_waitcnt lgkmcnt(0)")
A(*[v_read(0, n) for n in range(16)]); A("s_waitcnt lgkmcnt(0)", "s_barrier")
for qt in range(6):
    u = U(0, qt, 0)
    A(*qk_mfmas(u)); A("s_nop 7")
    for j in range(8): A(f"v_fma_f32 v{vS+j}, v{vS+j}, s{sC}, v{vM+qt}")
    for j in range(8): A(sm_e(u, j))
    A("s_nop 0")
    for k in range(4): A(sm_c(u, k))
    A("s_nop 1"); A(*pv_mfmas(u))
A(f"s_add_u32 s{sIt}, s{sIt}, 1", f"s_cmp_lt_u32 s{sIt}, 16", "s_cbranch_scc1 L_slowloop")
A("s_nop 7")
for qt in range(6): A(*(norm_a(qt) + norm_b(qt) + back_ops(qt) + store_ops(qt, SP)))
A("s_branch L_pend")
L("L_done")
if a.probe >= 0 or a.probec:
    A("s_waitcnt vmcnt(0)"); stamp()
    if a.probec: A(f"s_sub_u32 s{sSt+8}, s{sSt+10}, s{sSt+8}", f"s_lshr_b32 s{sSt+8}, s{sSt+8}, 3", f"s_add_u32 s{sSt+6}, s{sSt+6}, s{sSt+8}")
    L("L_spin")
    A(f"s_memrealtime s[{sSt}:{sSt+1}]", "s_waitcnt lgkmcnt(0)", f"s_sub_u32 s{sSt}, s{sSt}, s{sSt+6}", f"s_cmp_lt_i32 s{sSt}, 10000", "s_cbranch_scc1 L_spin")
if a.stamps:
    A("s_waitcnt vmcnt(0)"); stamp()
    A(f"v_lshlrev_b32 v{vT}, 3, v0", f"s_lshl_b32 s{sT}, s2, 2", f"s_add_u32 s{sT}, s{sT}, s{sWV}", f"s_lshl_b32 s{sT}, s{sT}, 9",
      f"buffer_store_dwordx2 {vr(vStamp,2)}, v{vT}, {sreg(SRD_W,4)}, s{sT} offen")
L("L_exit")
A("s_endpgm")

resolve(trace)
errs = verify(trace)
for e in errs[:40]: print("VERIFY:", e, file=sys.stderr)
if a.est:
    for (name, n0, n1, nm) in est: print(f"est {name}: {estimate(code[n0:n1])} cycles, {nm} mfma", file=sys.stderr)
if a.est:
    for tau in (260, 300, 340):
        seq = [i for i, x in trace]
        res = []
        for nmf in (6 * 102, ):
            cnt = 0; cut = 0
            for k, i in enumerate(seq):
                if i.kind == "mfma":
                    cnt += 1
                    if cnt == nmf: cut = k; break
            res.append(simulate(seq[:cut], tau=tau)[1])
        print(f"sim tau={tau}: 6 tiles of work done at {res} -> virtual start {res[0] - 6*1705}", file=sys.stderr)
hdr = open("standalone__mha_softmax__near_ridge.s.ref").read().split("; Override launch")[0]
o = [hdr.rstrip(), f"; @launch grid=(256,1,1) block=(256,1,1) lds={LDS}", '.amdgcn_target "amdgcn-amd-amdhsa--gfx950"',
     ".text", f".globl {NAME}", ".p2align 8", f".type {NAME},@function"]
for i in code:
    t = i.render()
    if t is None: continue
    o.append(t if i.kind == "label" or t.startswith(".") else "    " + t.rstrip())
o += ['.section .rodata,"a"', ".p2align 6", f".amdhsa_kernel {NAME}", """  .amdhsa_next_free_vgpr 512
  .amdhsa_next_free_sgpr 102
  .amdhsa_accum_offset 256
  .amdhsa_group_segment_fixed_size 0
  .amdhsa_kernarg_size 48
  .amdhsa_user_sgpr_count 2
  .amdhsa_user_sgpr_kernarg_segment_ptr 1
  .amdhsa_system_sgpr_workgroup_id_x 1
  .amdhsa_float_denorm_mode_32 3""", ".end_amdhsa_kernel"]
print("\n".join(o))
sys.exit(1 if errs else 0)
```

```python
import sys, argparse, struct
from asmlib import *
ap = argparse.ArgumentParser()
ap.add_argument("--lp", default="nt")
ap.add_argument("--sp", default="sc1+nt")
ap.add_argument("--spa", default="sc1+nt")
ap.add_argument("--hmap", type=int, default=1)
ap.add_argument("--stamps", type=int, default=0)
ap.add_argument("--probe", type=int, default=-1)
ap.add_argument("--force_redo", type=int, default=0)
ap.add_argument("--cpf", type=int, default=1)
ap.add_argument("--rot", type=int, default=0)
ap.add_argument("--dmapos", default="0,0,1,1")
ap.add_argument("--est", type=int, default=0)
ap.add_argument("--cpfm", type=int, default=0)
ap.add_argument("--stpos", default="2,11")
ap.add_argument("--dpos", default="0,5,0,14,1,5,1,16")
ap.add_argument("--opat", type=int, default=2)
ap.add_argument("--smpos", type=int, default=4)
ap.add_argument("--smf", type=int, default=3)
ap.add_argument("--slp", type=int, default=0)
ap.add_argument("--jit", type=int, default=0)
ap.add_argument("--var", type=int, default=0)
ap.add_argument("--qw", type=int, default=1)
ap.add_argument("--jstep", type=int, default=2)
ap.add_argument("--start", type=int, default=2)
ap.add_argument("--spl", default="")
ap.add_argument("--qkrev", type=int, default=1)
ap.add_argument("--softb", default="")
ap.add_argument("--pre", type=int, default=1)
ap.add_argument("--fin2", type=int, default=1)
ap.add_argument("--dma0", type=int, default=0)
ap.add_argument("--ndef", type=int, default=0)
ap.add_argument("--qdelay", type=int, default=2)
ap.add_argument("--oper", type=int, default=2)
ap.add_argument("--nb", type=int, default=6)
ap.add_argument("--soft", default="")
ap.add_argument("--probec", default="")
ap.add_argument("--abl", default="")
ap.add_argument("--pad", type=int, default=0)
a = ap.parse_args()
pol = lambda s: s.replace("+", " ").replace("-", "")
LP, SP, SPA = pol(a.lp), pol(a.sp), pol(a.spa)

NAME = "standalone__mha_softmax__near_ridge_kernel"
PIECE = 1056
SLOT = 16 * PIECE
NS = 3
RING = NS * SLOT
QP = 1088
REGW = 24 * QP
REG = RING
FLAGS = REG + 4 * REGW
LDS = FLAGS + 64
assert LDS <= 163840
KBYTES = 16 * 32 * 512 * 128 * 2
CSCALE = struct.unpack("<I", struct.pack("<f", 1.4426950408889634 * 128 ** -0.5))[0]

if "cone" in a.abl or "nomul" in a.abl: CSCALE = 0x3f800000
sWV = 3
sQp, sOp = 4, 10
SRD_Q, SRD_KV, SRD_O, SRD_X = 16, 20, 24, 28
sC, sPoff = 32, 33
sR, sW, sD, sT = 35, 36, 37, 38
sWpart, sIt, sCur = 39, 40, 41
sXoff, sXm = 42, 43
sX0, sReg, sKVoffN, sKVoff = 44, 45, 46, 48
sBad = 50
sRot, sBase = 47, 49
sFlag, sPend = 52, 54
sHA, sHB = 56, 57
sT2, sLo, sHi, sCm = 59, 60, 61, 62
SRD_W, sSt = 64, 68
vDMA, vK, vV, vQ, vOw, vOr, vKl, vVl, vX = 1, 2, 3, 4, 5, 6, 7, 8, 9
vT = 10
vM = 16
vStamp = 22
vS = 24
vE = 48
vO = 64
aQ, aK, aV, aL, aONE, aSM = 0, 96, 160, 224, 236, 244
vP, vIdx = 40, 13

SH = 1 if a.start == 3 else 0
X0 = a.start + a.jit
def vi(x): return 3 if x == -1 else (x + SH if x >= 3 else x)
def SL(x): return (vi(x) % NS) * SLOT
def BF(x): return vi(x) % 2
def vr(b, n): return f"v[{b}:{b+n-1}]"
def ar(b, n): return f"a[{b}:{b+n-1}]"
def sreg(b, n): return f"s[{b}:{b+n-1}]"
def Sbuf(n): return vS + 8 * (n % 2)
def Pbuf(n): return vP + 4 * (n % 2)
def Oreg(qt, dt): return vO + 32 * qt + 4 * dt

code = []
trace = []
ctx = [None]
def E(i, tr=True):
    if isinstance(i, str): i = Ins(i)
    code.append(i)
    if tr: trace.append((i, ctx[0]))
    return i
def A(*xs):
    for x in xs: E(x)
def L(s): E(s + ":")
def C(s): E("; " + s)

MF = "v_mfma_f32_16x16x32_bf16"
class U:
    def __init__(s, x, q, n): s.x, s.q, s.n = x, q, n
def qk_mfmas(u):
    r = []
    for kt in range(2):
        d = vr(Sbuf(u.n) + 4 * kt, 4)
        for i, ks in enumerate([3, 2, 1, 0] if (kt == 1 and a.qkrev) else range(4)):
            r.append(f"{MF} {d}, {ar(aK + 32*BF(u.x) + 16*kt + 4*ks, 4)}, {ar(aQ + 16*u.q + 4*ks, 4)}, {'0' if i == 0 else d}")
    return r
def pv_mfmas(u, first=False, dense=True):
    r = []
    p = vr(Pbuf(u.n), 4)
    for dt in range(8):
        d = vr(Oreg(u.q, dt), 4)
        r.append(f"{MF} {d}, {ar(aV + 32*BF(u.x) + 4*dt, 4)}, {p}, {'0' if first else d}")
    d = ar(aL + 4 * (u.q // 2), 4)
    if dense: r.append(f"{MF} {d}, {ar(aONE + 4 * (u.q % 2), 4)}, {p}, {'0' if (first and u.q % 2 == 0) else d}")
    return r
def nomul(u): return "nomul" in a.abl or (a.pre and u.x < 16)
def sm_f(u, j): return f"v_mul_f32 v{Sbuf(u.n)+j}, s{sC}, v{Sbuf(u.n)+j}"
def sm_e(u, j): return f"v_exp_f32 v{Sbuf(u.n)+j}, v{Sbuf(u.n)+j}"
def sm_c(u, k): return f"v_cvt_pk_bf16_f32 v{Pbuf(u.n)+k}, v{Sbuf(u.n)+2*k}, v{Sbuf(u.n)+2*k+1}"
def k_read(x, n, dyn=False):
    kt, ks = n // 4, n % 4
    base, off = (vK, 0) if dyn else (vKl, SL(x))
    return Ins(f"ds_read_b128 {ar(aK + 32*BF(x) + 16*kt + 4*ks, 4)}, v{base} offset:{off + kt*512 + ks*64}", "K" if dyn else f"K{x}")
def v_read(x, n, dyn=False):
    dt, kt = n // 2, n % 2
    base, off = (vV, 0) if dyn else (vVl, SL(x))
    return Ins(f"ds_read_b64_tr_b16 {ar(aV + 32*BF(x) + 4*dt + 2*kt, 2)}, v{base} offset:{off + kt*512 + dt*32}", "V" if dyn else f"V{x}")
vQt, vPp, sMask = 48, 14, 34
def pre_ops(qt, ks):
    r = []
    for j in range(4):
        r += [f"v_lshlrev_b32 v{vPp+2*j}, 16, v{vQt+4*ks+j}", f"v_and_b32 v{vPp+2*j+1}, s{sMask}, v{vQt+4*ks+j}"]
    r += [f"v_pk_mul_f32 {vr(vPp+2*j,2)}, {vr(vPp+2*j,2)}, {sreg(sC,2)} op_sel_hi:[1,0]" for j in range(4)]
    r += [f"v_cvt_pk_bf16_f32 v{vPp+2*j}, v{vPp+2*j}, v{vPp+2*j+1}" for j in range(4)]
    r += [f"v_accvgpr_write_b32 a{aQ+16*qt+4*ks+j}, v{vPp+2*j}" for j in range(4)]
    return r
def q_read(qt, ks, hd, raw=False):
    if raw: return Ins(f"ds_read_b128 {vr(vQt + 4*ks, 4)}, v{vQ} offset:{qt*4*QP + 64*ks}", f"Q{hd}_{qt}_{ks}")
    return Ins(f"ds_read_b128 {ar(aQ + 16*qt + 4*ks, 4)}, v{vQ} offset:{qt*4*QP + 64*ks}", f"Q{hd}_{qt}")
def dma(srd, soff, off, tag):
    return Ins(f"buffer_load_dwordx4 v{vDMA}, {sreg(srd,4)}, {soff} offen offset:{off} {LP} lds", tag)
def o_store(reg, soff, off, sp):
    return Ins(f"buffer_store_dwordx4 {reg}, v{vDMA}, {sreg(SRD_O,4)}, {soff} offen offset:{off} {sp}", "st")

nst = [0]
def stamp():
    nst[0] += 1
    if a.probe == nst[0] - 1:
        A(f"s_memrealtime s[{sSt+6}:{sSt+7}]", "s_waitcnt lgkmcnt(0)")
    if a.probec:
        pa, pb = map(int, a.probec.split(","))
        if nst[0] - 1 == 0: A(f"s_memrealtime s[{sSt+6}:{sSt+7}]", "s_waitcnt lgkmcnt(0)")
        if nst[0] - 1 == pa: A(f"s_memtime s[{sSt+8}:{sSt+9}]", "s_waitcnt lgkmcnt(0)")
        if nst[0] - 1 == pb: A(f"s_memtime s[{sSt+10}:{sSt+11}]", "s_waitcnt lgkmcnt(0)")
    if not a.stamps: return
    A(f"s_memtime s[{sSt}:{sSt+1}]", f"s_memrealtime s[{sSt+2}:{sSt+3}]", "s_waitcnt lgkmcnt(0)",
      f"s_mov_b32 s{sSt+4}, m0", f"s_mov_b32 m0, s{sSt+5}",
      f"v_writelane_b32 v{vStamp}, s{sSt}, m0", f"v_writelane_b32 v{vStamp+1}, s{sSt+2}, m0",
      f"s_add_u32 s{sSt+5}, s{sSt+5}, 1", f"s_mov_b32 m0, s{sSt+4}")

lst = [0]
def light_stamp():
    k = lst[0]; lst[0] += 1
    A(f"s_getreg_b32 s{sSt+8}, hwreg(HW_REG_SHADER_CYCLES)") if False else None
    stamp()
COST = {"valu": 4, "trans": 8, "ds": 4, "vmem": 12, "salu": 0, "wait": 0, "barrier": 24}
def cost(i):
    if i.text.startswith("ds_write2"): return 20
    if i.text.startswith("buffer_store"): return 40
    return COST[i.kind]
class Phase:
    def __init__(s): s.mf, s.front, s.back, s.steps, s.pre = [], [], [], [], {}
    def step(s, qk=None, sm=None, pv=None, first=False, reads=(), early=False, hole=False, smf=False):
        g0 = len(s.mf)
        m = (qk_mfmas(qk) if qk else []) + (pv_mfmas(pv, first, not smf) if pv else [])
        if smf:
            reads = list(reads)
            odd = pv.q % 2
            assert pv.n % 2 == odd
            if odd: m.insert(a.smpos, f"v_smfmac_f32_16x16x64_bf16 {ar(aL + 4 * (pv.q // 2), 4)}, {ar(aSM, 4)}, {vr(vP, 8)}, v{vIdx}")
            s.mf += m; s.front += [[] for _ in m]; s.back += [[] for _ in m]
            s.steps.append(g0)
            f = lambda j: sm_f(sm, j); c = lambda k: sm_c(sm, k)
            cp = sm_c(pv, 3)
            if nomul(sm):
                pat = {0: [cp], 6: [c(0)], 10: [c(1)], 12: [c(2)], 16: [c(3)]} if odd else {6: [c(0)], 10: [c(1)], 12: [c(2)]}
                rg = [0, 2, 4, 6]
            elif not odd:
                pat = {0: [f(0), f(1)], 2: [f(2)], 4: [c(0), f(3)], 6: [f(4)], 8: [c(1), f(5)], 10: [f(6)], 12: [c(2), f(7)]}
                rg = [2, 6, 10, 14]
            elif early:
                pat = {0: [cp, f(0)], 2: [f(1)], 4: [f(2)], 6: [f(3)], 8: [f(4)], 10: [c(0), f(5)], 12: [c(1), f(6)], 14: [c(2), f(7)], 16: [c(3)]}
                rg = [2, 4, 6, 8]
            else:
                pat = {0: [cp, f(0)], 2: [f(1)], 4: [f(2), f(3)], 6: [c(0)], 8: [f(4), f(5)], 10: [c(1)], 12: [f(6), f(7)], 14: [c(2)], 16: [c(3)]}
                rg = [2, 6, 10, 14]
                if a.opat == 1:
                    pat = {0: [cp, f(0)], 2: [f(1)], 4: [f(2)], 6: [f(3)], 8: [c(0), f(4)], 10: [f(5)], 12: [c(1), f(6)], 14: [c(2), f(7)], 16: [c(3)]}
                    rg = [2, 6, 10, 16]
                if a.opat == 2:
                    pat = {0: [cp, f(0)], 2: [f(1), f(2)], 4: [f(3)], 6: [c(0)], 8: [f(4), f(5)], 10: [c(1)], 12: [f(6), f(7)], 14: [c(2)], 16: [c(3)]}
                    rg = [4, 6, 10, 14]
            for j in range(8): pat[2 * j + 1] = [sm_e(sm, j)]
            for g, v in pat.items(): s.back[g0 + g] += [Ins(t) for t in v]
            for g in rg: s.front[g0 + g].append(reads.pop(0))
            return g0
        s.mf += m; s.front += [[] for _ in m]; s.back += [[] for _ in m]
        s.steps.append(g0)
        if not qk: s.before(g0, "s_nop 1")
        reads = list(reads)
        if len(m) == 17 and sm:
            f = lambda j: sm_f(sm, j); c = lambda k: sm_c(sm, k)
            if early:
                pat = {0: [f(0)], 2: [f(1)], 4: [f(2)], 6: [f(3)], 8: [f(4), f(5)], 10: [c(0), f(6)], 12: [c(1), f(7)], 14: [c(2)], 16: [c(3)]}
                rg = [0, 2, 4, 6]
            else:
                pat = {0: [f(0), f(1)], 2: [f(2)], 4: [c(0), f(3)], 6: [f(4)], 8: [c(1), f(5)], 10: [f(6)], 12: [c(2), f(7)], 16: [c(3)]}
                rg = [2, 6, 10, 16 if hole else 14]
            if nomul(sm):
                pat = {6: [c(0)], 10: [c(1)], 12: [c(2)], 16: [c(3)]}; rg = [0, 2, 4, 6]
            for j in range(8): pat[2 * j + 1] = [sm_e(sm, j)]
            for g, v in pat.items(): s.back[g0 + g] += [Ins(t) for t in v]
            for g in rg:
                if reads: s.front[g0 + g].append(reads.pop(0))
        elif sm:
            f = lambda j: sm_f(sm, j); c = lambda k: sm_c(sm, k); e = lambda j: sm_e(sm, j)
            pat = [[f(0), f(1), f(2), f(3)], [e(0), e(1)], [e(2), e(3)], [f(4), f(5), f(6), f(7)], [e(4), e(5)], [e(6), e(7)], [c(0), c(1)], [c(2), c(3)]]
            if nomul(sm): pat = [[e(0)], [e(1)], [e(2), c(0)], [e(3)], [e(4), c(1)], [e(5)], [e(6), c(2)], [e(7), "s_nop 0", c(3)]]
            for g, v in enumerate(pat): s.back[g0 + g] += [Ins(t) for t in v]
        if reads: s.spread(reads, g0, len(s.mf) - 1)
        return g0
    def g(s, step, k=0): return s.steps[step] + k
    def load(s, g):
        sc = [k for k, i in enumerate(s.front[g]) if i.kind in ("salu", "wait")]
        return sum(cost(i) for i in s.front[g] + s.back[g]) + 4 * len([k for k in sc if k > 0])
    def put(s, g, *ins):
        for i in ins:
            if isinstance(i, str): i = Ins(i)
            (s.back if i.kind in ("valu", "trans") else s.front)[g].append(i)
    def shadow(s, g, *ins):
        s.front[g][0:0] = [Ins(i) if isinstance(i, str) else i for i in ins]
    def before(s, g, *ins):
        s.pre.setdefault(g, []).extend(Ins(i) if isinstance(i, str) else i for i in ins)
    def spread(s, ops, g0, g1):
        ops = [Ins(i) if isinstance(i, str) else i for i in ops]
        tot = sum(max(cost(i), 1) for i in ops); cum = 0
        ptr = g0; lastback = -1
        for i in ops:
            tg = min(g1, g0 + int(cum / tot * (g1 - g0 + 1))); cum += max(cost(i), 1)
            if i.kind in ("valu", "trans"):
                cand = [g for g in range(max(ptr, tg - 1), min(g1, tg + 1) + 1) if s.load(g) + COST[i.kind] <= 8]
                g = cand[0] if cand else max(ptr, tg)
                s.back[g].append(i); lastback = g
            else:
                lo = max(ptr, tg, lastback + 1)
                if lo > g1:
                    g = g1; s.back[g].append(i); lastback = g
                else:
                    rng = range(lo, min(g1, lo + 2) + 1)
                    if i.kind in ("salu", "wait"): cand = [g for g in rng if not s.front[g]]
                    else: cand = [g for g in rng if s.load(g) <= 4]
                    g = cand[0] if cand else lo
                    s.front[g].append(i)
            ptr = g
    def emit(s, name=None):
        n0 = len(code)
        for g, m in enumerate(s.mf):
            if a.stamps == 4 and name in ("boundary", "finish") and g in s.steps and g > 0:
                est.append((name + str(s.steps.index(g) - 1), nb if g != s.steps[1] else n0, len(code), 0))
                light_stamp(); nb = len(code)
            for i in s.pre.get(g, []): E(i)
            if "halfsum" in a.abl and name and name.startswith("period") and (m.startswith(f"{MF} a[224:") or m.startswith(f"{MF} a[232:") or m.startswith(f"{MF} a[240:")):
                s.back[g + 1][0:0] = s.back[g]; s.back[g] = []; s.front[g + 1][0:0] = s.front[g]; s.front[g] = []
                continue
            E(m)
            for i in s.front[g] + s.back[g]: E(i)
        if name: est.append((name, n0, len(code), len(s.mf)))
est = []

def sync(kv, lg="all"):
    return [W(vm=kv, lg=lg), Ins("s_barrier")]

def adv():
    if a.rot: return [f"s_add_u32 s{sRot}, s{sRot}, 8192", f"s_and_b32 s{sRot}, s{sRot}, 0x1ffff", f"s_add_u32 s{sPoff}, s{sBase}, s{sRot}"]
    return [f"s_add_u32 s{sPoff}, s{sPoff}, 8192"]
def kv_dma(ph, gs, x, dyn=False):
    for p, g in enumerate(gs):
        if dyn:
            ph.shadow(g - 1, f"s_add_u32 m0, s{sW}, {32*p}")
            ph.put(g, dma(SRD_KV, f"s{sPoff}", 1024 * p, lambda y: f"KV{y+3}"))
        else:
            (ph.put if g - 1 in gs else ph.shadow)(g - 1, f"s_add_u32 m0, s{sWpart}, {SL(x) + 32*p}")
            ph.put(g, dma(SRD_KV, f"s{sPoff}", 1024 * p, f"KV{x}"))
    for k, i in enumerate(adv()): ph.shadow(gs[-1] + 1 + k, i)

def period(x, hd, dyn, ph=None, first=False, last=False):
    if ph is None: ph = Phase()
    s0 = len(ph.steps)
    un = lambda t, q: U(t, q, 6 * t + q)
    rdT = hd == 1 and (a.oper == 2 or (a.oper == 1 and x % 2 == 0))
    stT = hd == 1 and dyn and (a.oper == 2 or (a.oper == 1 and x % 2 == 1))
    smf = dyn and bool(a.smf >> hd & 1)
    tight = smf and not nomul(un(x, 0))
    for j in range(6):
        qk = un(x, j + 2) if j < 4 else un(x + 1, j - 4)
        sm = un(x, j + 1) if j < 5 else un(x + 1, 0)
        reads = [k_read(x + 1, 4 * j + i, dyn) for i in range(4)] if j < 2 else [v_read(x + 1, 4 * (j - 2) + i, dyn) for i in range(4)]
        ph.step(qk, sm, un(x, j), first, reads, early=(j == 5), hole=(j < (4 if hd == 0 else 3 if stT else 2)), smf=smf)
    G = lambda j, k: ph.g(s0 + j, k)
    if a.pad:
        for j in range(6): ph.back[G(j, 7)].append(Ins(f"s_nop {a.pad-1}"))
    ph.shadow(G(3, 15), W(lg="K" if dyn else f"K{x+1}"))
    if nomul(un(x, 0)) and a.dma0: kv_dma(ph, [G(0, 1), G(0, 3), G(0, 5), G(0, 8)], x + 3, dyn)
    elif nomul(un(x, 0)): kv_dma(ph, [G(0, 8), G(0, 14), G(1, 8), G(1, 14)], x + 3, dyn)
    elif tight:
        dp = list(map(int, a.dpos.split(",")))
        kv_dma(ph, [G(dp[2*i], dp[2*i+1]) for i in range(4)], x + 3, dyn)
    elif a.dma0: kv_dma(ph, [G(0, 1), G(0, 5), G(0, 9), G(0, 14)], x + 3, dyn)
    else: kv_dma(ph, [G(0, 5), G(0, 14), G(1, 5), G(1, 14)], x + 3, dyn)
    if dyn:
        ph.shadow(G(4, 1), f"s_add_u32 s{sW}, s{sR}, s{sWpart}")
        ph.shadow(G(4, 2), f"s_add_u32 s{sT}, s{sR}, {SLOT}")
        ph.shadow(G(4, 3), f"s_cmp_eq_u32 s{sT}, {RING}")
        ph.shadow(G(4, 4), f"s_cselect_b32 s{sT}, 0, s{sT}")
        ph.shadow(G(4, 5), f"s_sub_u32 s{sD}, s{sT}, s{sR}")
        ph.shadow(G(4, 6), f"s_mov_b32 s{sR}, s{sT}")
        ph.put(G(4, 14), f"v_add_u32 v{vK}, s{sD}, v{vK}")
        ph.put(G(5, 16 if tight else 14), f"v_add_u32 v{vV}, s{sD}, v{vV}")
        if not last:
            ph.shadow(G(5, 1), f"s_add_u32 s{sIt}, s{sIt}, 1")
            if hd == 0:
                ph.shadow(G(5, 2), f"s_cmp_eq_u32 s{sIt}, 6")
                if a.rot:
                    ph.shadow(G(5, 3), f"s_cselect_b32 s{sBase}, s{sKVoffN}, s{sBase}")
                    ph.shadow(G(5, 4), f"s_add_u32 s{sPoff}, s{sBase}, s{sRot}")
                else: ph.shadow(G(5, 3), f"s_cselect_b32 s{sPoff}, s{sKVoffN}, s{sPoff}")
        if hd == 0:
            for p in range(2):
                ph.shadow(G((0 if a.dma0 else 2) + p, 13), f"s_add_u32 m0, s{sXm}, {(QP-1024)*p}")
                ph.put(G((0 if a.dma0 else 2) + p, 14), dma(SRD_X, f"s{sXoff}", 1024 * p, lambda y: f"QD1_{(y-2)//2 - a.qdelay}"))
            ph.shadow(G(5, 9), f"s_add_u32 s{sXm}, s{sXm}, {2*QP}")
        else:
            if stT and "nolst" not in a.abl: ph.put(G(*map(int, a.stpos.split(","))) if tight else G(2, 14), o_store(vr(vE, 4), f"s{sXoff}", 0, SPA))
        if hd == 0 or stT: ph.shadow(G(5, 11), f"s_add_u32 s{sXoff}, s{sXoff}, {2048 if hd == 0 else 1024}")
        if last and hd == 0 and a.qdelay:
            ph.shadow(G(5, 12), f"s_cmp_eq_u32 s{sIt}, {a.qdelay}")
            ph.shadow(G(5, 13), f"s_cselect_b32 s{SRD_X+2}, 24576, s{SRD_X+2}")
            ph.shadow(G(5, 14), f"s_cselect_b64 {sreg(sXoff,2)}, {sreg(sX0,2)}, {sreg(sXoff,2)}")
        if last: ph.shadow(G(5, 15), f"s_cmp_lt_u32 s{sIt}, 6")
    if rdT:
        ph.put(G(2, 14) if tight else G(3, 16), Ins(f"ds_read_b128 {vr(vE, 4)}, v{vX}", "T"))
        ph.put(G(3, 16) if tight else G(4, 16), f"v_add_u32 v{vX}, {QP}, v{vX}")
    ph.shadow(G(5, 16), *sync((lambda y: f"KV{y+2}") if dyn else f"KV{x+2}", "all" if dyn else [f"V{x+1}"]))
    return ph

def period_jit(x, ph):
    s0 = len(ph.steps)
    un = lambda t, q: U(t, q, 6 * t + q)
    for j in range(6):
        ph.step(un(x, j + 2) if j < 4 else un(x + 1, j - 4), un(x, j + 1) if j < 5 else un(x + 1, 0), un(x, j))
    G = lambda j, k: ph.g(s0 + j, k)
    ph.shadow(G(0, 7), W(lg=f"V{x}"))
    js = a.jstep
    ph.shadow(G(js, 0), *sync(f"KV{x+1}", None))
    for n in range(8): ph.put(G(js, [2, 2, 4, 4, 6, 8, 8, 10][n]), k_read(x + 1, n))
    ph.shadow(G(3, 16), W(lg=f"K{x+1}"))
    kv_dma(ph, [G(js, 14), G(js + 1, 8), G(js + 1, 14), G(js + 2, 8)], x + 3)
    ph.spread([v_read(x + 1, n) for n in range(16)], G(js + 1, 0), G(5, 8))
    ph.shadow(G(5, 16), *sync(f"KV{x+2}"))

def main_loop(hd, x0, x1):
    odd = (x1 - x0) % 2 == 0
    if odd: A(f"s_branch L_mid{hd}")
    E(".p2align 3")
    t0 = len(trace)
    L(f"L_loop{hd}")
    halves = []
    for h in range(2):
        if h and odd: L(f"L_mid{hd}")
        b = len(code)
        if a.stamps == 2: stamp()
        sf = a.soft if hd == 0 else a.softb
        if sf:
            it, sl = sf.split(",")
            A(f"s_cmp_lt_u32 s{sIt}, {int(it)+h}", f"s_cbranch_scc0 L_soft{hd}{h}", f"s_sleep {sl}"); L(f"L_soft{hd}{h}")
        period(x1 - 1 + h, hd, True, last=(h == 1)).emit(f"period{hd}{h}")
        if h: A(f"s_cbranch_scc1 L_loop{hd}")
        halves.append(code[b:])
    del trace[t0:]
    for x in range(x0, x1 + 1):
        trace.extend((i, x) for i in halves[(x - x1 - 1) % 2])

def window(srd, ptr, hreg):
    A(f"s_mul_i32 s{sT}, s{hreg}, 98304", f"s_mul_i32 s{sT2}, s{sWV}, 24576", f"s_add_u32 s{sT}, s{sT}, s{sT2}",
      f"s_add_u32 s{srd}, s{ptr}, s{sT}", f"s_addc_u32 s{srd+1}, s{ptr+1}, 0", f"s_mov_b32 s{srd+2}, 24576")
def kv_offset(hreg, kv):
    A(f"s_lshl_b32 s{kv}, s{hreg}, 17", f"s_and_b32 s{sT}, s{sWV}, 1", f"s_lshl_b32 s{sT}, s{sT}, 12", f"s_add_u32 s{kv}, s{kv}, s{sT}")
def kv_issue(x):
    r = []
    for p in range(4):
        r += [f"s_add_u32 m0, s{sWpart}, {SL(x) + 32*p}", "s_nop 0", dma(SRD_KV, f"s{sPoff}", 1024*p, f"KV{x}")]
    return r + adv()
def q_issue(k):
    r = [f"s_mov_b32 s{sT2}, {4096*k}"]
    for p in range(4):
        r += [f"s_add_u32 m0, s{sReg}, {4*k*QP + (QP-1024)*p}", "s_nop 0", dma(SRD_Q, f"s{sT2}", 1024*p, f"QD0_{k}")]
    return r

def norm_a(qt):
    r = [f"v_accvgpr_read_b32 v{vT+1}, a{aL + 2*qt}", f"v_accvgpr_read_b32 v{vT}, a{aL + 2*qt + 1}", f"v_add_f32 v{vT+1}, v{vT+1}, v{vT}",
         f"v_rcp_f32 v{vT}, v{vT+1}", f"v_cmp_nle_f32 vcc, s{sLo}, v{vT+1}"]
    for o in range(Oreg(qt, 0), Oreg(qt, 8), 2):
        r.append(f"v_pk_mul_f32 {vr(o,2)}, {vr(o,2)}, {vr(vT,2)} op_sel_hi:[1,0]")
    return r
def norm_b(qt):
    r = [f"s_or_b64 {sreg(sBad,2)}, {sreg(sBad,2)}, vcc", f"v_cmp_nge_f32 vcc, s{sHi}, v{vT+1}", f"v_add_u32 v{vT+2}, {qt*4*QP}, v{vOw}"]
    for dt in range(0, 8, 2):
        for d in (dt, dt + 1):
            o = Oreg(qt, d)
            r += [f"v_cvt_pk_bf16_f32 v{o}, v{o}, v{o+1}", f"v_cvt_pk_bf16_f32 v{o+1}, v{o+2}, v{o+3}"]
        if dt == 0: r.append(f"s_or_b64 {sreg(sBad,2)}, {sreg(sBad,2)}, vcc")
        r.append(Ins(f"ds_write2_b64 v{vT+2}, {vr(Oreg(qt, dt),2)}, {vr(Oreg(qt, dt+1),2)} offset0:{4*dt} offset1:{4*dt+4}", f"W{qt}"))
    return r
def back_ops(qt):
    return [Ins(f"ds_read_b128 {vr(Oreg(qt, j), 4)}, v{vOr} offset:{qt*4*QP + QP*j}", f"B{qt}_{j}") for j in range(4)]
def store_ops(qt, sp):
    if qt >= 6 - a.ndef: sp = pol(a.spl)
    r = [f"s_mov_b32 s{sT2}, {4096*qt}"]
    for j in range(4): r += [W(lg=f"B{qt}_{j}"), o_store(vr(Oreg(qt, j), 4), f"s{sT2}", 1024*j, sp)]
    return r
def park_ops(c, t):
    r = vr(vE + 4 + 4 * t, 4)
    return [Ins(f"ds_read_b128 {r}, v{vOr} offset:{c*QP}", f"P{c}")], [f"s_mov_b32 s{sT}, {1024*c}", W(lg=f"P{c}"), o_store(r, f"s{sT}", 0, SPA)]
def q_dma(ph, gs, k, srd=SRD_Q, hd=0):
    ph.shadow(gs[0] - 2, f"s_mov_b32 s{sT2}, {4096*k}")
    for p, g in enumerate(gs):
        (ph.put if g - 1 in gs else ph.shadow)(g - 1, f"s_add_u32 m0, s{sReg}, {4*k*QP + (QP-1024)*p}")
        ph.put(g, dma(srd, f"s{sT2}", 1024*p, f"QD{hd}_{k}"))
NPRE = a.nb
NFIN = 24 - a.nb - 6 * a.oper
def park(ph, c, t, gr, gs):
    rd, st = park_ops(c, t)
    ph.put(gr, *rd)
    ph.shadow(gs - 1, st[0]); ph.shadow(gs, st[1]); ph.put(gs, st[2])
def flag_ops(bit):
    return [f"s_cmp_lg_u64 {sreg(sBad,2)}, 0", f"s_cselect_b32 s{sT2}, {0 if a.abl else bit}, 0", f"s_or_b32 s{sFlag}, s{sFlag}, s{sT2}", f"s_mov_b64 {sreg(sBad,2)}, 0"]

def boundary():
    order = [(14, 0), (14, 1), (14, 2), (15, 0), (15, 1), (15, 2), (14, 3), (15, 3), (14, 4), (15, 4), (14, 5), (15, 5), (16, 0), (16, 1)]
    us = [U(t, q, 84 + i) for i, (t, q) in enumerate(order)]
    ph = Phase()
    for j in range(12):
        reads = []
        if j in (1, 2): reads = [v_read(15, 8 * (j - 1) + n) for n in range(8)]
        if j == 0:
            reads = [k_read(15, n) for n in range(8)]
            g0 = ph.step(us[j + 2], us[j + 1], us[j], reads=reads[:4], early=True)
            for n in range(4): ph.put(g0 + 1 + 2 * n, reads[4 + n])
        else:
            ph.step(us[j + 2], us[j + 1], us[j], reads=reads)
    G = ph.g
    ph.shadow(G(0, 16), W(lg="K15"))
    ph.shadow(G(3, 7), W(lg="V15"))
    kv_dma(ph, [G(0, 11), G(0, 15), G(1, 11), G(1, 15)], 17)
    pre = {k: [W(vm=f"QD1_{k}")] + [q_read(k, ks, 1) for ks in range(4)] for k in range(6)}
    ph.spread(pre[0] + pre[1], G(3, 0), G(3, 16))
    ph.spread(pre[2], G(4, 0), G(4, 16)); ph.spread(pre[3], G(6, 0), G(6, 16))
    for k in range(6 - a.qdelay, 6):
        j = 2 + 2 * (k - (6 - a.qdelay))
        q_dma(ph, [G(j, 5), G(j, 13), G(j + 1, 5), G(j + 1, 13)], k, SRD_X, 1)
    ph.spread(pre[4], G(10, 0), G(10, 7))
    ph.shadow(G(8, 7), *sync("KV16", "V15"))
    ph.spread([k_read(16, n) for n in range(8)], G(8, 8), G(9, 8))
    ph.shadow(G(9, 16), W(lg=["K16", "Q1_0", "Q1_1"]))
    kv_dma(ph, [G(9, 9), G(9, 11), G(9, 13), G(9, 15)], 18)
    ph.spread([v_read(16, n) for n in range(16)], G(10, 10), G(11, 8))
    ph.shadow(G(11, 16), *sync("KV17", ["V16", "Q1_4"]))
    period(16, 1, False, ph, first=True)
    ph.spread(pre[5], G(12, 7), G(12, 13))
    ph.shadow(G(14, 15), W(lg="Q1_5"))
    lo, hi = G(6, 3), G(17, 3)
    avail = [G(6, 0), G(8, 0), G(10, 0), G(13, 2), G(15, 0)]
    for c in range(0 if "nobst" in a.abl else NPRE):
        g = max(lo + (hi - lo) * c // max(NPRE - 1, 1), avail[c // 4])
        while (g - ph.steps[0]) % 17 not in (1, 3, 5, 7): g += 1
        park(ph, c, c % 2, g, g + 8)
    for k, (ga, gb) in enumerate([(G(4, 5), G(5, 16)), (G(6, 1), G(7, 16)), (G(8, 5), G(9, 16)), (G(11, 9), G(13, 0)), (G(13, 1), G(14, 16)), (G(15, 1), G(16, 16))]):
        ph.put(ga, *norm_a(k))
        ph.spread(norm_b(k), ga + 1, gb)
    for k, i in enumerate(flag_ops(1) + [f"s_mov_b32 s{sIt}, 0", f"s_mov_b32 s{sXoff}, {1024*NPRE}", f"s_mov_b32 s{sR}, {SL(18)}", f"s_add_u32 s{sW}, s{sWpart}, {SL(17)}"]):
        ph.shadow(G(17, 1 + k), i)
    ph.put(G(17, 14), f"v_add_u32 v{vK}, {SL(18)}, v{vKl}")
    ph.put(G(16, 14), f"v_add_u32 v{vV}, {SL(18)}, v{vVl}")
    ph.emit("boundary")

def finish():
    order = [(29, q) for q in range(6)] + [(t, q) for q in range(6) for t in (30, 31)]
    if a.fin2: order[7], order[8] = order[8], order[7]
    us = [U(t, q, 174 + i) for i, (t, q) in enumerate(order)] + [None, None]
    ph = Phase()
    vr30 = [v_read(30, n) for n in range(16)]
    rd = {0: [k_read(30, n) for n in range(6)], 1: [k_read(30, n) for n in range(6, 8)] + vr30[:4], 2: vr30[4:10], 5: vr30[12:]}
    if a.fin2: rd = {0: [k_read(30, n) for n in range(5)], 1: [k_read(30, n) for n in range(5, 8)] + vr30[:2], 2: vr30[2:7], 3: vr30[7:12], 4: vr30[12:]}
    for j in range(18):
        ph.step(us[j + 2], us[j + 1], us[j], reads=rd.get(j, []), early=(j == (4 if a.fin2 else 5)))
    G = ph.g
    for k, i in enumerate([f"s_mul_i32 s{sT}, s{sHB}, 98304", f"s_mul_i32 s{sT2}, s{sWV}, 24576", f"s_add_u32 s{sT}, s{sT}, s{sT2}",
                           f"s_add_u32 s{SRD_O}, s{sOp}, s{sT}", f"s_addc_u32 s{SRD_O+1}, s{sOp+1}, 0"]):
        ph.shadow(G(8, 11 + k), i)
    for c in range(NFIN):
        g = G(0, 1) + (G(8, 1) - G(0, 1)) * c // max(NFIN - 1, 1)
        while g % 17 not in (1, 3, 5, 7, 10, 12, 14, 16): g += 1
        park(ph, 24 - NFIN + c, c % 2, g, g + 8)
    if not a.fin2:
        ph.spread(vr30[10:12], G(3, 0), G(3, 6))
        ph.shadow(G(3, 7), *sync("KV31", "K30"))
        ph.spread([k_read(31, n) for n in range(8)], G(3, 8), G(4, 10))
        ph.shadow(G(4, 16), W(lg="K31"))
        ph.spread([v_read(31, n) for n in range(16)], G(5, 10), G(6, 16))
        ph.shadow(G(6, 7), W(lg="V30"))
        ph.shadow(G(7, 7), W(lg="V31"))
    else:
        ph.shadow(G(3, 15), W(lg="K30"))
        ph.shadow(G(4, 12), *sync("KV31", None))
        ph.spread([k_read(31, n) for n in range(8)], G(4, 13), G(5, 10))
        ph.shadow(G(5, 16), W(lg="K31"))
        ph.spread([v_read(31, n) for n in range(16)], G(6, 0), G(7, 16))
        ph.shadow(G(8, 7), W(lg="V31"))
    for k in range(4):
        j = 8 + 2 * k
        if a.fin2 and k == 0:
            ph.put(G(9, 5 if "nomul" in a.abl else 3), *norm_a(0))
            ph.spread(norm_b(0) + back_ops(0), G(9, 6 if "nomul" in a.abl else 4), G(9, 16))
            continue
        ph.put(G(j, 5 if "nomul" in a.abl else 3), *norm_a(k))
        if a.fin2 and k == 1:
            nb = norm_b(1); st = store_ops(0, SP)
            ph.spread(st[:5] + nb[:9] + st[5:7] + nb[9:14] + st[7:] + nb[14:] + back_ops(1), G(j, 6 if "nomul" in a.abl else 4), G(j + 1, 2))
            ph.spread(store_ops(k, SP), G(j + 1, 7), G(j + 1, 16))
            continue
        ph.spread(norm_b(k) + back_ops(k), G(j, 6 if "nomul" in a.abl else 4), G(j, 16))
        ph.spread(store_ops(k, SP), G(j + 1, 4), G(j + 1, 16))
    ph.put(G(16, 2), *norm_a(4))
    ph.spread(norm_b(4) + back_ops(4), G(16, 3), G(17, 4))
    ph.emit("finish")
    n0 = len(code)
    st4 = store_ops(4, SP)
    A(*st4[:5]); A("s_nop 2")
    A(*norm_a(5)); nb = norm_b(5)
    A(*(nb[:9] + st4[5:7] + nb[9:14] + st4[7:] + nb[14:] + back_ops(5) + flag_ops(2) + store_ops(5, SP)))
    est.append(("tail", n0, len(code), 0))

L(NAME)
if a.stamps == 5: A("s_memtime s[80:81]", "s_memrealtime s[82:83]")
A("s_load_dwordx8 s[4:11], s[0:1], 0", "s_cmp_ge_u32 s2, 256", "s_cbranch_scc1 L_exit")
def code_prefetch():
    if a.cpfm == 0:
        C("touch ten 128-byte lines of this kernel's code per workgroup so that later instruction fetches hit in L2")
        A("s_getpc_b64 s[12:13]", f"s_lshr_b32 s{sT}, s2, 3", f"s_mulk_i32 s{sT}, 1280",
          f"v_min_u32 v{vT+1}, 9, v{vT+1}", f"v_lshl_add_u32 v{vT+1}, v{vT+1}, 7, s{sT}", f"v_min_u32 v{vT+1}, L_exit-{NAME}-1024, v{vT+1}",
          Ins(f"global_load_dword a255, v{vT+1}, s[12:13]", "code"))
    else:
        C("touch a 4 KiB slice (id mod 9) of this kernel's code, one dword per 128-byte line, so that later instruction fetches hit in L2")
        A("s_getpc_b64 s[12:13]", f"s_mul_i32 s{sT}, s2, 57", f"s_lshr_b32 s{sT}, s{sT}, 9", f"s_mulk_i32 s{sT}, 9", f"s_sub_u32 s{sT}, s2, s{sT}", f"s_lshl_b32 s{sT}, s{sT}, 12",
          f"v_lshl_add_u32 v{vT+1}, v{vT+1}, 7, s{sT}", f"v_min_u32 v{vT+1}, L_exit-{NAME}-1024, v{vT+1}",
          Ins(f"global_load_dword a255, v{vT+1}, s[12:13]", "code"))
if a.stamps: A(f"s_load_dwordx2 s[{SRD_W}:{SRD_W+1}], s[0:1], 40", f"s_mov_b32 s{sSt+5}, 0")
A(f"v_lshrrev_b32 v{vT}, 6, v0", f"v_lshrrev_b32 v{vT+1}, {3 if a.cpfm else 4}, v0", f"v_readfirstlane_b32 s{sWV}, v{vT}", "v_and_b32 v0, 63, v0", f"v_lshlrev_b32 v{vDMA}, 4, v0")
if a.cpf == 1: code_prefetch()
if a.hmap == 0: A(f"s_lshl_b32 s{sHA}, s2, 1")
else: A(f"s_mov_b32 s{sHA}, s2")
A(f"s_mov_b32 s{SRD_KV+3}, 0x20000", f"s_mov_b32 s{SRD_KV+2}, {KBYTES}", f"s_mul_i32 s{sWpart}, s{sWV}, {4*PIECE}")
kv_offset(sHA, sPoff)
if a.rot: A(f"s_mov_b32 s{sBase}, s{sPoff}", f"s_lshr_b32 s{sRot}, s2, {a.rot // 100}", f"s_mul_i32 s{sRot}, s{sRot}, {(a.rot % 100) * 8192}", f"s_and_b32 s{sRot}, s{sRot}, 0x1ffff", f"s_add_u32 s{sPoff}, s{sBase}, s{sRot}")
A(f"s_mul_i32 s{sT}, s{sHA}, 98304", f"s_mul_i32 s{sT2}, s{sWV}, 24576", f"s_add_u32 s{sT}, s{sT}, s{sT2}", f"s_mov_b32 s{SRD_Q+2}, 24576",
  f"s_mov_b32 s{SRD_Q+3}, 0x20000", f"s_mul_i32 s{sReg}, s{sWV}, {REGW}", f"s_add_u32 s{sReg}, s{sReg}, {REG}", f"s_mov_b32 m0, s{sWpart}")
A(f"s_cmp_lt_u32 s{sWV}, 2", "s_waitcnt lgkmcnt(0)", f"s_cselect_b64 {sreg(SRD_KV,2)}, s[6:7], s[8:9]")
if a.stamps: A(f"s_mov_b32 s{SRD_W+2}, 268435456", f"s_mov_b32 s{SRD_W+3}, 0x20000")
if a.stamps == 5: A("s_memtime s[84:85]", "s_memrealtime s[86:87]")
else: stamp()
if a.stamps: A("s_nop 0")
if a.slp > 0:
    A("s_bitcmp1_b32 s2, 3", "s_cbranch_scc0 L_noslp", f"s_sleep {a.slp}"); L("L_noslp")
if a.slp < 0:
    for b in range(3):
        A(f"s_bitcmp1_b32 s2, {3+b}", f"s_cbranch_scc0 L_noslp{b}", f"s_sleep {(-a.slp) << b}"); L(f"L_noslp{b}")
def fill(seq, filler):
    for i in seq:
        if i == "s_nop 0" and filler: A(filler.pop(0))
        else: A(i)
fl = [f"s_mov_b32 s{SRD_O+3}, 0x20000", f"s_mov_b32 s{SRD_X+3}, 0x20000", f"s_mov_b32 s{sFlag}, {a.force_redo}", f"s_mov_b64 {sreg(sBad,2)}, 0",
      f"s_mov_b32 s{sC}, 0x{CSCALE:08x}", f"s_mov_b32 s{sLo}, 1.0", f"s_mov_b32 s{sHi}, 0x4e800000", f"s_mov_b32 s{sIt}, {(X0 - 1) // 2}",
      f"s_add_u32 s{sHB}, s{sHA}, {256 if a.hmap else 1}", f"s_mov_b32 s{sMask}, 0xffff0000", f"s_mov_b32 s{sX0}, 0"]
fill(kv_issue(0)[2:], fl)
if a.stamps == 5: A("s_memtime s[88:89]", "s_memrealtime s[90:91]")
A(f"s_add_u32 s{SRD_Q}, s{sQp}, s{sT}", f"s_addc_u32 s{SRD_Q+1}, s{sQp+1}, 0")
if a.cpf == 2: code_prefetch()
fill(q_issue(0), fl)
if a.stamps == 5: A("s_memtime s[92:93]", "s_memrealtime s[94:95]")
if a.cpf == 3: code_prefetch()
k1 = kv_issue(1)
fill(k1[:6], fl)
C("---- per-lane LDS addresses (i = lane%16, g = lane/16)")
A(f"v_and_b32 v{vT}, 15, v0", f"v_lshrrev_b32 v{vT+1}, 4, v0")
A(f"v_and_b32 v{vT+2}, 7, v{vT}", f"v_mul_u32_u24 v{vKl}, {PIECE}, v{vT+2}", f"v_lshrrev_b32 v{vT+2}, 3, v{vT}",
  f"v_lshl_add_u32 v{vKl}, v{vT+2}, 8, v{vKl}", f"v_lshl_add_u32 v{vKl}, v{vT+1}, 4, v{vKl}")
A(f"v_bfe_u32 v{vT+2}, v0, 2, 3", f"v_mul_u32_u24 v{vVl}, {PIECE}, v{vT+2}", f"v_lshrrev_b32 v{vT+2}, 5, v0",
  f"v_lshl_add_u32 v{vVl}, v{vT+2}, 8, v{vVl}", f"v_and_b32 v{vT+2}, 3, v0", f"v_lshl_add_u32 v{vVl}, v{vT+2}, 3, v{vVl}",
  f"v_add_u32 v{vVl}, {8*PIECE}, v{vVl}")
A(f"v_cmp_eq_u32 vcc, 0, v{vT+2}", f"v_mov_b32 v{vT+4}, 0x3f803f80")
A(f"v_mul_u32_u24 v{vQ}, {QP}, v{vT+2}", f"v_cndmask_b32 v{vT+4}, 0, v{vT+4}, vcc", f"v_lshrrev_b32 v{vT+3}, 2, v{vT}",
  f"v_lshl_add_u32 v{vQ}, v{vT+3}, 8, v{vQ}", f"v_lshl_add_u32 v{vQ}, v{vT+1}, 4, v{vQ}", f"v_add_u32 v{vQ}, s{sReg}, v{vQ}")
A(f"v_lshl_add_u32 v{vT+2}, v{vT+2}, 2, v{vT+3}", f"v_mul_u32_u24 v{vOw}, 272, v{vT+2}", f"v_lshl_add_u32 v{vOw}, v{vT+1}, 3, v{vOw}",
  f"v_add_u32 v{vOw}, s{sReg}, v{vOw}", f"v_mul_u32_u24 v{vOr}, 272, v{vT+1}", f"v_lshl_add_u32 v{vOr}, v{vT}, 4, v{vOr}",
  f"v_add_u32 v{vOr}, s{sReg}, v{vOr}", f"v_add_u32 v{vX}, {NPRE*QP}, v{vOr}")
for j in range(4): A(f"v_accvgpr_write_b32 a{aONE+j}, v{vT+4}")
A(f"v_and_b32 v{vT+2}, 3, v0", f"v_cmp_eq_u32 vcc, 2, v{vT+2}", f"v_mov_b32 v{vT+3}, 0x3f803f80", f"v_bfe_u32 v{vT+2}, v0, 1, 1",
  f"v_cndmask_b32 v{vT+4}, 0, v{vT+3}, vcc", f"v_lshrrev_b32 v{vT}, 5, v0", f"v_cmp_eq_u32 vcc, v{vT}, v{vT+2}")
for j in range(4): A(f"v_accvgpr_write_b32 a{aONE+4+j}, v{vT+4}")
A(f"v_cndmask_b32 v{vT+4}, 0, v{vT+3}, vcc", f"v_and_b32 v{vT+2}, 1, v0", f"v_mul_u32_u24 v{vT+2}, 0xaaaa, v{vT+2}", f"v_add_u32 v{vIdx}, 0x4444, v{vT+2}")
for j in range(4): A(f"v_accvgpr_write_b32 a{aSM+j}, v{vT+4}")
A(f"v_add_u32 v{vK}, {SL(X0+1)}, v{vKl}", f"v_add_u32 v{vV}, {SL(X0+1)}, v{vVl}")
window(SRD_O, sOp, sHA)
if "nost" in a.abl: A(f"s_mov_b32 s{SRD_O+2}, 0")
window(SRD_X, sQp, sHB)
kv_offset(sHB, sKVoffN)
if a.qdelay: A(f"s_mov_b32 s{SRD_X+2}, 0")
A(f"s_mov_b32 s{sXoff}, 0", f"s_mov_b32 s{sXm}, s{sReg}", f"s_mov_b32 s{sR}, {SL(X0+1)}", f"s_add_u32 s{sW}, s{sWpart}, {SL(X0)}")
fill(k1[6:], fl)
assert not fl
C("---- start-up: tiles 0 and 1 are processed q-major while Q arrives")
if a.stamps == 5:
    A("s_waitcnt lgkmcnt(0)")
    for k in range(4): A(f"v_writelane_b32 v{vStamp}, s{80+4*k}, {k}", f"v_writelane_b32 v{vStamp+1}, s{82+4*k}, {k}")
    A(f"s_mov_b32 s{sSt+5}, 4")
def st3():
    if a.stamps in (3, 5): stamp()
st3()
A(*sync("KV0", None)); st3()
A(*[k_read(0, n) for n in range(8)]); A(*q_issue(1))
A(W(vm="QD0_0")); st3(); A(*[q_read(0, ks, 0, a.pre) for ks in range(4)]); A(*q_issue(2)); A(W(lg="all"))
if a.pre:
    for ks in range(4): A(*pre_ops(0, ks))
    A("s_nop 1")
assert a.pre
if a.start == 2:
    order = [(t, q) for q in range(6) for t in range(2)] + [(2, 0), (2, 1)]
    qstep = {2: 3, 3: 5, 4: 7, 5: 9}
else:
    order = [(t, q) for q in range(4) for t in range(2)] + [(2, 0), (2, 1), (2, 2), (2, 3), (1, 4), (2, 4), (1, 5), (2, 5), (-1, 4), (-1, 5), (3, 0), (3, 1)]
    qstep = {2: 3, 3: 5, 4: 11, 5: 13}
    if a.var == 1:
        order = [(t, q) for q in range(5) for t in range(2)] + [(2, 0), (2, 1), (2, 2), (2, 3), (1, 5), (2, 4), (2, 5), (-1, 5), (3, 0), (3, 1)]
        qstep = {2: 3, 3: 5, 4: 7, 5: 13}
us = [U(t, q, n) for n, (t, q) in enumerate(order)]
ph = Phase()
ph.step(us[0], reads=[v_read(0, n) for n in range(16)])
ph.emit()
A(*sync("KV1")); st3()
A(*[k_read(1, n) for n in range(8)]); A(*q_issue(3)); A(W(lg="all"))
ph = Phase()
seen = set()
for n in range(1, len(us)):
    pv = us[n - 2] if n >= 2 else None
    ph.step(us[n], us[n - 1], pv, first=(pv is not None and pv.q not in seen))
    if pv: seen.add(pv.q)
G = lambda n, k: ph.g(n - 1, k)
ph.put(G(1, 0), W(vm="QD0_1"), *[q_read(1, ks, 0, True) for ks in range(4)])
for ks in range(4):
    g = G(1, [5, 6, 6, 7][ks])
    if ks != 2: ph.shadow(g, W(lg=f"Q0_1_{ks + (ks == 1)}"))
    ph.put(g, *pre_ops(1, ks))
ph.spread([v_read(1, n) for n in range(16)], G(2, 0), G(2, 16))
ph.shadow(G(3, 7), W(lg="V1"))
for q in range(2, 6):
    n = qstep[q]
    if a.qw == 1:
        ph.shadow(G(n, 1), W(vm=f"QD0_{q}"))
        for ks in range(4):
            ph.put(G(n, [2, 2, 4, 4][ks]), q_read(q, ks, 0, True))
            ph.shadow(G(n, 10 + ks), W(lg=f"Q0_{q}_{ks}"))
            ph.put(G(n, 10 + ks), *pre_ops(q, ks))
    else:
        ph.put(G(n, 8), W(vm=f"QD0_{q}"), *[q_read(q, ks, 0, True) for ks in range(4)])
        for ks in range(4):
            g = G(n, [14, 15, 16, 16][ks])
            if ks != 3: ph.shadow(g, W(lg=f"Q0_{q}_{ks + (ks == 2)}"))
            ph.put(g, *pre_ops(q, ks))
gs = lambda n: [G(n, 3), G(n, 5), G(n, 7), G(n, 9)] if a.qw == 1 else [G(n, 10), G(n, 11), G(n, 12), G(n, 13)]
def kjit(n, x):
    ph.shadow(G(n, 0), *sync(f"KV{x}", None))
    for k in range(8): ph.put(G(n, [2, 2, 4, 4, 6, 8, 8, 10][k]), k_read(x, k))
    ph.shadow(G(n, 16), W(lg=f"K{x}"))
if a.start == 2:
    q_dma(ph, [G(1, 2), G(1, 3), G(1, 4), G(1, 5)], 4)
    q_dma(ph, gs(3), 5); kv_dma(ph, gs(5), 2); kv_dma(ph, gs(7), 3); kv_dma(ph, gs(9), 4)
    ph.shadow(G(6, 8), "s_barrier")
    kjit(11, 2)
    if a.jit:
        ph.spread([v_read(2, n) for n in range(16)], G(12, 10), G(13, 16))
        period_jit(2, ph)
    else:
        ph.spread([v_read(2, n) for n in range(16)], G(12, 10), G(13, 8))
        ph.shadow(G(13, 16), *sync("KV3"))
elif a.var == 1:
    q_dma(ph, [G(1, 2), G(1, 3), G(1, 4), G(1, 5)], 4)
    kv_dma(ph, gs(3), 2); q_dma(ph, gs(5), 5)
    ph.shadow(G(6, 8), "s_barrier")
    kv_dma(ph, gs(7), 3)
    kjit(9, 2)
    ph.spread([v_read(2, n) for n in range(16)], G(10, 10), G(11, 8))
    ph.shadow(G(11, 16), W(lg="V2"), "s_barrier")
    kv_dma(ph, [G(12, 2), G(12, 4), G(12, 8), G(12, 14)], 4)
    ph.spread([k_read(-1, n) for n in range(8)], G(14, 8), G(15, 16))
    ph.shadow(G(16, 8), W(lg="K-1"))
    kjit(17, 3)
    vs = [v_read(-1, n) for n in range(16)]
    ph.spread(vs[:8], G(16, 12), G(16, 16)); ph.spread(vs[8:], G(17, 11), G(18, 0))
    ph.shadow(G(18, 8), W(lg="V-1"), "s_barrier")
    kv_dma(ph, [G(18, 10), G(18, 14), G(19, 2), G(19, 8)], 5)
    assert a.jit
    ph.spread([v_read(3, n) for n in range(16)], G(18, 11), G(19, 16))
    period_jit(3, ph)
else:
    kv_dma(ph, [G(1, 2), G(1, 3), G(1, 4), G(1, 5)], 2)
    q_dma(ph, gs(3), 4); q_dma(ph, gs(5), 5)
    kjit(7, 2)
    kv_dma(ph, [G(7, 12), G(7, 14), G(8, 2), G(8, 4)], 3)
    ph.spread([v_read(2, n) for n in range(16)], G(8, 10), G(9, 16))
    ph.shadow(G(10, 7), W(lg="V2"))
    ph.shadow(G(10, 14), "s_barrier")
    kv_dma(ph, gs(11), 4)
    ph.spread([k_read(-1, n) for n in range(8)], G(14, 8), G(15, 8))
    ph.shadow(G(15, 16), W(lg="K-1"))
    kjit(17, 3)
    vs = [v_read(-1, n) for n in range(16)]
    ph.spread(vs[:8], G(16, 12), G(16, 16)); ph.spread(vs[8:], G(17, 11), G(18, 0))
    ph.shadow(G(18, 7), W(lg="V-1"))
    ph.shadow(G(18, 8), "s_barrier")
    kv_dma(ph, [G(18, 10), G(18, 14), G(19, 2), G(19, 8)], 5)
    if a.jit:
        ph.spread([v_read(3, n) for n in range(16)], G(18, 9), G(19, 16))
        period_jit(3, ph)
    else:
        ph.spread([v_read(3, n) for n in range(16)], G(18, 9), G(19, 10))
        ph.shadow(G(19, 16), *sync("KV4"))
ph.emit("start")
stamp()
main_loop(0, X0, 13)
stamp()
boundary()
stamp()
main_loop(1, 17, 28)
stamp()
finish()
stamp()
C("---- combine the per-wave 'row sum left the safe range' flags of the workgroup")
A(f"s_lshl_b32 s{sT}, s{sWV}, 2", f"s_add_u32 s{sT}, s{sT}, {FLAGS}", f"v_mov_b32 v{vT}, s{sT}", f"v_mov_b32 v{vT+1}, s{sFlag}",
  f"ds_write_b32 v{vT}, v{vT+1}", f"v_mov_b32 v{vT}, {FLAGS}", "s_waitcnt lgkmcnt(0)", "s_barrier",
  f"ds_read_b128 {vr(vT+2,4)}, v{vT}", "s_waitcnt lgkmcnt(0)",
  f"v_or_b32 v{vT+2}, v{vT+2}, v{vT+3}", f"v_or3_b32 v{vT+2}, v{vT+2}, v{vT+4}, v{vT+5}", "s_nop 0",
  f"v_readfirstlane_b32 s{sPend}, v{vT+2}", "s_nop 3")
L("L_pend")
A(f"s_cmp_eq_u32 s{sPend}, 0", "s_cbranch_scc1 L_done")
C("==== rare path: redo a head, subtracting the true row maximum (plain, unpipelined code)")
A(f"s_bitcmp1_b32 s{sPend}, 0", f"s_cselect_b32 s{sCur}, s{sHA}, s{sHB}", f"s_cselect_b32 s{sT}, 2, 0", f"s_and_b32 s{sPend}, s{sPend}, s{sT}",
  "s_waitcnt vmcnt(0) lgkmcnt(0)", "s_barrier", f"s_mov_b32 s{SRD_KV+2}, {KBYTES}")
window(SRD_Q, sQp, sCur); window(SRD_O, sOp, sCur)
for k in range(6): A(*q_issue(k))
for j in range(6): A(f"v_mov_b32 v{vM+j}, 0xff800000")
A("s_waitcnt vmcnt(0)")
for k in range(6):
    A(*[q_read(k, ks, 0) for ks in range(4)]); A("s_waitcnt lgkmcnt(0)")
kv_offset(sCur, sPoff)
if a.rot: A(f"s_mov_b32 s{sBase}, s{sPoff}", f"s_mov_b32 s{sRot}, 0")
A(f"s_mov_b32 s{sIt}, 0")
L("L_maxloop")
A(*kv_issue(0)); A("s_waitcnt vmcnt(0)", "s_barrier")
A(*[k_read(0, n) for n in range(8)]); A("s_waitcnt lgkmcnt(0)", "s_barrier")
for qt in range(6):
    A(*qk_mfmas(U(0, qt, 0))); A("s_nop 7")
    for j in range(4): A(f"v_max3_f32 v{vM+qt}, v{vM+qt}, v{vS+2*j}, v{vS+2*j+1}")
A(f"s_add_u32 s{sIt}, s{sIt}, 1", f"s_cmp_lt_u32 s{sIt}, 16", "s_cbranch_scc1 L_maxloop")
for qt in range(6):
    m = vM + qt
    A(f"v_mov_b32 v{vT}, v{m}", "s_nop 1", f"v_permlane32_swap_b32 v{vT}, v{m}", "s_nop 1", f"v_max_f32 v{m}, v{m}, v{vT}",
      f"v_mov_b32 v{vT}, v{m}", "s_nop 1", f"v_permlane16_swap_b32 v{vT}, v{m}", "s_nop 1", f"v_max_f32 v{m}, v{m}, v{vT}",
      f"v_mul_f32 v{m}, s{sC}, v{m}", f"v_sub_f32 v{m}, 0, v{m}")
for r in range(vO, 256, 2): A(f"v_mov_b64 {vr(r,2)}, 0")
for r in range(12): A(f"v_accvgpr_write_b32 a{aL+r}, 0")
kv_offset(sCur, sPoff)
if a.rot: A(f"s_mov_b32 s{sBase}, s{sPoff}", f"s_mov_b32 s{sRot}, 0")
A(f"s_mov_b32 s{sIt}, 0")
L("L_slowloop")
A(*kv_issue(0)); A("s_waitcnt vmcnt(0)", "s_barrier")
A(*[k_read(0, n) for n in range(8)]); A("s_waitcnt lgkmcnt(0)")
A(*[v_read(0, n) for n in range(16)]); A("s_waitcnt lgkmcnt(0)", "s_barrier")
for qt in range(6):
    u = U(0, qt, 0)
    A(*qk_mfmas(u)); A("s_nop 7")
    for j in range(8): A(f"v_fma_f32 v{vS+j}, v{vS+j}, s{sC}, v{vM+qt}")
    for j in range(8): A(sm_e(u, j))
    A("s_nop 0")
    for k in range(4): A(sm_c(u, k))
    A("s_nop 1"); A(*pv_mfmas(u))
A(f"s_add_u32 s{sIt}, s{sIt}, 1", f"s_cmp_lt_u32 s{sIt}, 16", "s_cbranch_scc1 L_slowloop")
A("s_nop 7")
for qt in range(6): A(*(norm_a(qt) + norm_b(qt) + back_ops(qt) + store_ops(qt, SP)))
A("s_branch L_pend")
L("L_done")
if a.probe >= 0 or a.probec:
    A("s_waitcnt vmcnt(0)"); stamp()
    if a.probec: A(f"s_sub_u32 s{sSt+8}, s{sSt+10}, s{sSt+8}", f"s_lshr_b32 s{sSt+8}, s{sSt+8}, 3", f"s_add_u32 s{sSt+6}, s{sSt+6}, s{sSt+8}")
    L("L_spin")
    A(f"s_memrealtime s[{sSt}:{sSt+1}]", "s_waitcnt lgkmcnt(0)", f"s_sub_u32 s{sSt}, s{sSt}, s{sSt+6}", f"s_cmp_lt_i32 s{sSt}, 10000", "s_cbranch_scc1 L_spin")
if a.stamps:
    A("s_waitcnt vmcnt(0)"); stamp()
    A(f"v_lshlrev_b32 v{vT}, 3, v0", f"s_lshl_b32 s{sT}, s2, 2", f"s_add_u32 s{sT}, s{sT}, s{sWV}", f"s_lshl_b32 s{sT}, s{sT}, 9",
      f"buffer_store_dwordx2 {vr(vStamp,2)}, v{vT}, {sreg(SRD_W,4)}, s{sT} offen")
L("L_exit")
A("s_endpgm")

resolve(trace)
errs = verify(trace)
for e in errs[:40]: print("VERIFY:", e, file=sys.stderr)
if a.est:
    for (name, n0, n1, nm) in est: print(f"est {name}: {estimate(code[n0:n1])} cycles, {nm} mfma", file=sys.stderr)
if a.est:
    for tau in (260, 300, 340):
        seq = [i for i, x in trace]
        res = []
        for nmf in (6 * 102, ):
            cnt = 0; cut = 0
            for k, i in enumerate(seq):
                if i.kind == "mfma":
                    cnt += 1
                    if cnt == nmf: cut = k; break
            res.append(simulate(seq[:cut], tau=tau)[1])
        print(f"sim tau={tau}: 6 tiles of work done at {res} -> virtual start {res[0] - 6*1705}", file=sys.stderr)
hdr = open("standalone__mha_softmax__near_ridge.s.ref").read().split("; Override launch")[0]
o = [hdr.rstrip(), f"; @launch grid=(256,1,1) block=(256,1,1) lds={LDS}", '.amdgcn_target "amdgcn-amd-amdhsa--gfx950"',
     ".text", f".globl {NAME}", ".p2align 8", f".type {NAME},@function"]
for i in code:
    t = i.render()
    if t is None: continue
    o.append(t if i.kind == "label" or t.startswith(".") else "    " + t.rstrip())
o += ['.section .rodata,"a"', ".p2align 6", f".amdhsa_kernel {NAME}", """  .amdhsa_next_free_vgpr 512
  .amdhsa_next_free_sgpr 102
  .amdhsa_accum_offset 256
  .amdhsa_group_segment_fixed_size 0
  .amdhsa_kernarg_size 48
  .amdhsa_user_sgpr_count 2
  .amdhsa_user_sgpr_kernarg_segment_ptr 1
  .amdhsa_system_sgpr_workgroup_id_x 1
  .amdhsa_float_denorm_mode_32 3""", ".end_amdhsa_kernel"]
print("\n".join(o))
sys.exit(1 if errs else 0)
```
